```python
import torch

def _softmax(x, axis=-1):
    return torch.softmax(x, dim=axis)
def _gelu(x):
    return torch.nn.functional.gelu(x, approximate="tanh")
def _silu(x):
    return torch.nn.functional.silu(x)
def _sigmoid(x):
    return torch.sigmoid(x)
def _layernorm(x, axis=-1, eps=1e-5):
    m = x.mean(dim=axis, keepdim=True)
    v = x.var(dim=axis, keepdim=True, unbiased=False)
    return (x - m) / torch.sqrt(v + eps)
def _scatter_add(tgt, idx, src, axis=0):
    return tgt.clone().index_add_(axis, idx, src)
def _segment_sum(src, seg, n):
    out = torch.zeros((n,) + src.shape[1:], dtype=src.dtype)
    return out.index_add_(0, seg, src)
def _pad(x, pw):
    flat = tuple(v for pair in reversed(pw) for v in pair)
    return torch.nn.functional.pad(x, flat)

kernel_name = 'standalone__gqa_block_cached__decode'

def setup_inputs():

    _w = (lambda a: (lambda t: t.to(torch.bfloat16) if t.is_floating_point() else t)(torch.as_tensor(a)))
    B, Sq, D = 8, 1, 448
    Hq, Hkv, Sk, Dh = 16, 8, 4096, 256
    assert Hq % Hkv == 0, (Hq, Hkv)
    return {
        "x": _w((lambda *s: torch.randn(*s, dtype=torch.bfloat16) * 0.8)(B, Sq, D)),
        "k_cache": _w((lambda *s: torch.randn(*s, dtype=torch.bfloat16) * 0.8)(B, Hkv, Sk, Dh)),
        "v_cache": _w((lambda *s: torch.randn(*s, dtype=torch.bfloat16) * 0.05)(B, Hkv, Sk, Dh)),
        "wq": _w((lambda *s: torch.randn(*s, dtype=torch.bfloat16) * 0.8)(D, Hq * Dh) * (D ** -0.5)),
        "wo": _w((lambda *s: torch.randn(*s, dtype=torch.bfloat16) * 0.05)(Hq * Dh, D) * ((Hq * Dh) ** -0.5)),
    }

def reference(x, k_cache, v_cache, wq, wo):
    B, Sq, D = x.shape
    Hq, Dh = 16, 256
    Hkv = k_cache.shape[1]
    rep = Hq // Hkv
    q = (lambda x, *d: x.permute(*d))((x @ wq).reshape(B, Sq, Hq, Dh), 0, 2, 1, 3)
    k = (lambda x, n, axis: torch.repeat_interleave(x, n, dim=axis))(k_cache, rep, axis=1)
    v = (lambda x, n, axis: torch.repeat_interleave(x, n, dim=axis))(v_cache, rep, axis=1)
    scores = torch.einsum("bhqd,bhkd->bhqk", q, k) * (Dh ** -0.5)
    p = _softmax(scores, axis=-1)
    o = torch.einsum("bhqk,bhkd->bhqd", p, v)
    return (lambda x, *d: x.permute(*d))(o, 0, 2, 1, 3).reshape(B, Sq, Hq * Dh) @ wo
```

```python
import sys

out = sys.argv[1]
P = dict(stamps=0, LAK=8, LAV=8, PACE=3, kflags="nt", vflags="nt", spinmax=200000, dbgq=0)
for a in sys.argv[2:]:
    k, v = a.split("=")
    P[k] = int(v) if v.lstrip("-").isdigit() else v
kflags = P["kflags"].replace("+", " ").replace("none", "")
vflags = P["vflags"].replace("+", " ").replace("none", "")
STAMPS = P["stamps"]

L = []
def e(s=""):
    for line in s.split("\n"):
        L.append(line)

KN = "standalone__gqa_block_cached__decode_kernel"

RING = 0
WQS = 131072
PB = 131072
HS = 2112
QB = 145408
MAXX = 146432
LSUM = 146560
TAGL = 146688
OST = 146752
LDS_TOTAL = 147008

WS_E = 0x0
WS_Q = 0x1000
WS_ST = 0x30000
WS_OP = 0x40000
WS_OUT = 0x140000
WS_STAMP = 400 * 1024 * 1024
TAGC = 0x9E3779B9
CEXP = 0x3DB8AA3B

import struct
cexp = struct.unpack("<I", struct.pack("<f", 1.4426950408889634 / 16.0))[0]
CEXP = cexp

e("; @launch grid=(256,1,1) block=(512,1,1) lds=%d" % LDS_TOTAL)
e('.amdgcn_target "amdgcn-amd-amdhsa--gfx950"')
e(".text")
e(".globl %s\n.p2align 8\n.type %s,@function\n%s:" % (KN, KN, KN))

sX, sK, sV, sWQ, sWO, sOUT, sDBG, sWS = 16, 18, 20, 22, 24, 26, 28, 30
stampregs = list(range(64, 84, 2))
def stamp(i):
    if STAMPS:
        e("s_memrealtime s[%d:%d]" % (stampregs[i], stampregs[i] + 1))
        e("s_waitcnt lgkmcnt(0)")
def stamp_flush(n, label):
    if not STAMPS:
        return
    e("s_getreg_b32 s84, hwreg(HW_REG_XCC_ID)")
    e("s_lshl_b32 s85, s2, 3\ns_add_u32 s85, s85, s3\ns_lshl_b32 s85, s85, 7")
    e("s_add_u32 s85, s85, %d" % WS_STAMP)
    e("s_add_u32 s86, s%d, s85\ns_addc_u32 s87, s%d, 0" % (sWS, sWS + 1))
    e("s_mov_b64 exec, 1\nv_mov_b32 v1, 0")
    for i in range(10):
        if i < n:
            e("v_mov_b32 v2, s%d\nv_mov_b32 v3, s%d" % (stampregs[i], stampregs[i] + 1))
        else:
            e("v_mov_b32 v2, s%d\nv_mov_b32 v3, s%d" % (stampregs[n - 1], stampregs[n - 1] + 1))
        e("global_store_dwordx2 v1, v[2:3], s[86:87] offset:%d" % (i * 8))
        e("s_nop 1")
    e("v_mov_b32 v2, s84\nv_mov_b32 v3, 0")
    e("global_store_dwordx2 v1, v[2:3], s[86:87] offset:%d" % (10 * 8))
    e("s_waitcnt vmcnt(0)")

e("s_cmp_ge_u32 s2, 256")
e("s_cbranch_scc1 L_end")
if STAMPS:
    e("s_memrealtime s[64:65]")
e("s_load_dwordx16 s[16:31], s[0:1], 0")
e("v_lshrrev_b32 v1, 6, v0")
e("s_and_b32 s5, s2, 7")
e("v_readfirstlane_b32 s3, v1")
e("s_lshr_b32 s4, s2, 3")
e("s_and_b32 s6, s4, 7")
e("s_lshr_b32 s7, s4, 3")
e("s_lshl_b32 s8, s6, 3")
e("s_add_u32 s8, s8, s5")
e("v_and_b32 v1, 63, v0")
e("s_cmp_ge_u32 s3, 4")
e("s_cbranch_scc1 L_helper")

vKoff = list(range(2, 10))
vKrd = list(range(10, 18))
vVoff = list(range(18, 22))
vVrd = list(range(22, 26))
vPrd, vPwr = 26, 27
vT0, vT1, vT2, vT3 = 200, 201, 202, 203
qB = 32
Sreg = 64
Areg = 128
Pa = 128
Vb = 132
acc = 148
vM = 164; vMc = 165; vL = 166; vU = 168

e("s_lshl_b32 s10, s3, 15")
e("s_lshl_b32 s11, s3, 12")
e("v_lshrrev_b32 v28, 5, v1")
e("v_and_b32 v29, 31, v1")
e("v_xor_b32 v29, v29, v28")
e("v_lshlrev_b32 v29, 4, v29")
e("v_lshl_add_u32 v%d, v28, 9, v29" % vKoff[0])
for n in range(1, 8):
    e("v_xor_b32 v%d, %d, v%d" % (vKoff[n], n << 5, vKoff[0]))
e("s_waitcnt lgkmcnt(0)")
e("s_lshl_b32 s12, s8, 21")
e("s_lshl_b32 s13, s7, 19")
e("s_add_u32 s12, s12, s13")
e("s_add_u32 s32, s%d, s12\ns_addc_u32 s33, s%d, 0\ns_mov_b32 s34, 0x80000\ns_mov_b32 s35, 0x20000" % (sK, sK + 1))
e("s_add_u32 s36, s%d, s12\ns_addc_u32 s37, s%d, 0\ns_mov_b32 s38, 0x80000\ns_mov_b32 s39, 0x20000" % (sV, sV + 1))

issued = [0]
def issue_unit(n):
    slot = n % 8
    e("s_add_u32 m0, s10, %d" % (slot * 4096))
    if n < 32:
        e("s_add_u32 s14, s11, %d" % (n * 16384))
        half = n & 1
        for jj in range(4):
            e("buffer_load_dwordx4 v%d, s[32:35], s14 offen offset:%d %s lds" % (vKoff[half * 4 + jj], jj * 1024, kflags))
    else:
        u = n - 32
        e("s_mov_b32 s14, %d" % (u * 16384))
        for jj in range(4):
            e("buffer_load_dwordx4 v%d, s[36:39], s14 offen offset:%d %s lds" % (vVoff[jj], jj * 1024, vflags))
def issue_upto(n):
    while issued[0] < min(n, 64):
        issue_unit(issued[0]); issued[0] += 1

PACE = P["PACE"]
issue_upto(min(PACE, 8))
e("v_lshrrev_b32 v28, 3, v1")
e("v_lshrrev_b32 v29, 1, v28")
e("v_and_b32 v29, 3, v29")
e("v_lshlrev_b32 v29, 1, v29")
e("v_and_b32 v30, 7, v1")
e("v_xor_b32 v30, v30, v29")
e("v_lshlrev_b32 v30, 4, v30")
e("v_lshl_add_u32 v30, v28, 9, v30")
e("s_lshl_b32 s15, s3, 7")
e("v_add_u32 v%d, s15, v30" % vVoff[0])
for jj in range(1, 4):
    e("v_add_u32 v%d, %d, v%d" % (vVoff[jj], jj * 3072, vVoff[0]))
e("v_and_b32 v28, 15, v1")
e("v_lshrrev_b32 v29, 4, v1")
e("v_xor_b32 v30, v28, v29")
e("v_lshlrev_b32 v30, 4, v30")
e("v_lshl_add_u32 v30, v28, 9, v30")
e("v_add_u32 v%d, s10, v30" % vKrd[0])
for i in range(1, 8):
    e("v_xor_b32 v%d, %d, v%d" % (vKrd[i], i << 6, vKrd[0]))
e("v_and_b32 v30, 1, v29")
e("v_lshrrev_b32 v31, 3, v28")
e("v_lshl_or_b32 v31, v30, 1, v31")
e("v_lshrrev_b32 v%d, 2, v28" % vU)
e("v_lshl_add_u32 v%d, v30, 2, v%d" % (vU, vU))
e("v_lshlrev_b32 v%d, 7, v%d" % (vU, vU))
e("v_lshrrev_b32 v%d, 1, v29" % (vU + 1))
e("v_lshl_add_u32 v%d, v%d, 11, v%d" % (vU, vU + 1, vU))
e("v_and_b32 v%d, 3, v28" % (vU + 2))
e("v_lshl_add_u32 v%d, v%d, 3, v%d" % (vU, vU + 2, vU))
e("v_add_u32 v%d, s10, v%d" % (vU, vU))
for t in range(4):
    e("v_xor_b32 v%d, %d, v31" % (vU + 3, t))
    e("v_lshl_add_u32 v%d, v%d, 5, v%d" % (vVrd[t], vU + 3, vU))
e("v_and_b32 v30, 1, v28")
e("v_mul_u32_u24 v%d, %d, v30" % (vU + 4, HS))
e("v_lshl_add_u32 v%d, v29, 4, v%d" % (vPrd, vU + 4))
e("v_add_u32 v%d, %d, v%d" % (vPrd, PB, vPrd))
e("s_lshr_b32 s15, s3, 1\ns_lshl_b32 s15, s15, 5\ns_and_b32 s40, s3, 1\ns_lshl_b32 s40, s40, 3\ns_add_u32 s15, s15, s40\ns_add_u32 s15, s15, %d" % PB)
e("v_lshl_add_u32 v%d, v%d, 6, v%d" % (vPwr, vU + 1, vU + 4))
e("v_and_b32 v%d, 1, v29" % (vU + 5))
e("v_lshl_add_u32 v%d, v%d, 4, v%d" % (vPwr, vU + 5, vPwr))
e("v_add_u32 v%d, s15, v%d" % (vPwr, vPwr))
e("v_lshlrev_b32 v%d, 9, v30" % vT0)
e("v_lshl_add_u32 v%d, v29, 4, v%d" % (vT0, vT0))
e("v_add_u32 v%d, %d, v%d" % (vT0, QB, vT0))
e("v_lshlrev_b32 v%d, 6, v30" % vT1)
e("v_add_u32 v%d, %d, v%d" % (vT1, MAXX, vT1))
e("s_lshl_b32 s15, s3, 4")
e("v_lshl_add_u32 v%d, v29, 2, v%d" % (vT2, vT1))
e("v_add_u32 v%d, s15, v%d" % (vT2, vT2))
while issued[0] < 8:
    e("s_waitcnt vmcnt(%d)" % (4 * (PACE - 1)))
    issue_upto(issued[0] + 1)
stamp(1)
e("s_barrier")
stamp(2)
for i in range(8):
    e("ds_read_b128 v[%d:%d], v%d offset:%d" % (qB + 4 * i, qB + 4 * i + 3, vT0, i * 64))
e("v_mov_b32 v%d, %d" % (vT3, TAGL))
e("ds_read_b32 v%d, v%d" % (vT3, vT3))
e("s_waitcnt lgkmcnt(0)")
e("v_readfirstlane_b32 s9, v%d" % vT3)

LAK, LAV = P["LAK"], P["LAV"]
consumed = 0
for T in range(16):
    need = 2 * T + 2
    e("; K tile %d" % T)
    e("s_waitcnt vmcnt(%d)" % (4 * (issued[0] - need)))
    slot = (T % 4) * 8192
    for i in range(8):
        e("ds_read_b128 v[%d:%d], v%d offset:%d" % (Areg + 4 * i, Areg + 4 * i + 3, vKrd[i], slot))
    for i in range(8):
        e("s_waitcnt lgkmcnt(%d)" % (7 - i))
        c = "0" if i == 0 else "v[%d:%d]" % (Sreg + 4 * T, Sreg + 4 * T + 3)
        e("v_mfma_f32_16x16x32_bf16 v[%d:%d], v[%d:%d], v[%d:%d], %s" % (Sreg + 4 * T, Sreg + 4 * T + 3, Areg + 4 * i, Areg + 4 * i + 3, qB + 4 * i, qB + 4 * i + 3, c))
    consumed = need
    la = LAK if T < 12 else 8
    issue_upto(consumed + la)
stamp(3)
e("; softmax")
e("s_nop 7")
e("v_max3_f32 v%d, v%d, v%d, v%d" % (vM, Sreg, Sreg + 1, Sreg + 2))
i = 3
while i < 64:
    if i + 1 < 64:
        e("v_max3_f32 v%d, v%d, v%d, v%d" % (vM, vM, Sreg + i, Sreg + i + 1)); i += 2
    else:
        e("v_max_f32 v%d, v%d, v%d" % (vM, vM, Sreg + i)); i += 1
e("s_mov_b32 exec_lo, 0x00030003\ns_mov_b32 exec_hi, 0x00030003")
e("ds_write_b32 v%d, v%d" % (vT2, vM))
e("s_mov_b64 exec, -1")
e("s_waitcnt lgkmcnt(0)")
e("s_barrier")
for i in range(4):
    e("ds_read_b128 v[%d:%d], v%d offset:%d" % (vU + 4 * i, vU + 4 * i + 3, vT1, 16 * i))
e("s_waitcnt lgkmcnt(0)")
e("v_max3_f32 v%d, v%d, v%d, v%d" % (vM, vU, vU + 1, vU + 2))
for i in range(3, 15, 2):
    e("v_max3_f32 v%d, v%d, v%d, v%d" % (vM, vM, vU + i, vU + i + 1))
e("v_max_f32 v%d, v%d, v%d" % (vM, vM, vU + 15))
e("s_mov_b32 s15, 0x%08x" % CEXP)
e("v_mul_f32 v%d, s15, v%d" % (vMc, vM))
e("v_mov_b32 v%d, 0\nv_mov_b32 v%d, 0" % (vL, vL + 1))
for T in range(16):
    s0 = Sreg + 4 * T
    for r in range(4):
        e("v_fma_f32 v%d, v%d, s15, -v%d" % (s0 + r, s0 + r, vMc))
    for r in range(4):
        e("v_exp_f32 v%d, v%d" % (s0 + r, s0 + r))
    if T > 0:
        p0 = Sreg + 4 * (T - 1)
        e("v_add_f32 v%d, v%d, v%d\nv_add_f32 v%d, v%d, v%d" % (vL, vL, p0, vL + 1, vL + 1, p0 + 1))
        e("v_add_f32 v%d, v%d, v%d\nv_add_f32 v%d, v%d, v%d" % (vL, vL, p0 + 2, vL + 1, vL + 1, p0 + 3))
        e("v_cvt_pk_bf16_f32 v%d, v%d, v%d\nv_cvt_pk_bf16_f32 v%d, v%d, v%d" % (p0, p0, p0 + 1, p0 + 1, p0 + 2, p0 + 3))
p0 = Sreg + 60
e("s_nop 0")
e("v_add_f32 v%d, v%d, v%d\nv_add_f32 v%d, v%d, v%d" % (vL, vL, p0, vL + 1, vL + 1, p0 + 1))
e("v_add_f32 v%d, v%d, v%d\nv_add_f32 v%d, v%d, v%d" % (vL, vL, p0 + 2, vL + 1, vL + 1, p0 + 3))
e("v_cvt_pk_bf16_f32 v%d, v%d, v%d\nv_cvt_pk_bf16_f32 v%d, v%d, v%d" % (p0, p0, p0 + 1, p0 + 1, p0 + 2, p0 + 3))
e("v_add_f32 v%d, v%d, v%d" % (vL, vL, vL + 1))
e("s_mov_b32 exec_lo, 0x00030003\ns_mov_b32 exec_hi, 0x00030003")
for T in range(16):
    e("ds_write_b64 v%d, v[%d:%d] offset:%d" % (vPwr, Sreg + 4 * T, Sreg + 4 * T + 1, T * 128))
e("ds_write_b32 v%d, v%d offset:%d" % (vT2, vL, LSUM - MAXX))
e("s_mov_b64 exec, -1")
for t in range(16):
    e("v_mov_b32 v%d, 0" % (acc + t))
e("s_waitcnt lgkmcnt(0)")
e("s_barrier")
stamp(4)
for u in range(32):
    n = 32 + u
    e("; V unit %d" % u)
    e("s_waitcnt vmcnt(%d)" % (4 * (issued[0] - (n + 1))))
    slot = (n % 8) * 4096
    e("ds_read_b128 v[%d:%d], v%d offset:%d" % (Pa, Pa + 3, vPrd, u * 64))
    for t in range(4):
        e("ds_read_b64_tr_b16 v[%d:%d], v%d offset:%d" % (Vb + 4 * t, Vb + 4 * t + 1, vVrd[t], slot))
        e("ds_read_b64_tr_b16 v[%d:%d], v%d offset:%d" % (Vb + 4 * t + 2, Vb + 4 * t + 3, vVrd[t], slot + 1024))
    for t in range(4):
        e("s_waitcnt lgkmcnt(%d)" % (6 - 2 * t))
        e("v_mfma_f32_16x16x32_bf16 v[%d:%d], v[%d:%d], v[%d:%d], v[%d:%d]" % (acc + 4 * t, acc + 4 * t + 3, Pa, Pa + 3, Vb + 4 * t, Vb + 4 * t + 3, acc + 4 * t, acc + 4 * t + 3))
    issue_upto(n + 1 + LAV)
stamp(5)
e("s_lshl_b32 s12, s8, 2\ns_add_u32 s12, s12, s3\ns_lshl_b32 s12, s12, 2\ns_add_u32 s12, s12, s7\ns_lshl_b32 s12, s12, 10\ns_add_u32 s12, s12, %d" % WS_OP)
e("v_lshlrev_b32 v%d, 4, v1" % vT0)
e("v_add_u32 v%d, s12, v%d" % (vT0, vT0))
e("s_mov_b32 s40, 0xffff0000\ns_mov_b32 s41, 0")
e("s_mov_b32 s42, 0\ns_mov_b32 s43, 0x0000ffff")
e("s_mov_b32 s44, 0\ns_mov_b32 s45, 0xffff0000")
e("v_mov_b32 v%d, s9\nv_mov_b32 v%d, s9" % (vU + 1, vU + 3))
e("s_nop 3")
e("v_cndmask_b32 v%d, v%d, v%d, s[40:41]" % (vU, acc + 0, acc + 4))
e("v_cndmask_b32 v%d, v%d, v%d, s[40:41]" % (vU + 2, acc + 1, acc + 5))
e("v_cndmask_b32 v%d, v%d, v%d, s[42:43]" % (vU, vU, acc + 8))
e("v_cndmask_b32 v%d, v%d, v%d, s[42:43]" % (vU + 2, vU + 2, acc + 9))
e("v_cndmask_b32 v%d, v%d, v%d, s[44:45]" % (vU, vU, acc + 12))
e("v_cndmask_b32 v%d, v%d, v%d, s[44:45]" % (vU + 2, vU + 2, acc + 13))
e("global_store_dwordx4 v%d, v[%d:%d], s[%d:%d] sc1" % (vT0, vU, vU + 3, sWS, sWS + 1))
e("s_barrier")
stamp(6)
stamp_flush(7, "s")
e("s_endpgm")

e("L_helper:")
e("s_sub_u32 s3, s3, 4              ; hw")
e("v_and_b32 v2, 15, v1             ; n")
e("v_lshrrev_b32 v3, 4, v1          ; g")
e("s_waitcnt lgkmcnt(0)")
e("s_cmp_lg_u32 s3, 0")
e("s_cbranch_scc1 L_h_b1")
e("s_load_dword s9, s[%d:%d], %d" % (sWS, sWS + 1, WS_E))
e("s_mov_b32 s32, s%d\ns_mov_b32 s33, s%d\ns_mov_b32 s34, %d\ns_mov_b32 s35, 0x20000" % (sWQ, sWQ + 1, 448 * 8192))
e("s_mov_b32 s36, s%d\ns_mov_b32 s37, s%d\ns_mov_b32 s38, %d\ns_mov_b32 s39, 0x20000" % (sX, sX + 1, 8 * 896))
e("s_lshr_b32 s4, s2, 3\ns_lshl_b32 s10, s5, 5\ns_add_u32 s10, s10, s4")
e("v_lshrrev_b32 v4, 1, v1\nv_lshlrev_b32 v4, 13, v4\nv_and_b32 v5, 1, v1\nv_lshl_add_u32 v4, v5, 4, v4")
e("s_lshl_b32 s11, s10, 5\nv_add_u32 v4, s11, v4")
for ks in range(14):
    e("s_mov_b32 m0, %d" % (WQS + ks * 1024))
    e("s_mov_b32 s12, %d" % (ks * 262144))
    e("buffer_load_dwordx4 v4, s[32:35], s12 offen lds")
e("v_and_b32 v5, 7, v2\nv_mul_u32_u24 v5, 896, v5\nv_lshl_add_u32 v5, v3, 4, v5")
XB = 8
for ks in range(14):
    e("buffer_load_dwordx4 v[%d:%d], v5, s[36:39], 0 offen offset:%d" % (XB + 4 * ks, XB + 4 * ks + 3, ks * 64))
e("v_lshlrev_b32 v6, 8, v3\nv_lshl_add_u32 v6, v2, 3, v6\nv_add_u32 v6, %d, v6" % WQS)
e("s_waitcnt vmcnt(0) lgkmcnt(0)")
e("s_add_u32 s9, s9, 0x%08x        ; tag" % TAGC)
WA = 64
for ks in range(14):
    r = WA + 4 * (ks & 1)
    e("ds_read_b64_tr_b16 v[%d:%d], v6 offset:%d" % (r, r + 1, ks * 1024))
    e("ds_read_b64_tr_b16 v[%d:%d], v6 offset:%d" % (r + 2, r + 3, ks * 1024 + 128))
    if ks > 0:
        pr = WA + 4 * ((ks - 1) & 1)
        e("s_waitcnt lgkmcnt(2)")
        c = "0" if ks == 1 else "v[72:75]"
        e("v_mfma_f32_16x16x32_bf16 v[72:75], v[%d:%d], v[%d:%d], %s" % (pr, pr + 3, XB + 4 * (ks - 1), XB + 4 * (ks - 1) + 3, c))
e("s_waitcnt lgkmcnt(0)")
pr = WA + 4 * (13 & 1)
e("v_mfma_f32_16x16x32_bf16 v[72:75], v[%d:%d], v[%d:%d], v[72:75]" % (pr, pr + 3, XB + 52, XB + 55))
e("v_lshlrev_b32 v7, 14, v2\nv_lshl_add_u32 v7, v3, 4, v7")
e("s_lshl_b32 s11, s10, 6\ns_add_u32 s11, s11, %d\nv_add_u32 v7, s11, v7" % WS_Q)
e("v_mov_b32 v77, s9\nv_mov_b32 v79, s9")
e("s_nop 3")
e("v_cvt_pk_bf16_f32 v76, v72, v73\nv_cvt_pk_bf16_f32 v78, v74, v75")
e("s_mov_b32 exec_lo, 0x00ff00ff\ns_mov_b32 exec_hi, 0x00ff00ff")
e("global_store_dwordx4 v7, v[76:79], s[%d:%d] sc1" % (sWS, sWS + 1))
e("s_mov_b64 exec, -1")
stamp(1)
e("s_lshl_b32 s11, s6, 14\ns_lshl_b32 s12, s5, 11\ns_add_u32 s11, s11, s12\ns_add_u32 s11, s11, %d" % WS_Q)
e("v_lshlrev_b32 v7, 4, v1\nv_add_u32 v7, s11, v7")
e("s_mov_b32 s13, 0")
e("L_pollq:")
e("global_load_dwordx4 v[80:83], v7, s[%d:%d] sc1" % (sWS, sWS + 1))
e("global_load_dwordx4 v[84:87], v7, s[%d:%d] offset:1024 sc1" % (sWS, sWS + 1))
e("s_add_u32 s13, s13, 1")
e("s_waitcnt vmcnt(0)")
e("v_cmp_ne_u32 s[40:41], s9, v81\nv_cmp_ne_u32 s[42:43], s9, v83\nv_cmp_ne_u32 s[44:45], s9, v85\nv_cmp_ne_u32 vcc, s9, v87")
e("s_or_b64 s[40:41], s[40:41], s[42:43]\ns_or_b64 s[44:45], s[44:45], vcc\ns_or_b64 s[40:41], s[40:41], s[44:45]")
e("s_cmp_gt_u32 s13, %d\ns_cbranch_scc1 L_pollq_done" % P["spinmax"])
e("s_cmp_lg_u64 s[40:41], 0\ns_cbranch_scc1 L_pollq")
e("L_pollq_done:")
e("v_mov_b32 v81, v82\nv_mov_b32 v85, v86")
e("v_lshlrev_b32 v7, 3, v1\nv_add_u32 v7, %d, v7" % QB)
e("ds_write_b64 v7, v[80:81]\nds_write_b64 v7, v[84:85] offset:512")
e("v_mov_b32 v8, %d\nv_mov_b32 v9, s9\nds_write_b32 v8, v9" % TAGL)
e("s_waitcnt lgkmcnt(0)")
e("L_h_b1:")
stamp(2)
e("s_barrier            ; B1")
e("v_mov_b32 v8, %d" % TAGL)
e("ds_read_b32 v8, v8")
e("s_waitcnt lgkmcnt(0)")
e("v_readfirstlane_b32 s9, v8")
e("s_mov_b32 s32, s%d\ns_mov_b32 s33, s%d\ns_mov_b32 s34, %d\ns_mov_b32 s35, 0x20000" % (sWO, sWO + 1, 4096 * 896))
e("v_mul_u32_u24 v4, %d, v3" % (8 * 896))
e("v_lshl_add_u32 v4, v2, 4, v4")
e("s_mul_i32 s10, s3, 224\nv_add_u32 v4, s10, v4")
e("s_lshl_b32 s10, s5, 9\ns_lshl_b32 s11, s7, 6\ns_add_u32 s10, s10, s11\ns_mul_i32 s10, s10, 896")
e("s_mov_b32 s46, 0x05040100\ns_mov_b32 s47, 0x07060302")
RAW = 96; WOB = 128
for ks in range(4):
    rowoff = ((ks >> 1) * 256 + (ks & 1) * 32) * 896
    for j in range(8):
        e("s_add_u32 s12, s10, %d" % (rowoff + j * 896))
        e("buffer_load_dwordx4 v[%d:%d], v4, s[32:35], s12 offen" % (RAW + 4 * j, RAW + 4 * j + 3))
    e("s_waitcnt vmcnt(0)")
    for t in range(8):
        for p in range(4):
            sel = "s47" if (t & 1) else "s46"
            e("v_perm_b32 v%d, v%d, v%d, %s" % (WOB + (ks * 8 + t) * 4 + p, RAW + 4 * (2 * p + 1) + (t >> 1), RAW + 4 * (2 * p) + (t >> 1), sel))
stamp(3)
e("s_barrier            ; B2")
e("s_barrier            ; B3")
e("v_and_b32 v4, 1, v2\nv_lshlrev_b32 v4, 6, v4\nv_add_u32 v4, %d, v4" % MAXX)
for i in range(4):
    e("ds_read_b128 v[%d:%d], v4 offset:%d" % (8 + 4 * i, 8 + 4 * i + 3, 16 * i))
for i in range(4):
    e("ds_read_b128 v[%d:%d], v4 offset:%d" % (24 + 4 * i, 24 + 4 * i + 3, LSUM - MAXX + 16 * i))
e("s_waitcnt lgkmcnt(0)")
e("v_max3_f32 v40, v8, v9, v10")
for i in range(3, 15, 2):
    e("v_max3_f32 v40, v40, v%d, v%d" % (8 + i, 8 + i + 1))
e("v_max_f32 v40, v40, v23")
e("v_add_f32 v42, v24, v25")
for i in range(2, 16):
    e("v_add_f32 v42, v42, v%d" % (24 + i))
e("v_mov_b32 v41, s9\nv_mov_b32 v43, s9")
e("s_lshl_b32 s10, s8, 2\ns_add_u32 s10, s10, s7\ns_lshl_b32 s10, s10, 5\ns_add_u32 s10, s10, %d" % WS_ST)
e("v_lshlrev_b32 v5, 4, v1\nv_add_u32 v5, s10, v5")
e("s_cmp_lg_u32 s3, 0\ns_cbranch_scc1 L_nostatpub")
e("s_mov_b64 exec, 3")
e("global_store_dwordx4 v5, v[40:43], s[%d:%d] sc1" % (sWS, sWS + 1))
e("s_mov_b64 exec, -1")
e("L_nostatpub:")
e("s_cmp_lg_u32 s3, 0\ns_cbranch_scc1 L_h_b4")
e("s_lshl_b32 s10, s8, 7\ns_add_u32 s10, s10, %d" % WS_ST)
e("v_and_b32 v5, 1, v1\nv_lshlrev_b32 v5, 4, v5\nv_add_u32 v5, s10, v5")
e("s_mov_b32 s13, 0")
e("L_polls:")
for s_ in range(4):
    e("global_load_dwordx4 v[%d:%d], v5, s[%d:%d] offset:%d sc1" % (8 + 4 * s_, 8 + 4 * s_ + 3, sWS, sWS + 1, 32 * s_))
e("s_add_u32 s13, s13, 1")
e("s_waitcnt vmcnt(0)")
e("s_mov_b64 s[40:41], 0")
for s_ in range(4):
    e("v_cmp_ne_u32 s[42:43], s9, v%d\nv_cmp_ne_u32 vcc, s9, v%d" % (8 + 4 * s_ + 1, 8 + 4 * s_ + 3))
    e("s_or_b64 s[40:41], s[40:41], s[42:43]\ns_or_b64 s[40:41], s[40:41], vcc")
e("s_cmp_gt_u32 s13, %d\ns_cbranch_scc1 L_polls_done" % P["spinmax"])
e("s_cmp_eq_u64 s[40:41], 0\ns_cbranch_scc1 L_polls_done")
e("s_sleep 8\ns_branch L_polls")
e("L_polls_done:")
e("v_max3_f32 v24, v8, v12, v16\nv_max_f32 v24, v24, v20")
e("s_mov_b32 s15, 0x%08x" % CEXP)
for s_ in range(4):
    e("v_sub_f32 v%d, v%d, v24\nv_mul_f32 v%d, s15, v%d" % (26 + s_, 8 + 4 * s_, 26 + s_, 26 + s_))
for s_ in range(4):
    e("v_exp_f32 v%d, v%d" % (26 + s_, 26 + s_))
e("s_nop 0")
e("v_mul_f32 v30, v26, v10\nv_fmac_f32 v30, v27, v14\nv_fmac_f32 v30, v28, v18\nv_fmac_f32 v30, v29, v22")
e("v_rcp_f32 v31, v30")
e("s_nop 0")
e("v_fma_f32 v32, -v30, v31, 2.0\nv_mul_f32 v31, v31, v32")
for s_ in range(4):
    e("v_mul_f32 v%d, v%d, v31" % (26 + s_, 26 + s_))
e("s_nop 1")
for s_ in range(4):
    e("v_mov_b32_dpp v%d, v%d quad_perm:[0,0,0,0] row_mask:0xf bank_mask:0xf" % (48 + s_, 26 + s_))
    e("v_mov_b32_dpp v%d, v%d quad_perm:[1,1,1,1] row_mask:0xf bank_mask:0xf" % (52 + s_, 26 + s_))
e("L_h_b4:")
stamp(4)
e("s_lshl_b32 s10, s8, 2\ns_add_u32 s10, s10, s7\ns_lshl_b32 s10, s10, 12\ns_add_u32 s10, s10, %d" % WS_OP)
e("v_lshlrev_b32 v5, 4, v1\nv_add_u32 v5, s10, v5")
e("v_lshlrev_b32 v6, 1, v1\nv_add_u32 v6, %d, v6" % OST)
e("v_lshlrev_b32 v7, 4, v3\nv_add_u32 v7, %d, v7" % OST)
e("s_lshl_b32 s11, s5, 2\ns_add_u32 s11, s11, s7")
e("s_mul_i32 s12, s6, 28\ns_mul_i32 s13, s3, 7\ns_add_u32 s12, s12, s13\ns_lshl_b32 s12, s12, 5\ns_add_u32 s12, s12, s11\ns_lshl_b32 s12, s12, 7\ns_add_u32 s12, s12, %d" % WS_OUT)
e("v_lshrrev_b32 v44, 1, v2\nv_lshlrev_b32 v44, 12, v44")
e("v_and_b32 v45, 1, v2\nv_lshl_add_u32 v45, v45, 2, v3\nv_lshl_add_u32 v44, v45, 4, v44\nv_add_u32 v44, s12, v44")
e("s_mul_i32 s12, s6, 28\ns_add_u32 s12, s12, s11\ns_lshl_b32 s12, s12, 12\ns_add_u32 s12, s12, %d" % WS_OUT)
e("v_lshlrev_b32 v46, 4, v1\nv_add_u32 v46, s12, v46")
e("s_mov_b32 s48, 0xffff0000\ns_mov_b32 s49, 0")
e("s_mov_b32 s50, 0\ns_mov_b32 s51, 0x0000ffff")
e("s_mov_b32 s52, 0\ns_mov_b32 s53, 0xffff0000")
e("s_barrier            ; B4")
stamp(5)
e("s_cmp_lg_u32 s3, 0\ns_cbranch_scc1 L_h_b5")
e("s_mov_b32 s13, 0")
e("L_polla:")
for s_ in range(4):
    e("global_load_dwordx4 v[%d:%d], v5, s[%d:%d] offset:%d sc1" % (8 + 4 * s_, 8 + 4 * s_ + 3, sWS, sWS + 1, 1024 * s_))
e("s_add_u32 s13, s13, 1")
e("s_waitcnt vmcnt(0)")
e("s_mov_b64 s[40:41], 0")
for s_ in range(4):
    e("v_cmp_ne_u32 s[42:43], s9, v%d\nv_cmp_ne_u32 vcc, s9, v%d" % (8 + 4 * s_ + 1, 8 + 4 * s_ + 3))
    e("s_or_b64 s[40:41], s[40:41], s[42:43]\ns_or_b64 s[40:41], s[40:41], vcc")
e("s_cmp_gt_u32 s13, %d\ns_cbranch_scc1 L_polla_done" % P["spinmax"])
e("s_cmp_lg_u64 s[40:41], 0\ns_cbranch_scc1 L_polla")
e("L_polla_done:")
e("v_mul_f32 v24, v48, v8\nv_mul_f32 v25, v52, v10")
for s_ in range(1, 4):
    e("v_fmac_f32 v24, v%d, v%d\nv_fmac_f32 v25, v%d, v%d" % (48 + s_, 8 + 4 * s_, 52 + s_, 10 + 4 * s_))
e("v_cvt_pk_bf16_f32 v24, v24, v25")
e("ds_write_b16 v6, v24\nds_write_b16_d16_hi v6, v24 offset:128")
e("s_waitcnt lgkmcnt(0)")
e("L_h_b5:")
stamp(6)
e("s_barrier")
for ks in range(4):
    e("ds_read_b128 v[%d:%d], v7 offset:%d" % (8 + 4 * ks, 8 + 4 * ks + 3, ks * 64))
OA = 56
for ks in range(4):
    e("s_waitcnt lgkmcnt(%d)" % (3 - ks))
    for t in range(8):
        c = "0" if ks == 0 else "v[%d:%d]" % (OA + 4 * t, OA + 4 * t + 3)
        e("v_mfma_f32_16x16x32_bf16 v[%d:%d], v[%d:%d], v[%d:%d], %s" % (OA + 4 * t, OA + 4 * t + 3, 8 + 4 * ks, 8 + 4 * ks + 3, WOB + (ks * 8 + t) * 4, WOB + (ks * 8 + t) * 4 + 3, c))
e("v_mov_b32 v25, s9\nv_mov_b32 v27, s9")
e("s_nop 7")
e("v_cndmask_b32 v24, v%d, v%d, s[48:49]\nv_cndmask_b32 v26, v%d, v%d, s[48:49]" % (OA, OA + 8, OA + 4, OA + 12))
e("v_cndmask_b32 v24, v24, v%d, s[50:51]\nv_cndmask_b32 v26, v26, v%d, s[50:51]" % (OA + 16, OA + 20))
e("v_cndmask_b32 v24, v24, v%d, s[52:53]\nv_cndmask_b32 v26, v26, v%d, s[52:53]" % (OA + 24, OA + 28))
e("s_mov_b32 exec_lo, 0x3fff3fff\ns_mov_b32 exec_hi, 0x3fff3fff")
e("global_store_dwordx4 v44, v[24:27], s[%d:%d] sc1" % (sWS, sWS + 1))
e("s_mov_b64 exec, -1")
stamp(7)
e("s_cmp_lg_u32 s3, 0\ns_cbranch_scc1 L_h_done")
e("s_cmp_ge_u32 s11, 28\ns_cbranch_scc1 L_h_done")
e("s_mov_b32 s13, 0")
e("L_pollo:")
for i in range(4):
    e("global_load_dwordx4 v[%d:%d], v46, s[%d:%d] offset:%d sc1" % (8 + 4 * i, 8 + 4 * i + 3, sWS, sWS + 1, 1024 * i))
e("s_add_u32 s13, s13, 1")
e("s_waitcnt vmcnt(0)")
e("s_mov_b64 s[40:41], 0")
for i in range(4):
    e("v_cmp_ne_u32 s[42:43], s9, v%d\nv_cmp_ne_u32 vcc, s9, v%d" % (8 + 4 * i + 1, 8 + 4 * i + 3))
    e("s_or_b64 s[40:41], s[40:41], s[42:43]\ns_or_b64 s[40:41], s[40:41], vcc")
e("s_cmp_gt_u32 s13, %d\ns_cbranch_scc1 L_pollo_done" % P["spinmax"])
e("s_cmp_lg_u64 s[40:41], 0\ns_cbranch_scc1 L_pollo")
e("L_pollo_done:")
e("v_add_f32 v24, v8, v12\nv_add_f32 v25, v10, v14\nv_add_f32 v26, v16, v20\nv_add_f32 v27, v18, v22")
e("v_add_f32 v24, v24, v26\nv_add_f32 v25, v25, v27")
e("s_nop 1")
e("v_add_f32_dpp v24, v24, v24 row_ror:8 row_mask:0xf bank_mask:0xf\nv_add_f32_dpp v25, v25, v25 row_ror:8 row_mask:0xf bank_mask:0xf")
e("v_mov_b32 v26, v24\nv_mov_b32 v27, v25\ns_nop 1")
e("v_permlane16_swap_b32 v24, v26\nv_permlane16_swap_b32 v25, v27")
e("v_add_f32 v24, v24, v26\nv_add_f32 v25, v25, v27")
e("v_mov_b32 v26, v24\nv_mov_b32 v27, v25\ns_nop 1")
e("v_permlane32_swap_b32 v24, v26\nv_permlane32_swap_b32 v25, v27")
e("v_add_f32 v24, v24, v26\nv_add_f32 v25, v25, v27")
e("v_cvt_pk_bf16_f32 v24, v24, v25")
e("s_mul_i32 s12, s6, 896\ns_lshl_b32 s13, s11, 5\ns_add_u32 s12, s12, s13")
e("v_lshlrev_b32 v26, 2, v1\nv_add_u32 v26, s12, v26")
e("s_mov_b64 exec, 0xff")
e("global_store_dword v26, v24, s[%d:%d]" % (sOUT, sOUT + 1))
e("s_cmp_lg_u32 s2, 0\ns_cbranch_scc1 L_h_done")
e("s_mov_b64 exec, 1")
e("v_mov_b32 v26, %d\nv_mov_b32 v27, s9" % WS_E)
e("global_store_dword v26, v27, s[%d:%d] sc1" % (sWS, sWS + 1))
e("L_h_done:")
stamp(8)
e("s_add_u32 s3, s3, 4")
stamp_flush(9, "h")
e("L_end:")
e("s_endpgm")

e('.section .rodata,"a"\n.p2align 6\n.amdhsa_kernel %s' % KN)
e("  .amdhsa_next_free_vgpr 256\n  .amdhsa_next_free_sgpr 96\n  .amdhsa_accum_offset 256")
e("  .amdhsa_group_segment_fixed_size 0\n  .amdhsa_kernarg_size 64\n  .amdhsa_user_sgpr_count 2\n  .amdhsa_user_sgpr_kernarg_segment_ptr 1\n  .amdhsa_system_sgpr_workgroup_id_x 1")
e("  .amdhsa_float_denorm_mode_32 3")
e(".end_amdhsa_kernel")
open(out, "w").write("\n".join(L) + "\n")
```

```python
import sys

out = sys.argv[1]
P = dict(stamps=0, LAK=2, LAV=2, G=2, DI=8, DT=12, PB2=2, PEVERY=4, worr=8, crot=0, HOLD=4, wqflags="nt", woflags="nt", prio=1, woprio=0, wopre=2, kflags="nt", vflags="nt", spinmax=200000, dbgq=0)
for a in sys.argv[2:]:
    k, v = a.split("=")
    P[k] = int(v) if v.lstrip("-").isdigit() else v
kflags = P["kflags"].replace("+", " ").replace("none", "")
vflags = P["vflags"].replace("+", " ").replace("none", "")
STAMPS = P["stamps"]

L = []
def e(s=""):
    for line in s.split("\n"):
        L.append(line)

KN = "standalone__gqa_block_cached__decode_kernel"

RING = 0
WQS = 131072
PB = 131072
HS = 2112
QB = 145408
MAXX = 146432
LSUM = 146560
TAGL = 146688
OST = 146752
LDS_TOTAL = 147008

WS_E = 0x0
WS_Q = 0x1000
WS_ST = 0x30000
WS_OP = 0x40000
WS_OUT = 0x140000
WS_STAMP = 400 * 1024 * 1024
TAGC = 0x9E3779B9
CEXP = 0x3DB8AA3B

import struct
cexp = struct.unpack("<I", struct.pack("<f", 1.4426950408889634 / 16.0))[0]
CEXP = cexp

e("; @launch grid=(256,1,1) block=(512,1,1) lds=%d" % LDS_TOTAL)
e('.amdgcn_target "amdgcn-amd-amdhsa--gfx950"')
e(".text")
e(".globl %s\n.p2align 8\n.type %s,@function\n%s:" % (KN, KN, KN))

sX, sK, sV, sWQ, sWO, sOUT, sDBG, sWS = 16, 18, 20, 22, 24, 26, 28, 30
stampregs = list(range(64, 84, 2))
QDBG = [False]
def stamp(i):
    if STAMPS and not (QDBG[0] and i >= 3):
        e("s_memrealtime s[%d:%d]" % (stampregs[i], stampregs[i] + 1))
        e("s_waitcnt lgkmcnt(0)")
def stamp_flush(n, label):
    if not STAMPS:
        return
    e("s_getreg_b32 s84, hwreg(HW_REG_XCC_ID)")
    e("s_lshl_b32 s85, s2, 3\ns_add_u32 s85, s85, s3\ns_lshl_b32 s85, s85, 7")
    e("s_add_u32 s85, s85, %d" % WS_STAMP)
    e("s_add_u32 s86, s%d, s85\ns_addc_u32 s87, s%d, 0" % (sWS, sWS + 1))
    e("s_mov_b64 exec, 1\nv_mov_b32 v1, 0")
    for i in range(10):
        if i < n:
            e("v_mov_b32 v2, s%d\nv_mov_b32 v3, s%d" % (stampregs[i], stampregs[i] + 1))
        else:
            e("v_mov_b32 v2, s%d\nv_mov_b32 v3, s%d" % (stampregs[n - 1], stampregs[n - 1] + 1))
        e("global_store_dwordx2 v1, v[2:3], s[86:87] offset:%d" % (i * 8))
        e("s_nop 1")
    e("v_mov_b32 v2, s84\nv_mov_b32 v3, 0")
    e("global_store_dwordx2 v1, v[2:3], s[86:87] offset:%d" % (10 * 8))
    e("s_waitcnt vmcnt(0)")

e("s_cmp_ge_u32 s2, 256")
e("s_cbranch_scc1 L_end")
if STAMPS:
    e("s_memrealtime s[64:65]")
e("s_load_dwordx16 s[16:31], s[0:1], 0")
e("v_lshrrev_b32 v1, 6, v0")
e("s_and_b32 s5, s2, 7")
e("v_readfirstlane_b32 s3, v1")
e("s_lshr_b32 s4, s2, 3")
e("s_and_b32 s6, s4, 7")
e("s_lshr_b32 s7, s4, 3")
e("s_lshl_b32 s8, s6, 3")
e("s_add_u32 s8, s8, s5")
e("v_and_b32 v1, 63, v0")
e("s_cmp_ge_u32 s3, 4")
e("s_cbranch_scc1 L_helper")

vKoff = list(range(2, 10))
vKrd = list(range(10, 18))
vVoff = list(range(18, 22))
vVrd = list(range(22, 26))
vPrd, vPwr = 26, 27
vT0, vT1, vT2, vT3 = 28, 29, 30, 31
HOLD = 128
qB = 32
Sreg = 64
Areg = 128
Pa = 128
Vb = 132
acc = 148
vM = 164; vMc = 165; vL = 166; vU = 168

e("s_lshl_b32 s10, s3, 15")
e("s_lshl_b32 s11, s3, 12")
e("v_lshrrev_b32 v64, 5, v1")
e("v_and_b32 v65, 31, v1")
e("v_xor_b32 v65, v65, v64")
e("v_lshlrev_b32 v65, 4, v65")
e("v_lshl_add_u32 v%d, v64, 9, v65" % vKoff[0])
for n in range(1, 8):
    e("v_xor_b32 v%d, %d, v%d" % (vKoff[n], n << 5, vKoff[0]))
e("s_waitcnt lgkmcnt(0)")
e("s_lshl_b32 s12, s8, 21")
e("s_lshl_b32 s13, s7, 19")
e("s_add_u32 s12, s12, s13")
e("s_add_u32 s32, s%d, s12\ns_addc_u32 s33, s%d, 0\ns_mov_b32 s34, 0x80000\ns_mov_b32 s35, 0x20000" % (sK, sK + 1))
e("s_add_u32 s36, s%d, s12\ns_addc_u32 s37, s%d, 0\ns_mov_b32 s38, 0x80000\ns_mov_b32 s39, 0x20000" % (sV, sV + 1))

G = P["G"]; DI = P["DI"]
class St: pass
st = St(); st.issued = 0; st.landed = 0; st.freed = 0
def wait_out(x):
    if st.issued - st.landed > x:
        e("s_waitcnt vmcnt(%d)" % x)
        st.landed = st.issued - x
def issue_group(di=None):
    di = DI if di is None else di
    n, jj0 = st.issued // 4, st.issued % 4
    assert n < st.freed + 8 and n < 64
    wait_out(di - G)
    if jj0 == 0:
        e("s_add_u32 m0, s10, %d" % ((n % 8) * 4096))
        if n < 32:
            e("s_add_u32 s14, s11, %d" % (n * 16384))
        else:
            e("s_mov_b32 s14, %d" % ((n - 32) * 16384))
    for jj in range(jj0, jj0 + G):
        if n < 32:
            e("buffer_load_dwordx4 v%d, s[32:35], s14 offen offset:%d %s lds" % (vKoff[(n & 1) * 4 + jj], jj * 1024, kflags))
        else:
            e("buffer_load_dwordx4 v%d, s[36:39], s14 offen offset:%d %s lds" % (vVoff[jj], jj * 1024, vflags))
    st.issued += G
def pump_until(nunits, di=None):
    nunits = min(nunits, 64, st.freed + 8)
    while st.issued < 4 * nunits:
        issue_group(di)
def pump_groups(k, di=None):
    for _ in range(k):
        if st.issued // 4 < min(64, st.freed + 8):
            issue_group(di)
def need(nunits):
    wait_out(st.issued - 4 * nunits)

pump_groups(DI // G)
e("v_lshrrev_b32 v64, 3, v1")
e("v_lshrrev_b32 v65, 1, v64")
e("v_and_b32 v65, 3, v65")
e("v_lshlrev_b32 v65, 1, v65")
e("v_and_b32 v66, 7, v1")
e("v_xor_b32 v66, v66, v65")
e("v_lshlrev_b32 v66, 4, v66")
e("v_lshl_add_u32 v66, v64, 9, v66")
e("s_lshl_b32 s15, s3, 7")
e("v_add_u32 v%d, s15, v66" % vVoff[0])
for jj in range(1, 4):
    e("v_add_u32 v%d, %d, v%d" % (vVoff[jj], jj * 3072, vVoff[0]))
e("v_and_b32 v64, 15, v1")
e("v_lshrrev_b32 v65, 4, v1")
e("v_xor_b32 v66, v64, v65")
e("v_lshlrev_b32 v66, 4, v66")
e("v_lshl_add_u32 v66, v64, 9, v66")
e("v_add_u32 v%d, s10, v66" % vKrd[0])
for i in range(1, 8):
    e("v_xor_b32 v%d, %d, v%d" % (vKrd[i], i << 6, vKrd[0]))
e("v_and_b32 v66, 1, v65")
e("v_lshrrev_b32 v67, 3, v64")
e("v_lshl_or_b32 v67, v66, 1, v67")
e("v_lshrrev_b32 v%d, 2, v64" % 68)
e("v_lshl_add_u32 v%d, v66, 2, v%d" % (68, 68))
e("v_lshlrev_b32 v%d, 7, v%d" % (68, 68))
e("v_lshrrev_b32 v%d, 1, v65" % (69))
e("v_lshl_add_u32 v%d, v%d, 11, v%d" % (68, 69, 68))
e("v_and_b32 v%d, 3, v64" % (70))
e("v_lshl_add_u32 v%d, v%d, 3, v%d" % (68, 70, 68))
e("v_add_u32 v%d, s10, v%d" % (68, 68))
for t in range(4):
    e("v_xor_b32 v%d, %d, v67" % (71, t))
    e("v_lshl_add_u32 v%d, v%d, 5, v%d" % (vVrd[t], 71, 68))
e("v_and_b32 v66, 1, v64")
e("v_mul_u32_u24 v%d, %d, v66" % (72, HS))
e("v_lshl_add_u32 v%d, v65, 4, v%d" % (vPrd, 72))
e("v_add_u32 v%d, %d, v%d" % (vPrd, PB, vPrd))
e("s_lshr_b32 s15, s3, 1\ns_lshl_b32 s15, s15, 5\ns_and_b32 s40, s3, 1\ns_lshl_b32 s40, s40, 3\ns_add_u32 s15, s15, s40\ns_add_u32 s15, s15, %d" % PB)
e("v_lshl_add_u32 v%d, v%d, 6, v%d" % (vPwr, 69, 72))
e("v_and_b32 v%d, 1, v65" % (73))
e("v_lshl_add_u32 v%d, v%d, 4, v%d" % (vPwr, 73, vPwr))
e("v_add_u32 v%d, s15, v%d" % (vPwr, vPwr))
e("v_lshlrev_b32 v%d, 9, v66" % vT0)
e("v_lshl_add_u32 v%d, v65, 4, v%d" % (vT0, vT0))
e("v_add_u32 v%d, %d, v%d" % (vT0, QB, vT0))
e("v_lshlrev_b32 v%d, 6, v66" % vT1)
e("v_add_u32 v%d, %d, v%d" % (vT1, MAXX, vT1))
e("s_lshl_b32 s15, s3, 4")
e("v_lshl_add_u32 v%d, v65, 2, v%d" % (vT2, vT1))
e("v_add_u32 v%d, s15, v%d" % (vT2, vT2))
HOLDN = P["HOLD"]
pump_until(8)
B0AT = P.get("B0AT", -1)
if B0AT == 0:
    e("s_barrier")
for T in range(HOLDN):
    need(2 * T + 2)
    for i in range(8):
        r = HOLD + 32 * T + 4 * i
        e("ds_read_b128 v[%d:%d], v%d offset:%d" % (r, r + 3, vKrd[i], (T % 4) * 8192))
    e("s_waitcnt lgkmcnt(0)")
    st.freed = 2 * T + 2
    pump_until(st.freed + 8)
    if B0AT == T + 1:
        e("s_barrier")
stamp(1)
e("s_barrier")
stamp(2)
for i in range(8):
    e("ds_read_b128 v[%d:%d], v%d offset:%d" % (qB + 4 * i, qB + 4 * i + 3, vT0, i * 64))
e("v_mov_b32 v%d, %d" % (vT3, TAGL))
e("ds_read_b32 v%d, v%d" % (vT3, vT3))
e("s_waitcnt lgkmcnt(0)")
e("v_readfirstlane_b32 s9, v%d" % vT3)

LAK, LAV = P["LAK"], P["LAV"]
def ktile(T, from_regs):
    e("; K tile %d" % T)
    if from_regs:
        for i in range(8):
            r = HOLD + 32 * T + 4 * i
            c = "0" if i == 0 else "v[%d:%d]" % (Sreg + 4 * T, Sreg + 4 * T + 3)
            e("v_mfma_f32_16x16x32_bf16 v[%d:%d], v[%d:%d], v[%d:%d], %s" % (Sreg + 4 * T, Sreg + 4 * T + 3, r, r + 3, qB + 4 * i, qB + 4 * i + 3, c))
        return
    nd = 2 * T + 2
    pump_until(nd + LAK)
    need(nd)
    slot = (T % 4) * 8192
    for i in range(8):
        e("ds_read_b128 v[%d:%d], v%d offset:%d" % (AregK + 4 * i, AregK + 4 * i + 3, vKrd[i], slot))
    for i in range(8):
        e("s_waitcnt lgkmcnt(%d)" % (7 - i))
        c = "0" if i == 0 else "v[%d:%d]" % (Sreg + 4 * T, Sreg + 4 * T + 3)
        e("v_mfma_f32_16x16x32_bf16 v[%d:%d], v[%d:%d], v[%d:%d], %s" % (Sreg + 4 * T, Sreg + 4 * T + 3, AregK + 4 * i, AregK + 4 * i + 3, qB + 4 * i, qB + 4 * i + 3, c))
    st.freed = nd
    if T == HOLDN:
        pump_groups(DI // G)
order = []
if HOLDN == 4:
    order = [(0, True)] + [(T, False) for T in range(4, 8)] + [(1, True), (2, True), (3, True)] + [(T, False) for T in range(8, 16)]
    AregK = HOLD
else:
    order = [(T, False) for T in range(HOLDN, HOLDN + 4)] + [(T, True) for T in range(HOLDN)] + [(T, False) for T in range(HOLDN + 4, 16)]
    AregK = HOLD + 32 * HOLDN
for (T, fr) in order:
    ktile(T, fr)
stamp(3)
e("; softmax")
DT = P["DT"]
pump_groups(1, DT)
e("s_nop 7")
e("v_max3_f32 v%d, v%d, v%d, v%d" % (vM, Sreg, Sreg + 1, Sreg + 2))
i = 3
while i < 64:
    if i + 1 < 64:
        e("v_max3_f32 v%d, v%d, v%d, v%d" % (vM, vM, Sreg + i, Sreg + i + 1)); i += 2
    else:
        e("v_max_f32 v%d, v%d, v%d" % (vM, vM, Sreg + i)); i += 1
e("s_mov_b32 exec_lo, 0x00030003\ns_mov_b32 exec_hi, 0x00030003")
e("ds_write_b32 v%d, v%d" % (vT2, vM))
e("s_mov_b64 exec, -1")
pump_groups(P["PB2"], DT)
e("s_waitcnt lgkmcnt(0)")
e("s_barrier")
for i in range(4):
    e("ds_read_b128 v[%d:%d], v%d offset:%d" % (vU + 4 * i, vU + 4 * i + 3, vT1, 16 * i))
e("s_waitcnt lgkmcnt(0)")
e("v_max3_f32 v%d, v%d, v%d, v%d" % (vM, vU, vU + 1, vU + 2))
for i in range(3, 15, 2):
    e("v_max3_f32 v%d, v%d, v%d, v%d" % (vM, vM, vU + i, vU + i + 1))
e("v_max_f32 v%d, v%d, v%d" % (vM, vM, vU + 15))
e("s_mov_b32 s15, 0x%08x" % CEXP)
e("v_mul_f32 v%d, s15, v%d" % (vMc, vM))
e("v_mov_b32 v%d, 0\nv_mov_b32 v%d, 0" % (vL, vL + 1))
for T in range(16):
    s0 = Sreg + 4 * T
    for r in range(4):
        e("v_fma_f32 v%d, v%d, s15, -v%d" % (s0 + r, s0 + r, vMc))
    for r in range(4):
        e("v_exp_f32 v%d, v%d" % (s0 + r, s0 + r))
    if T % P["PEVERY"] == P["PEVERY"] - 1:
        pump_groups(1, DT)
    if T > 0:
        p0 = Sreg + 4 * (T - 1)
        e("v_add_f32 v%d, v%d, v%d\nv_add_f32 v%d, v%d, v%d" % (vL, vL, p0, vL + 1, vL + 1, p0 + 1))
        e("v_add_f32 v%d, v%d, v%d\nv_add_f32 v%d, v%d, v%d" % (vL, vL, p0 + 2, vL + 1, vL + 1, p0 + 3))
        e("v_cvt_pk_bf16_f32 v%d, v%d, v%d\nv_cvt_pk_bf16_f32 v%d, v%d, v%d" % (p0, p0, p0 + 1, p0 + 1, p0 + 2, p0 + 3))
p0 = Sreg + 60
e("s_nop 0")
e("v_add_f32 v%d, v%d, v%d\nv_add_f32 v%d, v%d, v%d" % (vL, vL, p0, vL + 1, vL + 1, p0 + 1))
e("v_add_f32 v%d, v%d, v%d\nv_add_f32 v%d, v%d, v%d" % (vL, vL, p0 + 2, vL + 1, vL + 1, p0 + 3))
e("v_cvt_pk_bf16_f32 v%d, v%d, v%d\nv_cvt_pk_bf16_f32 v%d, v%d, v%d" % (p0, p0, p0 + 1, p0 + 1, p0 + 2, p0 + 3))
e("v_add_f32 v%d, v%d, v%d" % (vL, vL, vL + 1))
e("s_mov_b32 exec_lo, 0x00030003\ns_mov_b32 exec_hi, 0x00030003")
for T in range(16):
    e("ds_write_b64 v%d, v[%d:%d] offset:%d" % (vPwr, Sreg + 4 * T, Sreg + 4 * T + 1, T * 128))
e("ds_write_b32 v%d, v%d offset:%d" % (vT2, vL, LSUM - MAXX))
e("s_mov_b64 exec, -1")
for t in range(16):
    e("v_mov_b32 v%d, 0" % (acc + t))
pump_groups(P["PB2"], DT)
e("s_waitcnt lgkmcnt(0)")
e("s_barrier")
stamp(4)
for u in range(32):
    n = 32 + u
    e("; V unit %d" % u)
    pump_until(n + 1 + LAV)
    need(n + 1)
    slot = (n % 8) * 4096
    e("ds_read_b128 v[%d:%d], v%d offset:%d" % (Pa, Pa + 3, vPrd, u * 64))
    for t in range(4):
        e("ds_read_b64_tr_b16 v[%d:%d], v%d offset:%d" % (Vb + 4 * t, Vb + 4 * t + 1, vVrd[t], slot))
        e("ds_read_b64_tr_b16 v[%d:%d], v%d offset:%d" % (Vb + 4 * t + 2, Vb + 4 * t + 3, vVrd[t], slot + 1024))
    for t in range(4):
        e("s_waitcnt lgkmcnt(%d)" % (6 - 2 * t))
        e("v_mfma_f32_16x16x32_bf16 v[%d:%d], v[%d:%d], v[%d:%d], v[%d:%d]" % (acc + 4 * t, acc + 4 * t + 3, Pa, Pa + 3, Vb + 4 * t, Vb + 4 * t + 3, acc + 4 * t, acc + 4 * t + 3))
    st.freed = n + 1
stamp(5)
e("s_lshl_b32 s12, s8, 2\ns_add_u32 s12, s12, s3\ns_lshl_b32 s12, s12, 2\ns_add_u32 s12, s12, s7\ns_lshl_b32 s12, s12, 10\ns_add_u32 s12, s12, %d" % WS_OP)
e("v_lshlrev_b32 v%d, 4, v1" % vT0)
e("v_add_u32 v%d, s12, v%d" % (vT0, vT0))
e("s_mov_b32 s40, 0xffff0000\ns_mov_b32 s41, 0")
e("s_mov_b32 s42, 0\ns_mov_b32 s43, 0x0000ffff")
e("s_mov_b32 s44, 0\ns_mov_b32 s45, 0xffff0000")
e("v_mov_b32 v%d, s9\nv_mov_b32 v%d, s9" % (vU + 1, vU + 3))
e("s_nop 3")
e("v_cndmask_b32 v%d, v%d, v%d, s[40:41]" % (vU, acc + 0, acc + 4))
e("v_cndmask_b32 v%d, v%d, v%d, s[40:41]" % (vU + 2, acc + 1, acc + 5))
e("v_cndmask_b32 v%d, v%d, v%d, s[42:43]" % (vU, vU, acc + 8))
e("v_cndmask_b32 v%d, v%d, v%d, s[42:43]" % (vU + 2, vU + 2, acc + 9))
e("v_cndmask_b32 v%d, v%d, v%d, s[44:45]" % (vU, vU, acc + 12))
e("v_cndmask_b32 v%d, v%d, v%d, s[44:45]" % (vU + 2, vU + 2, acc + 13))
e("global_store_dwordx4 v%d, v[%d:%d], s[%d:%d] sc1" % (vT0, vU, vU + 3, sWS, sWS + 1))
e("s_barrier")
stamp(6)
stamp_flush(7, "s")
e("s_endpgm")

QDBG[0] = bool(P.get("qdbg", 0))
e("L_helper:")
if P.get("qdbg", 0):
    for i in range(1, 10):
        e("s_mov_b32 s%d, 0\ns_mov_b32 s%d, 0" % (stampregs[i], stampregs[i] + 1))
e("s_sub_u32 s3, s3, 4              ; hw")
e("v_and_b32 v2, 15, v1             ; n")
e("v_lshrrev_b32 v3, 4, v1          ; g")
e("s_waitcnt lgkmcnt(0)")
e("s_cmp_lg_u32 s3, 0")
if P.get("B0AT", -1) >= 0:
    e("s_cbranch_scc0 L_w4\ns_barrier            ; B0\ns_branch L_h_b1\nL_w4:")
else:
    e("s_cbranch_scc1 L_h_b1")
if P["prio"]:
    e("s_setprio 3")
e("s_load_dword s9, s[%d:%d], %d" % (sWS, sWS + 1, WS_E))
e("s_mov_b32 s32, s%d\ns_mov_b32 s33, s%d\ns_mov_b32 s34, %d\ns_mov_b32 s35, 0x20000" % (sWQ, sWQ + 1, 448 * 8192))
e("s_mov_b32 s36, s%d\ns_mov_b32 s37, s%d\ns_mov_b32 s38, %d\ns_mov_b32 s39, 0x20000" % (sX, sX + 1, 8 * 896))
e("s_lshr_b32 s4, s2, 3\ns_add_u32 s4, s4, %d\ns_and_b32 s4, s4, 31\ns_lshl_b32 s10, s5, 5\ns_add_u32 s10, s10, s4" % P["crot"])
e("v_lshrrev_b32 v4, 1, v1\nv_lshlrev_b32 v4, 13, v4\nv_and_b32 v5, 1, v1\nv_lshl_add_u32 v4, v5, 4, v4")
e("s_lshl_b32 s11, s10, 5\nv_add_u32 v4, s11, v4")
for ks in range(14):
    e("s_mov_b32 m0, %d" % (WQS + ks * 1024))
    e("s_mov_b32 s12, %d" % (ks * 262144))
    e("buffer_load_dwordx4 v4, s[32:35], s12 offen %s lds" % P["wqflags"].replace("+", " ").replace("none", ""))
e("v_and_b32 v5, 7, v2\nv_mul_u32_u24 v5, 896, v5\nv_lshl_add_u32 v5, v3, 4, v5")
XB = 8
for ks in range(14):
    e("buffer_load_dwordx4 v[%d:%d], v5, s[36:39], 0 offen offset:%d" % (XB + 4 * ks, XB + 4 * ks + 3, ks * 64))
e("v_lshlrev_b32 v6, 8, v3\nv_lshl_add_u32 v6, v2, 3, v6\nv_add_u32 v6, %d, v6" % WQS)
e("s_waitcnt vmcnt(0) lgkmcnt(0)")
e("s_add_u32 s9, s9, 0x%08x        ; tag" % TAGC)
WA = 64
for ks in range(14):
    r = WA + 4 * (ks & 1)
    e("ds_read_b64_tr_b16 v[%d:%d], v6 offset:%d" % (r, r + 1, ks * 1024))
    e("ds_read_b64_tr_b16 v[%d:%d], v6 offset:%d" % (r + 2, r + 3, ks * 1024 + 128))
    if ks > 0:
        pr = WA + 4 * ((ks - 1) & 1)
        e("s_waitcnt lgkmcnt(2)")
        c = "0" if ks == 1 else "v[72:75]"
        e("v_mfma_f32_16x16x32_bf16 v[72:75], v[%d:%d], v[%d:%d], %s" % (pr, pr + 3, XB + 4 * (ks - 1), XB + 4 * (ks - 1) + 3, c))
e("s_waitcnt lgkmcnt(0)")
pr = WA + 4 * (13 & 1)
e("v_mfma_f32_16x16x32_bf16 v[72:75], v[%d:%d], v[%d:%d], v[72:75]" % (pr, pr + 3, XB + 52, XB + 55))
e("v_lshlrev_b32 v7, 14, v2\nv_lshl_add_u32 v7, v3, 4, v7")
e("s_lshl_b32 s11, s10, 6\ns_add_u32 s11, s11, %d\nv_add_u32 v7, s11, v7" % WS_Q)
e("v_mov_b32 v77, s9\nv_mov_b32 v79, s9")
e("s_nop 3")
e("v_cvt_pk_bf16_f32 v76, v72, v73\nv_cvt_pk_bf16_f32 v78, v74, v75")
e("s_mov_b32 exec_lo, 0x00ff00ff\ns_mov_b32 exec_hi, 0x00ff00ff")
e("global_store_dwordx4 v7, v[76:79], s[%d:%d] sc1" % (sWS, sWS + 1))
e("s_mov_b64 exec, -1")
stamp(1)
e("s_lshl_b32 s11, s6, 14\ns_lshl_b32 s12, s5, 11\ns_add_u32 s11, s11, s12\ns_add_u32 s11, s11, %d" % WS_Q)
e("v_lshlrev_b32 v7, 4, v1\nv_add_u32 v7, s11, v7")
e("s_mov_b32 s13, 0")
if P.get("B0AT", -1) >= 0:
    e("s_barrier            ; B0")
e("L_pollq:")
e("global_load_dwordx4 v[80:83], v7, s[%d:%d] sc1" % (sWS, sWS + 1))
e("global_load_dwordx4 v[84:87], v7, s[%d:%d] offset:1024 sc1" % (sWS, sWS + 1))
e("s_add_u32 s13, s13, 1")
e("s_waitcnt vmcnt(0)")
if P.get("qdbg", 0):
    e("s_memrealtime s[84:85]\ns_waitcnt lgkmcnt(0)")
    for k in range(1, 6):
        e("s_cmp_eq_u32 s13, %d\ns_cselect_b32 s%d, s84, s%d\ns_cselect_b32 s%d, s85, s%d" % (k, stampregs[2 + k], stampregs[2 + k], stampregs[2 + k] + 1, stampregs[2 + k] + 1))
    e("s_mov_b32 s%d, s13" % stampregs[8])
e("v_cmp_ne_u32 s[40:41], s9, v81\nv_cmp_ne_u32 s[42:43], s9, v83\nv_cmp_ne_u32 s[44:45], s9, v85\nv_cmp_ne_u32 vcc, s9, v87")
e("s_or_b64 s[40:41], s[40:41], s[42:43]\ns_or_b64 s[44:45], s[44:45], vcc\ns_or_b64 s[40:41], s[40:41], s[44:45]")
e("s_cmp_gt_u32 s13, %d\ns_cbranch_scc1 L_pollq_done" % P["spinmax"])
e("s_cmp_lg_u64 s[40:41], 0\ns_cbranch_scc1 L_pollq")
e("L_pollq_done:")
e("v_mov_b32 v81, v82\nv_mov_b32 v85, v86")
e("v_lshlrev_b32 v7, 3, v1\nv_add_u32 v7, %d, v7" % QB)
e("ds_write_b64 v7, v[80:81]\nds_write_b64 v7, v[84:85] offset:512")
e("v_mov_b32 v8, %d\nv_mov_b32 v9, s9\nds_write_b32 v8, v9" % TAGL)
e("s_waitcnt lgkmcnt(0)")
if P["prio"]:
    e("s_setprio 0")
e("L_h_b1:")
stamp(2)
e("s_barrier            ; B1")
e("v_mov_b32 v8, %d" % TAGL)
e("ds_read_b32 v8, v8")
e("s_waitcnt lgkmcnt(0)")
e("v_readfirstlane_b32 s9, v8")
e("s_mov_b32 s32, s%d\ns_mov_b32 s33, s%d\ns_mov_b32 s34, %d\ns_mov_b32 s35, 0x20000" % (sWO, sWO + 1, 4096 * 896))
e("v_mul_u32_u24 v47, %d, v3" % (8 * 896))
e("v_lshl_add_u32 v47, v2, 4, v47")
e("s_lshl_b32 s10, s3, 8\nv_add_u32 v47, s10, v47")
e("s_cmp_eq_u32 s3, 3\ns_cselect_b32 s12, 0x7fffffff, 0")
e("v_mov_b32 v9, s12\nv_cmp_lt_u32 vcc, 7, v2\ns_nop 1\nv_cndmask_b32 v9, 0, v9, vcc\nv_or_b32 v47, v47, v9")
e("s_lshl_b32 s54, s5, 9\ns_lshl_b32 s11, s7, 6\ns_add_u32 s54, s54, s11\ns_mul_i32 s54, s54, 896")
e("s_mov_b32 s46, 0x05040100\ns_mov_b32 s47, 0x07060302")
woflags = P["woflags"].replace("+", " ").replace("none", "")
RAW = 96; WOB = 128
WOH = [WOB + 32 * ks for ks in range(4)]
def wo_load(ks):
    rowoff = ((ks >> 1) * 256 + (ks & 1) * 32) * 896
    R = P["worr"]
    for j0 in range(0, 8, R):
        if P["woprio"]:
            e("s_setprio 3")
        for j in range(j0, j0 + R):
            e("s_add_u32 s12, s54, %d" % (rowoff + j * 896))
            e("buffer_load_dwordx4 v[%d:%d], v47, s[32:35], s12 offen %s" % (RAW + 4 * j, RAW + 4 * j + 3, woflags))
        if P["woprio"]:
            e("s_setprio 0")
        e("s_waitcnt vmcnt(0)")
    for t in range(8):
        for p in range(4):
            sel = "s47" if (t & 1) else "s46"
            e("v_perm_b32 v%d, v%d, v%d, %s" % (WOH[ks] + t * 4 + p, RAW + 4 * (2 * p + 1) + (t >> 1), RAW + 4 * (2 * p) + (t >> 1), sel))
NPRE = P["wopre"]
for ks in range(NPRE):
    wo_load(ks)
stamp(3)
e("s_barrier            ; B2")
e("s_barrier            ; B3")
e("v_and_b32 v4, 1, v2\nv_lshlrev_b32 v4, 6, v4\nv_add_u32 v4, %d, v4" % MAXX)
for i in range(4):
    e("ds_read_b128 v[%d:%d], v4 offset:%d" % (8 + 4 * i, 8 + 4 * i + 3, 16 * i))
for i in range(4):
    e("ds_read_b128 v[%d:%d], v4 offset:%d" % (24 + 4 * i, 24 + 4 * i + 3, LSUM - MAXX + 16 * i))
e("s_waitcnt lgkmcnt(0)")
e("v_max3_f32 v40, v8, v9, v10")
for i in range(3, 15, 2):
    e("v_max3_f32 v40, v40, v%d, v%d" % (8 + i, 8 + i + 1))
e("v_max_f32 v40, v40, v23")
e("v_add_f32 v42, v24, v25")
for i in range(2, 16):
    e("v_add_f32 v42, v42, v%d" % (24 + i))
e("v_mov_b32 v41, s9\nv_mov_b32 v43, s9")
e("s_lshl_b32 s10, s8, 2\ns_add_u32 s10, s10, s7\ns_lshl_b32 s10, s10, 5\ns_add_u32 s10, s10, %d" % WS_ST)
e("v_lshlrev_b32 v5, 4, v1\nv_add_u32 v5, s10, v5")
e("s_cmp_lg_u32 s3, 0\ns_cbranch_scc1 L_nostatpub")
e("s_mov_b64 exec, 3")
e("global_store_dwordx4 v5, v[40:43], s[%d:%d] sc1" % (sWS, sWS + 1))
e("s_mov_b64 exec, -1")
e("L_nostatpub:")
e("s_cmp_lg_u32 s3, 0\ns_cbranch_scc1 L_h_b4")
e("s_lshl_b32 s10, s8, 7\ns_add_u32 s10, s10, %d" % WS_ST)
e("v_and_b32 v5, 1, v1\nv_lshlrev_b32 v5, 4, v5\nv_add_u32 v5, s10, v5")
e("s_mov_b32 s13, 0")
e("L_polls:")
for s_ in range(4):
    e("global_load_dwordx4 v[%d:%d], v5, s[%d:%d] offset:%d sc1" % (8 + 4 * s_, 8 + 4 * s_ + 3, sWS, sWS + 1, 32 * s_))
e("s_add_u32 s13, s13, 1")
e("s_waitcnt vmcnt(0)")
e("s_mov_b64 s[40:41], 0")
for s_ in range(4):
    e("v_cmp_ne_u32 s[42:43], s9, v%d\nv_cmp_ne_u32 vcc, s9, v%d" % (8 + 4 * s_ + 1, 8 + 4 * s_ + 3))
    e("s_or_b64 s[40:41], s[40:41], s[42:43]\ns_or_b64 s[40:41], s[40:41], vcc")
e("s_cmp_gt_u32 s13, %d\ns_cbranch_scc1 L_polls_done" % P["spinmax"])
e("s_cmp_eq_u64 s[40:41], 0\ns_cbranch_scc1 L_polls_done")
e("s_sleep 8\ns_branch L_polls")
e("L_polls_done:")
e("v_max3_f32 v24, v8, v12, v16\nv_max_f32 v24, v24, v20")
e("s_mov_b32 s15, 0x%08x" % CEXP)
for s_ in range(4):
    e("v_sub_f32 v%d, v%d, v24\nv_mul_f32 v%d, s15, v%d" % (26 + s_, 8 + 4 * s_, 26 + s_, 26 + s_))
for s_ in range(4):
    e("v_exp_f32 v%d, v%d" % (26 + s_, 26 + s_))
e("s_nop 0")
e("v_mul_f32 v30, v26, v10\nv_fmac_f32 v30, v27, v14\nv_fmac_f32 v30, v28, v18\nv_fmac_f32 v30, v29, v22")
e("v_rcp_f32 v31, v30")
e("s_nop 0")
e("v_fma_f32 v32, -v30, v31, 2.0\nv_mul_f32 v31, v31, v32")
for s_ in range(4):
    e("v_mul_f32 v%d, v%d, v31" % (26 + s_, 26 + s_))
e("s_nop 1")
for s_ in range(4):
    e("v_mov_b32_dpp v%d, v%d quad_perm:[0,0,0,0] row_mask:0xf bank_mask:0xf" % (48 + s_, 26 + s_))
    e("v_mov_b32_dpp v%d, v%d quad_perm:[1,1,1,1] row_mask:0xf bank_mask:0xf" % (52 + s_, 26 + s_))
e("L_h_b4:")
for ks in range(NPRE, 4):
    wo_load(ks)
stamp(4)
e("s_lshl_b32 s10, s8, 2\ns_add_u32 s10, s10, s7\ns_lshl_b32 s10, s10, 12\ns_add_u32 s10, s10, %d" % WS_OP)
e("v_lshlrev_b32 v5, 4, v1\nv_add_u32 v5, s10, v5")
e("v_lshlrev_b32 v6, 1, v1\nv_add_u32 v6, %d, v6" % OST)
e("v_lshlrev_b32 v7, 4, v3\nv_add_u32 v7, %d, v7" % OST)
e("s_lshl_b32 s11, s5, 2\ns_add_u32 s11, s11, s7")
e("s_mul_i32 s12, s6, 28\ns_lshl_b32 s13, s3, 3\ns_add_u32 s12, s12, s13\ns_lshl_b32 s12, s12, 5\ns_add_u32 s12, s12, s11\ns_lshl_b32 s12, s12, 7\ns_add_u32 s12, s12, %d" % WS_OUT)
e("v_lshrrev_b32 v44, 1, v2\nv_lshlrev_b32 v44, 12, v44")
e("v_and_b32 v45, 1, v2\nv_lshl_add_u32 v45, v45, 2, v3\nv_lshl_add_u32 v44, v45, 4, v44\nv_add_u32 v44, s12, v44")
e("s_mul_i32 s12, s6, 28\ns_add_u32 s12, s12, s11\ns_lshl_b32 s12, s12, 12\ns_add_u32 s12, s12, %d" % WS_OUT)
e("v_lshlrev_b32 v46, 4, v1\nv_add_u32 v46, s12, v46")
e("s_mov_b32 s48, 0xffff0000\ns_mov_b32 s49, 0")
e("s_mov_b32 s50, 0\ns_mov_b32 s51, 0x0000ffff")
e("s_mov_b32 s52, 0\ns_mov_b32 s53, 0xffff0000")
e("s_barrier            ; B4")
stamp(5)
e("s_cmp_lg_u32 s3, 0\ns_cbranch_scc1 L_h_b5")
e("s_mov_b32 s13, 0")
e("L_polla:")
for s_ in range(4):
    e("global_load_dwordx4 v[%d:%d], v5, s[%d:%d] offset:%d sc1" % (8 + 4 * s_, 8 + 4 * s_ + 3, sWS, sWS + 1, 1024 * s_))
e("s_add_u32 s13, s13, 1")
e("s_waitcnt vmcnt(0)")
e("s_mov_b64 s[40:41], 0")
for s_ in range(4):
    e("v_cmp_ne_u32 s[42:43], s9, v%d\nv_cmp_ne_u32 vcc, s9, v%d" % (8 + 4 * s_ + 1, 8 + 4 * s_ + 3))
    e("s_or_b64 s[40:41], s[40:41], s[42:43]\ns_or_b64 s[40:41], s[40:41], vcc")
e("s_cmp_gt_u32 s13, %d\ns_cbranch_scc1 L_polla_done" % P["spinmax"])
e("s_cmp_lg_u64 s[40:41], 0\ns_cbranch_scc1 L_polla")
e("L_polla_done:")
e("v_mul_f32 v24, v48, v8\nv_mul_f32 v25, v52, v10")
for s_ in range(1, 4):
    e("v_fmac_f32 v24, v%d, v%d\nv_fmac_f32 v25, v%d, v%d" % (48 + s_, 8 + 4 * s_, 52 + s_, 10 + 4 * s_))
e("v_cvt_pk_bf16_f32 v24, v24, v25")
e("ds_write_b16 v6, v24\nds_write_b16_d16_hi v6, v24 offset:128")
e("s_waitcnt lgkmcnt(0)")
e("L_h_b5:")
stamp(6)
e("s_barrier")
for ks in range(4):
    e("ds_read_b128 v[%d:%d], v7 offset:%d" % (8 + 4 * ks, 8 + 4 * ks + 3, ks * 64))
OA = 56
for ks in range(4):
    e("s_waitcnt lgkmcnt(%d)" % (3 - ks))
    for t in range(8):
        c = "0" if ks == 0 else "v[%d:%d]" % (OA + 4 * t, OA + 4 * t + 3)
        e("v_mfma_f32_16x16x32_bf16 v[%d:%d], v[%d:%d], v[%d:%d], %s" % (OA + 4 * t, OA + 4 * t + 3, 8 + 4 * ks, 8 + 4 * ks + 3, WOH[ks] + t * 4, WOH[ks] + t * 4 + 3, c))
e("v_mov_b32 v25, s9\nv_mov_b32 v27, s9")
e("s_nop 7")
e("v_cndmask_b32 v24, v%d, v%d, s[48:49]\nv_cndmask_b32 v26, v%d, v%d, s[48:49]" % (OA, OA + 8, OA + 4, OA + 12))
e("v_cndmask_b32 v24, v24, v%d, s[50:51]\nv_cndmask_b32 v26, v26, v%d, s[50:51]" % (OA + 16, OA + 20))
e("v_cndmask_b32 v24, v24, v%d, s[52:53]\nv_cndmask_b32 v26, v26, v%d, s[52:53]" % (OA + 24, OA + 28))
e("s_cmp_eq_u32 s3, 3\ns_cselect_b32 s12, 0x00ff00ff, -1\ns_mov_b32 exec_lo, s12\ns_mov_b32 exec_hi, s12")
e("global_store_dwordx4 v44, v[24:27], s[%d:%d] sc1" % (sWS, sWS + 1))
e("s_mov_b64 exec, -1")
stamp(7)
e("s_cmp_lg_u32 s3, 0\ns_cbranch_scc1 L_h_done")
e("s_cmp_ge_u32 s11, 28\ns_cbranch_scc1 L_h_done")
e("s_mov_b32 s13, 0")
e("L_pollo:")
for i in range(4):
    e("global_load_dwordx4 v[%d:%d], v46, s[%d:%d] offset:%d sc1" % (8 + 4 * i, 8 + 4 * i + 3, sWS, sWS + 1, 1024 * i))
e("s_add_u32 s13, s13, 1")
e("s_waitcnt vmcnt(0)")
e("s_mov_b64 s[40:41], 0")
for i in range(4):
    e("v_cmp_ne_u32 s[42:43], s9, v%d\nv_cmp_ne_u32 vcc, s9, v%d" % (8 + 4 * i + 1, 8 + 4 * i + 3))
    e("s_or_b64 s[40:41], s[40:41], s[42:43]\ns_or_b64 s[40:41], s[40:41], vcc")
e("s_cmp_gt_u32 s13, %d\ns_cbranch_scc1 L_pollo_done" % P["spinmax"])
e("s_cmp_lg_u64 s[40:41], 0\ns_cbranch_scc1 L_pollo")
e("L_pollo_done:")
e("v_add_f32 v24, v8, v12\nv_add_f32 v25, v10, v14\nv_add_f32 v26, v16, v20\nv_add_f32 v27, v18, v22")
e("v_add_f32 v24, v24, v26\nv_add_f32 v25, v25, v27")
e("s_nop 1")
e("v_add_f32_dpp v24, v24, v24 row_ror:8 row_mask:0xf bank_mask:0xf\nv_add_f32_dpp v25, v25, v25 row_ror:8 row_mask:0xf bank_mask:0xf")
e("v_mov_b32 v26, v24\nv_mov_b32 v27, v25\ns_nop 1")
e("v_permlane16_swap_b32 v24, v26\nv_permlane16_swap_b32 v25, v27")
e("v_add_f32 v24, v24, v26\nv_add_f32 v25, v25, v27")
e("v_mov_b32 v26, v24\nv_mov_b32 v27, v25\ns_nop 1")
e("v_permlane32_swap_b32 v24, v26\nv_permlane32_swap_b32 v25, v27")
e("v_add_f32 v24, v24, v26\nv_add_f32 v25, v25, v27")
e("v_cvt_pk_bf16_f32 v24, v24, v25")
e("s_mul_i32 s12, s6, 896\ns_lshl_b32 s13, s11, 5\ns_add_u32 s12, s12, s13")
e("v_lshlrev_b32 v26, 2, v1\nv_add_u32 v26, s12, v26")
e("s_mov_b64 exec, 0xff")
e("global_store_dword v26, v24, s[%d:%d]" % (sOUT, sOUT + 1))
e("s_cmp_lg_u32 s2, 0\ns_cbranch_scc1 L_h_done")
e("s_mov_b64 exec, 1")
e("v_mov_b32 v26, %d\nv_mov_b32 v27, s9" % WS_E)
e("global_store_dword v26, v27, s[%d:%d] sc1" % (sWS, sWS + 1))
e("L_h_done:")
stamp(8)
e("s_add_u32 s3, s3, 4")
stamp_flush(10 if P.get('qdbg', 0) else 9, "h")
e("L_end:")
e("s_endpgm")

e('.section .rodata,"a"\n.p2align 6\n.amdhsa_kernel %s' % KN)
e("  .amdhsa_next_free_vgpr 256\n  .amdhsa_next_free_sgpr 96\n  .amdhsa_accum_offset 256")
e("  .amdhsa_group_segment_fixed_size 0\n  .amdhsa_kernarg_size 64\n  .amdhsa_user_sgpr_count 2\n  .amdhsa_user_sgpr_kernarg_segment_ptr 1\n  .amdhsa_system_sgpr_workgroup_id_x 1")
e("  .amdhsa_float_denorm_mode_32 3")
e(".end_amdhsa_kernel")
open(out, "w").write("\n".join(L) + "\n")
```

```python
import sys

out = sys.argv[1]
P = dict(stamps=0, LAK=2, LAV=2, G=2, DI=8, DT=12, PB2=2, PEVERY=4, worr=8, crot=0, HOLD=4, wqflags="nt", woflags="nt", prio=1, woprio=0, wopre=2, kflags="nt", vflags="nt", spinmax=200000, dbgq=0)
for a in sys.argv[2:]:
    k, v = a.split("=")
    P[k] = int(v) if v.lstrip("-").isdigit() else v
kflags = P["kflags"].replace("+", " ").replace("none", "")
vflags = P["vflags"].replace("+", " ").replace("none", "")
STAMPS = P["stamps"]

L = []
def e(s=""):
    for line in s.split("\n"):
        L.append(line)

KN = "standalone__gqa_block_cached__decode_kernel"

RING = 0
WQS = 131072
PB = 131072
HS = 2112
QB = 145408
MAXX = 146432
LSUM = 146560
TAGL = 146688
OST = 146752
LDS_TOTAL = 147008

WS_E = 0x0
WS_Q = 0x1000
WS_ST = 0x30000
WS_OP = 0x40000
WS_OUT = 0x140000
WS_STAMP = 400 * 1024 * 1024
TAGC = 0x9E3779B9
CEXP = 0x3DB8AA3B

import struct
cexp = struct.unpack("<I", struct.pack("<f", 1.4426950408889634 / 16.0))[0]
CEXP = cexp

e("; @launch grid=(256,1,1) block=(512,1,1) lds=%d" % LDS_TOTAL)
e('.amdgcn_target "amdgcn-amd-amdhsa--gfx950"')
e(".text")
e(".globl %s\n.p2align 8\n.type %s,@function\n%s:" % (KN, KN, KN))

sX, sK, sV, sWQ, sWO, sOUT, sDBG, sWS = 16, 18, 20, 22, 24, 26, 28, 30
stampregs = list(range(64, 84, 2))
QDBG = [False]
def stamp(i):
    if STAMPS and not (QDBG[0] and i >= 3):
        e("s_memrealtime s[%d:%d]" % (stampregs[i], stampregs[i] + 1))
        e("s_waitcnt lgkmcnt(0)")
def stamp_flush(n, label):
    if not STAMPS:
        return
    if STAMPS == 2:
        base = 0 if label == "s" else 8
        e("s_mov_b64 exec, 1\nv_mov_b32 v1, 0")
        e("s_not_b32 s84, s64\nv_mov_b32 v2, s84\nglobal_atomic_umax v1, v2, s[28:29] offset:0 sc1\ns_nop 1")
        e("v_mov_b32 v2, s64\nglobal_atomic_umax v1, v2, s[28:29] offset:4 sc1\ns_nop 1")
        idx = (1, 2, 3, 4, 5, 6) if label == "s" else (1, 2, 3, 4, 6, 7, 8)
        for k, i in enumerate(idx):
            slot = (2 + k) if label == "s" else (8 + k)
            if label == "h" and i == 1:
                e("s_cmp_lg_u32 s3, 4\ns_cbranch_scc1 L_skip_st1")
            e("v_mov_b32 v2, s%d\nglobal_atomic_umax v1, v2, s[28:29] offset:%d sc1\ns_nop 1" % (stampregs[i], slot * 4))
            if label == "h" and i == 1:
                e("L_skip_st1:")
        e("s_waitcnt vmcnt(0)")
        return
    e("s_getreg_b32 s84, hwreg(HW_REG_XCC_ID)")
    e("s_lshl_b32 s85, s2, 3\ns_add_u32 s85, s85, s3\ns_lshl_b32 s85, s85, 7")
    e("s_add_u32 s85, s85, %d" % WS_STAMP)
    e("s_add_u32 s86, s%d, s85\ns_addc_u32 s87, s%d, 0" % (sWS, sWS + 1))
    e("s_mov_b64 exec, 1\nv_mov_b32 v1, 0")
    for i in range(10):
        if i < n:
            e("v_mov_b32 v2, s%d\nv_mov_b32 v3, s%d" % (stampregs[i], stampregs[i] + 1))
        else:
            e("v_mov_b32 v2, s%d\nv_mov_b32 v3, s%d" % (stampregs[n - 1], stampregs[n - 1] + 1))
        e("global_store_dwordx2 v1, v[2:3], s[86:87] offset:%d" % (i * 8))
        e("s_nop 1")
    e("v_mov_b32 v2, s84\nv_mov_b32 v3, 0")
    e("global_store_dwordx2 v1, v[2:3], s[86:87] offset:%d" % (10 * 8))
    e("s_waitcnt vmcnt(0)")

e("s_cmp_ge_u32 s2, 256")
e("s_cbranch_scc1 L_end")
if STAMPS:
    e("s_memrealtime s[64:65]")
e("s_load_dwordx16 s[16:31], s[0:1], 0")
e("v_lshrrev_b32 v1, 6, v0")
e("s_and_b32 s5, s2, 7")
e("v_readfirstlane_b32 s3, v1")
e("s_lshr_b32 s4, s2, 3")
e("s_and_b32 s6, s4, 7")
e("s_lshr_b32 s7, s4, 3")
e("s_lshl_b32 s8, s6, 3")
e("s_add_u32 s8, s8, s5")
e("v_and_b32 v1, 63, v0")
e("s_cmp_ge_u32 s3, 4")
e("s_cbranch_scc1 L_helper")

vKoff = list(range(2, 10))
vKrd = list(range(10, 18))
vVoff = list(range(18, 22))
vVrd = list(range(22, 26))
vPrd, vPwr = 26, 27
vT0, vT1, vT2, vT3 = 28, 29, 30, 31
HOLD = 128
qB = 32
Sreg = 64
Areg = 128
Pa = 128
Vb = 132
acc = 148
vM = 164; vMc = 165; vL = 166; vU = 168

e("s_lshl_b32 s10, s3, 15")
e("s_lshl_b32 s11, s3, 12")
e("v_lshrrev_b32 v64, 5, v1")
e("v_and_b32 v65, 31, v1")
e("v_xor_b32 v65, v65, v64")
e("v_lshlrev_b32 v65, 4, v65")
e("v_lshl_add_u32 v%d, v64, 9, v65" % vKoff[0])
for n in range(1, 8):
    e("v_xor_b32 v%d, %d, v%d" % (vKoff[n], n << 5, vKoff[0]))
e("s_waitcnt lgkmcnt(0)")
e("s_lshl_b32 s12, s8, 21")
e("s_lshl_b32 s13, s7, 19")
e("s_add_u32 s12, s12, s13")
e("s_add_u32 s32, s%d, s12\ns_addc_u32 s33, s%d, 0\ns_mov_b32 s34, 0x80000\ns_mov_b32 s35, 0x20000" % (sK, sK + 1))
e("s_add_u32 s36, s%d, s12\ns_addc_u32 s37, s%d, 0\ns_mov_b32 s38, 0x80000\ns_mov_b32 s39, 0x20000" % (sV, sV + 1))

G = P["G"]; DI = P["DI"]
class St: pass
st = St(); st.issued = 0; st.landed = 0; st.freed = 0
def wait_out(x):
    if st.issued - st.landed > x:
        e("s_waitcnt vmcnt(%d)" % x)
        st.landed = st.issued - x
def issue_group(di=None):
    di = DI if di is None else di
    n, jj0 = st.issued // 4, st.issued % 4
    assert n < st.freed + 8 and n < 64
    wait_out(di - G)
    if jj0 == 0:
        e("s_add_u32 m0, s10, %d" % ((n % 8) * 4096))
        if n < 32:
            e("s_add_u32 s14, s11, %d" % (n * 16384))
        else:
            e("s_mov_b32 s14, %d" % ((n - 32) * 16384))
    for jj in range(jj0, jj0 + G):
        if n < 32:
            e("buffer_load_dwordx4 v%d, s[32:35], s14 offen offset:%d %s lds" % (vKoff[(n & 1) * 4 + jj], jj * 1024, kflags))
        else:
            e("buffer_load_dwordx4 v%d, s[36:39], s14 offen offset:%d %s lds" % (vVoff[jj], jj * 1024, vflags))
    st.issued += G
def pump_until(nunits, di=None):
    nunits = min(nunits, 64, st.freed + 8)
    while st.issued < 4 * nunits:
        issue_group(di)
def pump_groups(k, di=None):
    for _ in range(k):
        if st.issued // 4 < min(64, st.freed + 8):
            issue_group(di)
def need(nunits):
    wait_out(st.issued - 4 * nunits)

pump_groups(DI // G)
e("v_lshrrev_b32 v64, 3, v1")
e("v_lshrrev_b32 v65, 1, v64")
e("v_and_b32 v65, 3, v65")
e("v_lshlrev_b32 v65, 1, v65")
e("v_and_b32 v66, 7, v1")
e("v_xor_b32 v66, v66, v65")
e("v_lshlrev_b32 v66, 4, v66")
e("v_lshl_add_u32 v66, v64, 9, v66")
e("s_lshl_b32 s15, s3, 7")
e("v_add_u32 v%d, s15, v66" % vVoff[0])
for jj in range(1, 4):
    e("v_add_u32 v%d, %d, v%d" % (vVoff[jj], jj * 3072, vVoff[0]))
e("v_and_b32 v64, 15, v1")
e("v_lshrrev_b32 v65, 4, v1")
e("v_xor_b32 v66, v64, v65")
e("v_lshlrev_b32 v66, 4, v66")
e("v_lshl_add_u32 v66, v64, 9, v66")
e("v_add_u32 v%d, s10, v66" % vKrd[0])
for i in range(1, 8):
    e("v_xor_b32 v%d, %d, v%d" % (vKrd[i], i << 6, vKrd[0]))
e("v_and_b32 v66, 1, v65")
e("v_lshrrev_b32 v67, 3, v64")
e("v_lshl_or_b32 v67, v66, 1, v67")
e("v_lshrrev_b32 v%d, 2, v64" % 68)
e("v_lshl_add_u32 v%d, v66, 2, v%d" % (68, 68))
e("v_lshlrev_b32 v%d, 7, v%d" % (68, 68))
e("v_lshrrev_b32 v%d, 1, v65" % (69))
e("v_lshl_add_u32 v%d, v%d, 11, v%d" % (68, 69, 68))
e("v_and_b32 v%d, 3, v64" % (70))
e("v_lshl_add_u32 v%d, v%d, 3, v%d" % (68, 70, 68))
e("v_add_u32 v%d, s10, v%d" % (68, 68))
for t in range(4):
    e("v_xor_b32 v%d, %d, v67" % (71, t))
    e("v_lshl_add_u32 v%d, v%d, 5, v%d" % (vVrd[t], 71, 68))
e("v_and_b32 v66, 1, v64")
e("v_mul_u32_u24 v%d, %d, v66" % (72, HS))
e("v_lshl_add_u32 v%d, v65, 4, v%d" % (vPrd, 72))
e("v_add_u32 v%d, %d, v%d" % (vPrd, PB, vPrd))
e("s_lshr_b32 s15, s3, 1\ns_lshl_b32 s15, s15, 5\ns_and_b32 s40, s3, 1\ns_lshl_b32 s40, s40, 3\ns_add_u32 s15, s15, s40\ns_add_u32 s15, s15, %d" % PB)
e("v_lshl_add_u32 v%d, v%d, 6, v%d" % (vPwr, 69, 72))
e("v_and_b32 v%d, 1, v65" % (73))
e("v_lshl_add_u32 v%d, v%d, 4, v%d" % (vPwr, 73, vPwr))
e("v_add_u32 v%d, s15, v%d" % (vPwr, vPwr))
e("v_lshlrev_b32 v%d, 9, v66" % vT0)
e("v_lshl_add_u32 v%d, v65, 4, v%d" % (vT0, vT0))
e("v_add_u32 v%d, %d, v%d" % (vT0, QB, vT0))
e("v_lshlrev_b32 v%d, 6, v66" % vT1)
e("v_add_u32 v%d, %d, v%d" % (vT1, MAXX, vT1))
e("s_lshl_b32 s15, s3, 4")
e("v_lshl_add_u32 v%d, v65, 2, v%d" % (vT2, vT1))
e("v_add_u32 v%d, s15, v%d" % (vT2, vT2))
HOLDN = P["HOLD"]
pump_until(8)
B0AT = P.get("B0AT", -1)
if B0AT == 0:
    e("s_barrier")
for T in range(HOLDN):
    need(2 * T + 2)
    for i in range(8):
        r = HOLD + 32 * T + 4 * i
        e("ds_read_b128 v[%d:%d], v%d offset:%d" % (r, r + 3, vKrd[i], (T % 4) * 8192))
    e("s_waitcnt lgkmcnt(0)")
    st.freed = 2 * T + 2
    pump_until(st.freed + 8)
    if B0AT == T + 1:
        e("s_barrier")
stamp(1)
e("s_barrier")
stamp(2)
for i in range(8):
    e("ds_read_b128 v[%d:%d], v%d offset:%d" % (qB + 4 * i, qB + 4 * i + 3, vT0, i * 64))
e("v_mov_b32 v%d, %d" % (vT3, TAGL))
e("ds_read_b32 v%d, v%d" % (vT3, vT3))
e("s_waitcnt lgkmcnt(0)")
e("v_readfirstlane_b32 s9, v%d" % vT3)

LAK, LAV = P["LAK"], P["LAV"]
def ktile(T, from_regs):
    e("; K tile %d" % T)
    if from_regs:
        for i in range(8):
            r = HOLD + 32 * T + 4 * i
            c = "0" if i == 0 else "v[%d:%d]" % (Sreg + 4 * T, Sreg + 4 * T + 3)
            e("v_mfma_f32_16x16x32_bf16 v[%d:%d], v[%d:%d], v[%d:%d], %s" % (Sreg + 4 * T, Sreg + 4 * T + 3, r, r + 3, qB + 4 * i, qB + 4 * i + 3, c))
        return
    nd = 2 * T + 2
    pump_until(nd + LAK)
    need(nd)
    slot = (T % 4) * 8192
    for i in range(8):
        e("ds_read_b128 v[%d:%d], v%d offset:%d" % (AregK + 4 * i, AregK + 4 * i + 3, vKrd[i], slot))
    for i in range(8):
        e("s_waitcnt lgkmcnt(%d)" % (7 - i))
        c = "0" if i == 0 else "v[%d:%d]" % (Sreg + 4 * T, Sreg + 4 * T + 3)
        e("v_mfma_f32_16x16x32_bf16 v[%d:%d], v[%d:%d], v[%d:%d], %s" % (Sreg + 4 * T, Sreg + 4 * T + 3, AregK + 4 * i, AregK + 4 * i + 3, qB + 4 * i, qB + 4 * i + 3, c))
    st.freed = nd
    if T == HOLDN:
        pump_groups(DI // G)
order = []
if HOLDN == 4:
    order = [(0, True)] + [(T, False) for T in range(4, 8)] + [(1, True), (2, True), (3, True)] + [(T, False) for T in range(8, 16)]
    AregK = HOLD
else:
    order = [(T, False) for T in range(HOLDN, HOLDN + 4)] + [(T, True) for T in range(HOLDN)] + [(T, False) for T in range(HOLDN + 4, 16)]
    AregK = HOLD + 32 * HOLDN
for (T, fr) in order:
    ktile(T, fr)
stamp(3)
e("; softmax")
DT = P["DT"]
pump_groups(1, DT)
e("s_nop 7")
e("v_max3_f32 v%d, v%d, v%d, v%d" % (vM, Sreg, Sreg + 1, Sreg + 2))
i = 3
while i < 64:
    if i + 1 < 64:
        e("v_max3_f32 v%d, v%d, v%d, v%d" % (vM, vM, Sreg + i, Sreg + i + 1)); i += 2
    else:
        e("v_max_f32 v%d, v%d, v%d" % (vM, vM, Sreg + i)); i += 1
e("s_mov_b32 exec_lo, 0x00030003\ns_mov_b32 exec_hi, 0x00030003")
e("ds_write_b32 v%d, v%d" % (vT2, vM))
e("s_mov_b64 exec, -1")
pump_groups(P["PB2"], DT)
e("s_waitcnt lgkmcnt(0)")
e("s_barrier")
for i in range(4):
    e("ds_read_b128 v[%d:%d], v%d offset:%d" % (vU + 4 * i, vU + 4 * i + 3, vT1, 16 * i))
e("s_waitcnt lgkmcnt(0)")
e("v_max3_f32 v%d, v%d, v%d, v%d" % (vM, vU, vU + 1, vU + 2))
for i in range(3, 15, 2):
    e("v_max3_f32 v%d, v%d, v%d, v%d" % (vM, vM, vU + i, vU + i + 1))
e("v_max_f32 v%d, v%d, v%d" % (vM, vM, vU + 15))
e("s_mov_b32 s15, 0x%08x" % CEXP)
e("v_mul_f32 v%d, s15, v%d" % (vMc, vM))
e("v_mov_b32 v%d, 0\nv_mov_b32 v%d, 0" % (vL, vL + 1))
for T in range(16):
    s0 = Sreg + 4 * T
    for r in range(4):
        e("v_fma_f32 v%d, v%d, s15, -v%d" % (s0 + r, s0 + r, vMc))
    for r in range(4):
        e("v_exp_f32 v%d, v%d" % (s0 + r, s0 + r))
    if T % P["PEVERY"] == P["PEVERY"] - 1:
        pump_groups(1, DT)
    if T > 0:
        p0 = Sreg + 4 * (T - 1)
        e("v_add_f32 v%d, v%d, v%d\nv_add_f32 v%d, v%d, v%d" % (vL, vL, p0, vL + 1, vL + 1, p0 + 1))
        e("v_add_f32 v%d, v%d, v%d\nv_add_f32 v%d, v%d, v%d" % (vL, vL, p0 + 2, vL + 1, vL + 1, p0 + 3))
        e("v_cvt_pk_bf16_f32 v%d, v%d, v%d\nv_cvt_pk_bf16_f32 v%d, v%d, v%d" % (p0, p0, p0 + 1, p0 + 1, p0 + 2, p0 + 3))
p0 = Sreg + 60
e("s_nop 0")
e("v_add_f32 v%d, v%d, v%d\nv_add_f32 v%d, v%d, v%d" % (vL, vL, p0, vL + 1, vL + 1, p0 + 1))
e("v_add_f32 v%d, v%d, v%d\nv_add_f32 v%d, v%d, v%d" % (vL, vL, p0 + 2, vL + 1, vL + 1, p0 + 3))
e("v_cvt_pk_bf16_f32 v%d, v%d, v%d\nv_cvt_pk_bf16_f32 v%d, v%d, v%d" % (p0, p0, p0 + 1, p0 + 1, p0 + 2, p0 + 3))
e("v_add_f32 v%d, v%d, v%d" % (vL, vL, vL + 1))
e("s_mov_b32 exec_lo, 0x00030003\ns_mov_b32 exec_hi, 0x00030003")
for T in range(16):
    e("ds_write_b64 v%d, v[%d:%d] offset:%d" % (vPwr, Sreg + 4 * T, Sreg + 4 * T + 1, T * 128))
e("ds_write_b32 v%d, v%d offset:%d" % (vT2, vL, LSUM - MAXX))
e("s_mov_b64 exec, -1")
for t in range(16):
    e("v_mov_b32 v%d, 0" % (acc + t))
pump_groups(P["PB2"], DT)
e("s_waitcnt lgkmcnt(0)")
e("s_barrier")
stamp(4)
for u in range(32):
    n = 32 + u
    e("; V unit %d" % u)
    pump_until(n + 1 + LAV)
    need(n + 1)
    slot = (n % 8) * 4096
    e("ds_read_b128 v[%d:%d], v%d offset:%d" % (Pa, Pa + 3, vPrd, u * 64))
    for t in range(4):
        e("ds_read_b64_tr_b16 v[%d:%d], v%d offset:%d" % (Vb + 4 * t, Vb + 4 * t + 1, vVrd[t], slot))
        e("ds_read_b64_tr_b16 v[%d:%d], v%d offset:%d" % (Vb + 4 * t + 2, Vb + 4 * t + 3, vVrd[t], slot + 1024))
    for t in range(4):
        e("s_waitcnt lgkmcnt(%d)" % (6 - 2 * t))
        e("v_mfma_f32_16x16x32_bf16 v[%d:%d], v[%d:%d], v[%d:%d], v[%d:%d]" % (acc + 4 * t, acc + 4 * t + 3, Pa, Pa + 3, Vb + 4 * t, Vb + 4 * t + 3, acc + 4 * t, acc + 4 * t + 3))
    st.freed = n + 1
stamp(5)
e("s_lshl_b32 s12, s8, 2\ns_add_u32 s12, s12, s3\ns_lshl_b32 s12, s12, 2\ns_add_u32 s12, s12, s7\ns_lshl_b32 s12, s12, 10\ns_add_u32 s12, s12, %d" % WS_OP)
e("v_lshlrev_b32 v%d, 4, v1" % vT0)
e("v_add_u32 v%d, s12, v%d" % (vT0, vT0))
e("s_mov_b32 s40, 0xffff0000\ns_mov_b32 s41, 0")
e("s_mov_b32 s42, 0\ns_mov_b32 s43, 0x0000ffff")
e("s_mov_b32 s44, 0\ns_mov_b32 s45, 0xffff0000")
e("v_mov_b32 v%d, s9\nv_mov_b32 v%d, s9" % (vU + 1, vU + 3))
e("s_nop 3")
e("v_cndmask_b32 v%d, v%d, v%d, s[40:41]" % (vU, acc + 0, acc + 4))
e("v_cndmask_b32 v%d, v%d, v%d, s[40:41]" % (vU + 2, acc + 1, acc + 5))
e("v_cndmask_b32 v%d, v%d, v%d, s[42:43]" % (vU, vU, acc + 8))
e("v_cndmask_b32 v%d, v%d, v%d, s[42:43]" % (vU + 2, vU + 2, acc + 9))
e("v_cndmask_b32 v%d, v%d, v%d, s[44:45]" % (vU, vU, acc + 12))
e("v_cndmask_b32 v%d, v%d, v%d, s[44:45]" % (vU + 2, vU + 2, acc + 13))
e("global_store_dwordx4 v%d, v[%d:%d], s[%d:%d] sc1" % (vT0, vU, vU + 3, sWS, sWS + 1))
e("s_barrier")
stamp(6)
stamp_flush(7, "s")
e("s_endpgm")

QDBG[0] = bool(P.get("qdbg", 0))
e("L_helper:")
if P.get("qdbg", 0):
    for i in range(1, 10):
        e("s_mov_b32 s%d, 0\ns_mov_b32 s%d, 0" % (stampregs[i], stampregs[i] + 1))
e("s_sub_u32 s3, s3, 4              ; hw")
e("v_and_b32 v2, 15, v1             ; n")
e("v_lshrrev_b32 v3, 4, v1          ; g")
e("s_waitcnt lgkmcnt(0)")
e("s_cmp_lg_u32 s3, 0")
if P.get("B0AT", -1) >= 0:
    e("s_cbranch_scc0 L_w4\ns_barrier            ; B0\ns_branch L_h_b1\nL_w4:")
else:
    e("s_cbranch_scc1 L_h_b1")
if P["prio"]:
    e("s_setprio 3")
e("s_load_dword s9, s[%d:%d], %d" % (sWS, sWS + 1, WS_E))
e("s_mov_b32 s32, s%d\ns_mov_b32 s33, s%d\ns_mov_b32 s34, %d\ns_mov_b32 s35, 0x20000" % (sWQ, sWQ + 1, 448 * 8192))
e("s_mov_b32 s36, s%d\ns_mov_b32 s37, s%d\ns_mov_b32 s38, %d\ns_mov_b32 s39, 0x20000" % (sX, sX + 1, 8 * 896))
e("s_lshr_b32 s4, s2, 3\ns_add_u32 s4, s4, %d\ns_and_b32 s4, s4, 31\ns_lshl_b32 s10, s5, 5\ns_add_u32 s10, s10, s4" % P["crot"])
e("v_lshrrev_b32 v4, 1, v1\nv_lshlrev_b32 v4, 13, v4\nv_and_b32 v5, 1, v1\nv_lshl_add_u32 v4, v5, 4, v4")
e("s_lshl_b32 s11, s10, 5\nv_add_u32 v4, s11, v4")
for ks in range(14):
    e("s_mov_b32 m0, %d" % (WQS + ks * 1024))
    e("s_mov_b32 s12, %d" % (ks * 262144))
    e("buffer_load_dwordx4 v4, s[32:35], s12 offen %s lds" % P["wqflags"].replace("+", " ").replace("none", ""))
e("v_and_b32 v5, 7, v2\nv_mul_u32_u24 v5, 896, v5\nv_lshl_add_u32 v5, v3, 4, v5")
XB = 8
for ks in range(14):
    e("buffer_load_dwordx4 v[%d:%d], v5, s[36:39], 0 offen offset:%d" % (XB + 4 * ks, XB + 4 * ks + 3, ks * 64))
e("v_lshlrev_b32 v6, 8, v3\nv_lshl_add_u32 v6, v2, 3, v6\nv_add_u32 v6, %d, v6" % WQS)
e("s_waitcnt vmcnt(0) lgkmcnt(0)")
e("s_add_u32 s9, s9, 0x%08x        ; tag" % TAGC)
WA = 64
for ks in range(14):
    r = WA + 4 * (ks & 1)
    e("ds_read_b64_tr_b16 v[%d:%d], v6 offset:%d" % (r, r + 1, ks * 1024))
    e("ds_read_b64_tr_b16 v[%d:%d], v6 offset:%d" % (r + 2, r + 3, ks * 1024 + 128))
    if ks > 0:
        pr = WA + 4 * ((ks - 1) & 1)
        e("s_waitcnt lgkmcnt(2)")
        c = "0" if ks == 1 else "v[72:75]"
        e("v_mfma_f32_16x16x32_bf16 v[72:75], v[%d:%d], v[%d:%d], %s" % (pr, pr + 3, XB + 4 * (ks - 1), XB + 4 * (ks - 1) + 3, c))
e("s_waitcnt lgkmcnt(0)")
pr = WA + 4 * (13 & 1)
e("v_mfma_f32_16x16x32_bf16 v[72:75], v[%d:%d], v[%d:%d], v[72:75]" % (pr, pr + 3, XB + 52, XB + 55))
e("v_lshlrev_b32 v7, 14, v2\nv_lshl_add_u32 v7, v3, 4, v7")
e("s_lshl_b32 s11, s10, 6\ns_add_u32 s11, s11, %d\nv_add_u32 v7, s11, v7" % WS_Q)
e("v_mov_b32 v77, s9\nv_mov_b32 v79, s9")
e("s_nop 3")
e("v_cvt_pk_bf16_f32 v76, v72, v73\nv_cvt_pk_bf16_f32 v78, v74, v75")
e("s_mov_b32 exec_lo, 0x00ff00ff\ns_mov_b32 exec_hi, 0x00ff00ff")
e("global_store_dwordx4 v7, v[76:79], s[%d:%d] sc1" % (sWS, sWS + 1))
e("s_mov_b64 exec, -1")
stamp(1)
e("s_lshl_b32 s11, s6, 14\ns_lshl_b32 s12, s5, 11\ns_add_u32 s11, s11, s12\ns_add_u32 s11, s11, %d" % WS_Q)
e("v_lshlrev_b32 v7, 4, v1\nv_add_u32 v7, s11, v7")
e("s_mov_b32 s13, 0")
if P.get("B0AT", -1) >= 0:
    e("s_barrier            ; B0")
e("L_pollq:")
e("global_load_dwordx4 v[80:83], v7, s[%d:%d] sc1" % (sWS, sWS + 1))
e("global_load_dwordx4 v[84:87], v7, s[%d:%d] offset:1024 sc1" % (sWS, sWS + 1))
e("s_add_u32 s13, s13, 1")
e("s_waitcnt vmcnt(0)")
if P.get("qdbg", 0):
    e("s_memrealtime s[84:85]\ns_waitcnt lgkmcnt(0)")
    for k in range(1, 6):
        e("s_cmp_eq_u32 s13, %d\ns_cselect_b32 s%d, s84, s%d\ns_cselect_b32 s%d, s85, s%d" % (k, stampregs[2 + k], stampregs[2 + k], stampregs[2 + k] + 1, stampregs[2 + k] + 1))
    e("s_mov_b32 s%d, s13" % stampregs[8])
e("v_cmp_ne_u32 s[40:41], s9, v81\nv_cmp_ne_u32 s[42:43], s9, v83\nv_cmp_ne_u32 s[44:45], s9, v85\nv_cmp_ne_u32 vcc, s9, v87")
e("s_or_b64 s[40:41], s[40:41], s[42:43]\ns_or_b64 s[44:45], s[44:45], vcc\ns_or_b64 s[40:41], s[40:41], s[44:45]")
e("s_cmp_gt_u32 s13, %d\ns_cbranch_scc1 L_pollq_done" % P["spinmax"])
e("s_cmp_lg_u64 s[40:41], 0\ns_cbranch_scc1 L_pollq")
e("L_pollq_done:")
e("v_mov_b32 v81, v82\nv_mov_b32 v85, v86")
e("v_lshlrev_b32 v7, 3, v1\nv_add_u32 v7, %d, v7" % QB)
e("ds_write_b64 v7, v[80:81]\nds_write_b64 v7, v[84:85] offset:512")
e("v_mov_b32 v8, %d\nv_mov_b32 v9, s9\nds_write_b32 v8, v9" % TAGL)
e("s_waitcnt lgkmcnt(0)")
if P["prio"]:
    e("s_setprio 0")
e("L_h_b1:")
stamp(2)
e("s_barrier            ; B1")
e("v_mov_b32 v8, %d" % TAGL)
e("ds_read_b32 v8, v8")
e("s_waitcnt lgkmcnt(0)")
e("v_readfirstlane_b32 s9, v8")
e("s_mov_b32 s32, s%d\ns_mov_b32 s33, s%d\ns_mov_b32 s34, %d\ns_mov_b32 s35, 0x20000" % (sWO, sWO + 1, 4096 * 896))
e("v_mul_u32_u24 v47, %d, v3" % (8 * 896))
e("v_lshl_add_u32 v47, v2, 4, v47")
e("s_lshl_b32 s10, s3, 8\nv_add_u32 v47, s10, v47")
e("s_cmp_eq_u32 s3, 3\ns_cselect_b32 s12, 0x7fffffff, 0")
e("v_mov_b32 v9, s12\nv_cmp_lt_u32 vcc, 7, v2\ns_nop 1\nv_cndmask_b32 v9, 0, v9, vcc\nv_or_b32 v47, v47, v9")
e("s_lshl_b32 s54, s5, 9\ns_lshl_b32 s11, s7, 6\ns_add_u32 s54, s54, s11\ns_mul_i32 s54, s54, 896")
e("s_mov_b32 s46, 0x05040100\ns_mov_b32 s47, 0x07060302")
woflags = P["woflags"].replace("+", " ").replace("none", "")
RAW = 96; WOB = 128
WOH = [WOB + 32 * ks for ks in range(4)]
def wo_load(ks):
    rowoff = ((ks >> 1) * 256 + (ks & 1) * 32) * 896
    R = P["worr"]
    for j0 in range(0, 8, R):
        if P["woprio"]:
            e("s_setprio 3")
        for j in range(j0, j0 + R):
            e("s_add_u32 s12, s54, %d" % (rowoff + j * 896))
            e("buffer_load_dwordx4 v[%d:%d], v47, s[32:35], s12 offen %s" % (RAW + 4 * j, RAW + 4 * j + 3, woflags))
        if P["woprio"]:
            e("s_setprio 0")
        e("s_waitcnt vmcnt(0)")
    for t in range(8):
        for p in range(4):
            sel = "s47" if (t & 1) else "s46"
            e("v_perm_b32 v%d, v%d, v%d, %s" % (WOH[ks] + t * 4 + p, RAW + 4 * (2 * p + 1) + (t >> 1), RAW + 4 * (2 * p) + (t >> 1), sel))
NPRE = P["wopre"]
for ks in range(NPRE):
    wo_load(ks)
stamp(3)
e("s_barrier            ; B2")
e("s_barrier            ; B3")
e("v_and_b32 v4, 1, v2\nv_lshlrev_b32 v4, 6, v4\nv_add_u32 v4, %d, v4" % MAXX)
for i in range(4):
    e("ds_read_b128 v[%d:%d], v4 offset:%d" % (8 + 4 * i, 8 + 4 * i + 3, 16 * i))
for i in range(4):
    e("ds_read_b128 v[%d:%d], v4 offset:%d" % (24 + 4 * i, 24 + 4 * i + 3, LSUM - MAXX + 16 * i))
e("s_waitcnt lgkmcnt(0)")
e("v_max3_f32 v40, v8, v9, v10")
for i in range(3, 15, 2):
    e("v_max3_f32 v40, v40, v%d, v%d" % (8 + i, 8 + i + 1))
e("v_max_f32 v40, v40, v23")
e("v_add_f32 v42, v24, v25")
for i in range(2, 16):
    e("v_add_f32 v42, v42, v%d" % (24 + i))
e("v_mov_b32 v41, s9\nv_mov_b32 v43, s9")
e("s_lshl_b32 s10, s8, 2\ns_add_u32 s10, s10, s7\ns_lshl_b32 s10, s10, 5\ns_add_u32 s10, s10, %d" % WS_ST)
e("v_lshlrev_b32 v5, 4, v1\nv_add_u32 v5, s10, v5")
e("s_cmp_lg_u32 s3, 0\ns_cbranch_scc1 L_nostatpub")
e("s_mov_b64 exec, 3")
e("global_store_dwordx4 v5, v[40:43], s[%d:%d] sc1" % (sWS, sWS + 1))
e("s_mov_b64 exec, -1")
e("L_nostatpub:")
e("s_cmp_lg_u32 s3, 0\ns_cbranch_scc1 L_h_b4")
e("s_lshl_b32 s10, s8, 7\ns_add_u32 s10, s10, %d" % WS_ST)
e("v_and_b32 v5, 1, v1\nv_lshlrev_b32 v5, 4, v5\nv_add_u32 v5, s10, v5")
e("s_mov_b32 s13, 0")
e("L_polls:")
for s_ in range(4):
    e("global_load_dwordx4 v[%d:%d], v5, s[%d:%d] offset:%d sc1" % (8 + 4 * s_, 8 + 4 * s_ + 3, sWS, sWS + 1, 32 * s_))
e("s_add_u32 s13, s13, 1")
e("s_waitcnt vmcnt(0)")
e("s_mov_b64 s[40:41], 0")
for s_ in range(4):
    e("v_cmp_ne_u32 s[42:43], s9, v%d\nv_cmp_ne_u32 vcc, s9, v%d" % (8 + 4 * s_ + 1, 8 + 4 * s_ + 3))
    e("s_or_b64 s[40:41], s[40:41], s[42:43]\ns_or_b64 s[40:41], s[40:41], vcc")
e("s_cmp_gt_u32 s13, %d\ns_cbranch_scc1 L_polls_done" % P["spinmax"])
e("s_cmp_eq_u64 s[40:41], 0\ns_cbranch_scc1 L_polls_done")
e("s_sleep 8\ns_branch L_polls")
e("L_polls_done:")
e("v_max3_f32 v24, v8, v12, v16\nv_max_f32 v24, v24, v20")
e("s_mov_b32 s15, 0x%08x" % CEXP)
for s_ in range(4):
    e("v_sub_f32 v%d, v%d, v24\nv_mul_f32 v%d, s15, v%d" % (26 + s_, 8 + 4 * s_, 26 + s_, 26 + s_))
for s_ in range(4):
    e("v_exp_f32 v%d, v%d" % (26 + s_, 26 + s_))
e("s_nop 0")
e("v_mul_f32 v30, v26, v10\nv_fmac_f32 v30, v27, v14\nv_fmac_f32 v30, v28, v18\nv_fmac_f32 v30, v29, v22")
e("v_rcp_f32 v31, v30")
e("s_nop 0")
e("v_fma_f32 v32, -v30, v31, 2.0\nv_mul_f32 v31, v31, v32")
for s_ in range(4):
    e("v_mul_f32 v%d, v%d, v31" % (26 + s_, 26 + s_))
e("s_nop 1")
for s_ in range(4):
    e("v_mov_b32_dpp v%d, v%d quad_perm:[0,0,0,0] row_mask:0xf bank_mask:0xf" % (48 + s_, 26 + s_))
    e("v_mov_b32_dpp v%d, v%d quad_perm:[1,1,1,1] row_mask:0xf bank_mask:0xf" % (52 + s_, 26 + s_))
e("L_h_b4:")
for ks in range(NPRE, 4):
    wo_load(ks)
stamp(4)
e("s_lshl_b32 s10, s8, 2\ns_add_u32 s10, s10, s7\ns_lshl_b32 s10, s10, 12\ns_add_u32 s10, s10, %d" % WS_OP)
e("v_lshlrev_b32 v5, 4, v1\nv_add_u32 v5, s10, v5")
e("v_lshlrev_b32 v6, 1, v1\nv_add_u32 v6, %d, v6" % OST)
e("v_lshlrev_b32 v7, 4, v3\nv_add_u32 v7, %d, v7" % OST)
e("s_lshl_b32 s11, s5, 2\ns_add_u32 s11, s11, s7")
e("s_mul_i32 s12, s6, 28\ns_lshl_b32 s13, s3, 3\ns_add_u32 s12, s12, s13\ns_lshl_b32 s12, s12, 5\ns_add_u32 s12, s12, s11\ns_lshl_b32 s12, s12, 7\ns_add_u32 s12, s12, %d" % WS_OUT)
e("v_lshrrev_b32 v44, 1, v2\nv_lshlrev_b32 v44, 12, v44")
e("v_and_b32 v45, 1, v2\nv_lshl_add_u32 v45, v45, 2, v3\nv_lshl_add_u32 v44, v45, 4, v44\nv_add_u32 v44, s12, v44")
e("s_mul_i32 s12, s6, 28\ns_add_u32 s12, s12, s11\ns_lshl_b32 s12, s12, 12\ns_add_u32 s12, s12, %d" % WS_OUT)
e("v_lshlrev_b32 v46, 4, v1\nv_add_u32 v46, s12, v46")
e("s_mov_b32 s48, 0xffff0000\ns_mov_b32 s49, 0")
e("s_mov_b32 s50, 0\ns_mov_b32 s51, 0x0000ffff")
e("s_mov_b32 s52, 0\ns_mov_b32 s53, 0xffff0000")
e("s_barrier            ; B4")
stamp(5)
e("s_cmp_lg_u32 s3, 0\ns_cbranch_scc1 L_h_b5")
e("s_mov_b32 s13, 0")
e("L_polla:")
for s_ in range(4):
    e("global_load_dwordx4 v[%d:%d], v5, s[%d:%d] offset:%d sc1" % (8 + 4 * s_, 8 + 4 * s_ + 3, sWS, sWS + 1, 1024 * s_))
e("s_add_u32 s13, s13, 1")
e("s_waitcnt vmcnt(0)")
e("s_mov_b64 s[40:41], 0")
for s_ in range(4):
    e("v_cmp_ne_u32 s[42:43], s9, v%d\nv_cmp_ne_u32 vcc, s9, v%d" % (8 + 4 * s_ + 1, 8 + 4 * s_ + 3))
    e("s_or_b64 s[40:41], s[40:41], s[42:43]\ns_or_b64 s[40:41], s[40:41], vcc")
e("s_cmp_gt_u32 s13, %d\ns_cbranch_scc1 L_polla_done" % P["spinmax"])
e("s_cmp_lg_u64 s[40:41], 0\ns_cbranch_scc1 L_polla")
e("L_polla_done:")
e("v_mul_f32 v24, v48, v8\nv_mul_f32 v25, v52, v10")
for s_ in range(1, 4):
    e("v_fmac_f32 v24, v%d, v%d\nv_fmac_f32 v25, v%d, v%d" % (48 + s_, 8 + 4 * s_, 52 + s_, 10 + 4 * s_))
e("v_cvt_pk_bf16_f32 v24, v24, v25")
e("ds_write_b16 v6, v24\nds_write_b16_d16_hi v6, v24 offset:128")
e("s_waitcnt lgkmcnt(0)")
e("L_h_b5:")
stamp(6)
e("s_barrier")
for ks in range(4):
    e("ds_read_b128 v[%d:%d], v7 offset:%d" % (8 + 4 * ks, 8 + 4 * ks + 3, ks * 64))
OA = 56
for ks in range(4):
    e("s_waitcnt lgkmcnt(%d)" % (3 - ks))
    for t in range(8):
        c = "0" if ks == 0 else "v[%d:%d]" % (OA + 4 * t, OA + 4 * t + 3)
        e("v_mfma_f32_16x16x32_bf16 v[%d:%d], v[%d:%d], v[%d:%d], %s" % (OA + 4 * t, OA + 4 * t + 3, 8 + 4 * ks, 8 + 4 * ks + 3, WOH[ks] + t * 4, WOH[ks] + t * 4 + 3, c))
e("v_mov_b32 v25, s9\nv_mov_b32 v27, s9")
e("s_nop 7")
e("v_cndmask_b32 v24, v%d, v%d, s[48:49]\nv_cndmask_b32 v26, v%d, v%d, s[48:49]" % (OA, OA + 8, OA + 4, OA + 12))
e("v_cndmask_b32 v24, v24, v%d, s[50:51]\nv_cndmask_b32 v26, v26, v%d, s[50:51]" % (OA + 16, OA + 20))
e("v_cndmask_b32 v24, v24, v%d, s[52:53]\nv_cndmask_b32 v26, v26, v%d, s[52:53]" % (OA + 24, OA + 28))
e("s_cmp_eq_u32 s3, 3\ns_cselect_b32 s12, 0x00ff00ff, -1\ns_mov_b32 exec_lo, s12\ns_mov_b32 exec_hi, s12")
e("global_store_dwordx4 v44, v[24:27], s[%d:%d] sc1" % (sWS, sWS + 1))
e("s_mov_b64 exec, -1")
stamp(7)
e("s_cmp_lg_u32 s3, 0\ns_cbranch_scc1 L_h_done")
e("s_cmp_ge_u32 s11, 28\ns_cbranch_scc1 L_h_done")
e("s_mov_b32 s13, 0")
e("L_pollo:")
for i in range(4):
    e("global_load_dwordx4 v[%d:%d], v46, s[%d:%d] offset:%d sc1" % (8 + 4 * i, 8 + 4 * i + 3, sWS, sWS + 1, 1024 * i))
e("s_add_u32 s13, s13, 1")
e("s_waitcnt vmcnt(0)")
e("s_mov_b64 s[40:41], 0")
for i in range(4):
    e("v_cmp_ne_u32 s[42:43], s9, v%d\nv_cmp_ne_u32 vcc, s9, v%d" % (8 + 4 * i + 1, 8 + 4 * i + 3))
    e("s_or_b64 s[40:41], s[40:41], s[42:43]\ns_or_b64 s[40:41], s[40:41], vcc")
e("s_cmp_gt_u32 s13, %d\ns_cbranch_scc1 L_pollo_done" % P["spinmax"])
e("s_cmp_lg_u64 s[40:41], 0\ns_cbranch_scc1 L_pollo")
e("L_pollo_done:")
e("v_add_f32 v24, v8, v12\nv_add_f32 v25, v10, v14\nv_add_f32 v26, v16, v20\nv_add_f32 v27, v18, v22")
e("v_add_f32 v24, v24, v26\nv_add_f32 v25, v25, v27")
e("s_nop 1")
e("v_add_f32_dpp v24, v24, v24 row_ror:8 row_mask:0xf bank_mask:0xf\nv_add_f32_dpp v25, v25, v25 row_ror:8 row_mask:0xf bank_mask:0xf")
e("v_mov_b32 v26, v24\nv_mov_b32 v27, v25\ns_nop 1")
e("v_permlane16_swap_b32 v24, v26\nv_permlane16_swap_b32 v25, v27")
e("v_add_f32 v24, v24, v26\nv_add_f32 v25, v25, v27")
e("v_mov_b32 v26, v24\nv_mov_b32 v27, v25\ns_nop 1")
e("v_permlane32_swap_b32 v24, v26\nv_permlane32_swap_b32 v25, v27")
e("v_add_f32 v24, v24, v26\nv_add_f32 v25, v25, v27")
e("v_cvt_pk_bf16_f32 v24, v24, v25")
e("s_mul_i32 s12, s6, 896\ns_lshl_b32 s13, s11, 5\ns_add_u32 s12, s12, s13")
e("v_lshlrev_b32 v26, 2, v1\nv_add_u32 v26, s12, v26")
e("s_mov_b64 exec, 0xff")
e("global_store_dword v26, v24, s[%d:%d]" % (sOUT, sOUT + 1))
e("s_cmp_lg_u32 s2, 0\ns_cbranch_scc1 L_h_done")
e("s_mov_b64 exec, 1")
e("v_mov_b32 v26, %d\nv_mov_b32 v27, s9" % WS_E)
e("global_store_dword v26, v27, s[%d:%d] sc1" % (sWS, sWS + 1))
e("L_h_done:")
stamp(8)
e("s_add_u32 s3, s3, 4")
stamp_flush(10 if P.get('qdbg', 0) else 9, "h")
e("L_end:")
e("s_endpgm")

e('.section .rodata,"a"\n.p2align 6\n.amdhsa_kernel %s' % KN)
e("  .amdhsa_next_free_vgpr 256\n  .amdhsa_next_free_sgpr 96\n  .amdhsa_accum_offset 256")
e("  .amdhsa_group_segment_fixed_size 0\n  .amdhsa_kernarg_size 64\n  .amdhsa_user_sgpr_count 2\n  .amdhsa_user_sgpr_kernarg_segment_ptr 1\n  .amdhsa_system_sgpr_workgroup_id_x 1")
e("  .amdhsa_float_denorm_mode_32 3")
e(".end_amdhsa_kernel")
open(out, "w").write("\n".join(L) + "\n")
```

```python
import sys

out = sys.argv[1]
P = dict(stamps=0, LAK=2, LAV=2, G=2, DI=8, DT=12, PB2=2, PEVERY=4, worr=8, crot=0, HOLD=4, wqflags="nt", woflags="nt", prio=1, woprio=0, wopre=2, kflags="nt", vflags="nt", spinmax=200000, dbgq=0)
for a in sys.argv[2:]:
    k, v = a.split("=")
    P[k] = int(v) if v.lstrip("-").isdigit() else v
kflags = P["kflags"].replace("+", " ").replace("none", "")
vflags = P["vflags"].replace("+", " ").replace("none", "")
STAMPS = P["stamps"]

L = []
def e(s=""):
    for line in s.split("\n"):
        L.append(line)

KN = "standalone__gqa_block_cached__decode_kernel"

RING = 0
WQS = 131072
PB = 131072
HS = 2112
QB = 145408
MAXX = 146432
LSUM = 146560
TAGL = 146688
OST = 146752
LDS_TOTAL = 147008

WS_E = 0x0
WS_Q = 0x1000
WS_ST = 0x30000
WS_OP = 0x40000
WS_OUT = 0x140000
WS_STAMP = 400 * 1024 * 1024
TAGC = 0x9E3779B9
CEXP = 0x3DB8AA3B

import struct
cexp = struct.unpack("<I", struct.pack("<f", 1.4426950408889634 / 16.0))[0]
CEXP = cexp

e("; @launch grid=(256,1,1) block=(512,1,1) lds=%d" % (LDS_TOTAL + (64 if STAMPS == 2 else 0)))
e('.amdgcn_target "amdgcn-amd-amdhsa--gfx950"')
e(".text")
e(".globl %s\n.p2align 8\n.type %s,@function\n%s:" % (KN, KN, KN))

sX, sK, sV, sWQ, sWO, sOUT, sDBG, sWS = 16, 18, 20, 22, 24, 26, 28, 30
stampregs = list(range(64, 84, 2))
QDBG = [False]
def stamp(i):
    if STAMPS and not (QDBG[0] and i >= 3):
        e("s_memrealtime s[%d:%d]" % (stampregs[i], stampregs[i] + 1))
        e("s_waitcnt lgkmcnt(0)")
def stamp_flush(n, label):
    if not STAMPS:
        return
    if STAMPS == 2:
        DBGL = OST + 256
        if label == "s":
            return
        e("s_cmp_lg_u32 s3, 4\ns_cbranch_scc1 L_dbg_done")
        e("s_mov_b64 exec, 1\nv_mov_b32 v1, 0\nv_mov_b32 v4, %d" % DBGL)
        e("ds_read_b128 v[8:11], v4\nds_read_b128 v[12:15], v4 offset:16\ns_waitcnt lgkmcnt(0)")
        e("s_not_b32 s84, s64\nv_mov_b32 v2, s84\nglobal_atomic_umax v1, v2, s[28:29] offset:0 sc1\ns_nop 1")
        e("v_mov_b32 v2, s64\nglobal_atomic_umax v1, v2, s[28:29] offset:4 sc1\ns_nop 1")
        for k in range(5):
            e("global_atomic_umax v1, v%d, s[28:29] offset:%d sc1" % (8 + k, (2 + k) * 4))
        for k, i in enumerate((1, 2, 3, 4, 6, 7, 8)):
            e("v_mov_b32 v2, s%d\nglobal_atomic_umax v1, v2, s[28:29] offset:%d sc1\ns_nop 1" % (stampregs[i], (8 + k) * 4))
        e("s_waitcnt vmcnt(0)")
        e("L_dbg_done:")
        return
    e("s_getreg_b32 s84, hwreg(HW_REG_XCC_ID)")
    e("s_lshl_b32 s85, s2, 3\ns_add_u32 s85, s85, s3\ns_lshl_b32 s85, s85, 7")
    e("s_add_u32 s85, s85, %d" % WS_STAMP)
    e("s_add_u32 s86, s%d, s85\ns_addc_u32 s87, s%d, 0" % (sWS, sWS + 1))
    e("s_mov_b64 exec, 1\nv_mov_b32 v1, 0")
    for i in range(10):
        if i < n:
            e("v_mov_b32 v2, s%d\nv_mov_b32 v3, s%d" % (stampregs[i], stampregs[i] + 1))
        else:
            e("v_mov_b32 v2, s%d\nv_mov_b32 v3, s%d" % (stampregs[n - 1], stampregs[n - 1] + 1))
        e("global_store_dwordx2 v1, v[2:3], s[86:87] offset:%d" % (i * 8))
        e("s_nop 1")
    e("v_mov_b32 v2, s84\nv_mov_b32 v3, 0")
    e("global_store_dwordx2 v1, v[2:3], s[86:87] offset:%d" % (10 * 8))
    e("s_waitcnt vmcnt(0)")

e("s_cmp_ge_u32 s2, 256")
e("s_cbranch_scc1 L_end")
if STAMPS:
    e("s_memrealtime s[64:65]")
e("s_load_dwordx16 s[16:31], s[0:1], 0")
e("v_lshrrev_b32 v1, 6, v0")
e("s_and_b32 s5, s2, 7")
e("v_readfirstlane_b32 s3, v1")
e("s_lshr_b32 s4, s2, 3")
e("s_and_b32 s6, s4, 7")
e("s_lshr_b32 s7, s4, 3")
e("s_lshl_b32 s8, s6, 3")
e("s_add_u32 s8, s8, s5")
e("v_and_b32 v1, 63, v0")
e("s_cmp_ge_u32 s3, 4")
e("s_cbranch_scc1 L_helper")

vKoff = list(range(2, 10))
vKrd = list(range(10, 18))
vVoff = list(range(18, 22))
vVrd = list(range(22, 26))
vPrd, vPwr = 26, 27
vT0, vT1, vT2, vT3 = 28, 29, 30, 31
HOLD = 128
qB = 32
Sreg = 64
Areg = 128
Pa = 128
Vb = 132
acc = 148
vM = 164; vMc = 165; vL = 166; vU = 168

e("s_lshl_b32 s10, s3, 15")
e("s_lshl_b32 s11, s3, 12")
e("v_lshrrev_b32 v64, 5, v1")
e("v_and_b32 v65, 31, v1")
e("v_xor_b32 v65, v65, v64")
e("v_lshlrev_b32 v65, 4, v65")
e("v_lshl_add_u32 v%d, v64, 9, v65" % vKoff[0])
for n in range(1, 8):
    e("v_xor_b32 v%d, %d, v%d" % (vKoff[n], n << 5, vKoff[0]))
e("s_waitcnt lgkmcnt(0)")
e("s_lshl_b32 s12, s8, 21")
e("s_lshl_b32 s13, s7, 19")
e("s_add_u32 s12, s12, s13")
e("s_add_u32 s32, s%d, s12\ns_addc_u32 s33, s%d, 0\ns_mov_b32 s34, 0x80000\ns_mov_b32 s35, 0x20000" % (sK, sK + 1))
e("s_add_u32 s36, s%d, s12\ns_addc_u32 s37, s%d, 0\ns_mov_b32 s38, 0x80000\ns_mov_b32 s39, 0x20000" % (sV, sV + 1))

G = P["G"]; DI = P["DI"]
class St: pass
st = St(); st.issued = 0; st.landed = 0; st.freed = 0
def wait_out(x):
    if st.issued - st.landed > x:
        e("s_waitcnt vmcnt(%d)" % x)
        st.landed = st.issued - x
def issue_group(di=None):
    di = DI if di is None else di
    n, jj0 = st.issued // 4, st.issued % 4
    assert n < st.freed + 8 and n < 64
    wait_out(di - G)
    if jj0 == 0:
        e("s_add_u32 m0, s10, %d" % ((n % 8) * 4096))
        if n < 32:
            e("s_add_u32 s14, s11, %d" % (n * 16384))
        else:
            e("s_mov_b32 s14, %d" % ((n - 32) * 16384))
    for jj in range(jj0, jj0 + G):
        if n < 32:
            e("buffer_load_dwordx4 v%d, s[32:35], s14 offen offset:%d %s lds" % (vKoff[(n & 1) * 4 + jj], jj * 1024, kflags))
        else:
            e("buffer_load_dwordx4 v%d, s[36:39], s14 offen offset:%d %s lds" % (vVoff[jj], jj * 1024, vflags))
    st.issued += G
def pump_until(nunits, di=None):
    nunits = min(nunits, 64, st.freed + 8)
    while st.issued < 4 * nunits:
        issue_group(di)
def pump_groups(k, di=None):
    for _ in range(k):
        if st.issued // 4 < min(64, st.freed + 8):
            issue_group(di)
def need(nunits):
    wait_out(st.issued - 4 * nunits)

pump_groups(DI // G)
e("v_lshrrev_b32 v64, 3, v1")
e("v_lshrrev_b32 v65, 1, v64")
e("v_and_b32 v65, 3, v65")
e("v_lshlrev_b32 v65, 1, v65")
e("v_and_b32 v66, 7, v1")
e("v_xor_b32 v66, v66, v65")
e("v_lshlrev_b32 v66, 4, v66")
e("v_lshl_add_u32 v66, v64, 9, v66")
e("s_lshl_b32 s15, s3, 7")
e("v_add_u32 v%d, s15, v66" % vVoff[0])
for jj in range(1, 4):
    e("v_add_u32 v%d, %d, v%d" % (vVoff[jj], jj * 3072, vVoff[0]))
e("v_and_b32 v64, 15, v1")
e("v_lshrrev_b32 v65, 4, v1")
e("v_xor_b32 v66, v64, v65")
e("v_lshlrev_b32 v66, 4, v66")
e("v_lshl_add_u32 v66, v64, 9, v66")
e("v_add_u32 v%d, s10, v66" % vKrd[0])
for i in range(1, 8):
    e("v_xor_b32 v%d, %d, v%d" % (vKrd[i], i << 6, vKrd[0]))
e("v_and_b32 v66, 1, v65")
e("v_lshrrev_b32 v67, 3, v64")
e("v_lshl_or_b32 v67, v66, 1, v67")
e("v_lshrrev_b32 v%d, 2, v64" % 68)
e("v_lshl_add_u32 v%d, v66, 2, v%d" % (68, 68))
e("v_lshlrev_b32 v%d, 7, v%d" % (68, 68))
e("v_lshrrev_b32 v%d, 1, v65" % (69))
e("v_lshl_add_u32 v%d, v%d, 11, v%d" % (68, 69, 68))
e("v_and_b32 v%d, 3, v64" % (70))
e("v_lshl_add_u32 v%d, v%d, 3, v%d" % (68, 70, 68))
e("v_add_u32 v%d, s10, v%d" % (68, 68))
for t in range(4):
    e("v_xor_b32 v%d, %d, v67" % (71, t))
    e("v_lshl_add_u32 v%d, v%d, 5, v%d" % (vVrd[t], 71, 68))
e("v_and_b32 v66, 1, v64")
e("v_mul_u32_u24 v%d, %d, v66" % (72, HS))
e("v_lshl_add_u32 v%d, v65, 4, v%d" % (vPrd, 72))
e("v_add_u32 v%d, %d, v%d" % (vPrd, PB, vPrd))
e("s_lshr_b32 s15, s3, 1\ns_lshl_b32 s15, s15, 5\ns_and_b32 s40, s3, 1\ns_lshl_b32 s40, s40, 3\ns_add_u32 s15, s15, s40\ns_add_u32 s15, s15, %d" % PB)
e("v_lshl_add_u32 v%d, v%d, 6, v%d" % (vPwr, 69, 72))
e("v_and_b32 v%d, 1, v65" % (73))
e("v_lshl_add_u32 v%d, v%d, 4, v%d" % (vPwr, 73, vPwr))
e("v_add_u32 v%d, s15, v%d" % (vPwr, vPwr))
e("v_lshlrev_b32 v%d, 9, v66" % vT0)
e("v_lshl_add_u32 v%d, v65, 4, v%d" % (vT0, vT0))
e("v_add_u32 v%d, %d, v%d" % (vT0, QB, vT0))
e("v_lshlrev_b32 v%d, 6, v66" % vT1)
e("v_add_u32 v%d, %d, v%d" % (vT1, MAXX, vT1))
e("s_lshl_b32 s15, s3, 4")
e("v_lshl_add_u32 v%d, v65, 2, v%d" % (vT2, vT1))
e("v_add_u32 v%d, s15, v%d" % (vT2, vT2))
HOLDN = P["HOLD"]
pump_until(8)
B0AT = P.get("B0AT", -1)
if B0AT == 0:
    e("s_barrier")
for T in range(HOLDN):
    need(2 * T + 2)
    for i in range(8):
        r = HOLD + 32 * T + 4 * i
        e("ds_read_b128 v[%d:%d], v%d offset:%d" % (r, r + 3, vKrd[i], (T % 4) * 8192))
    e("s_waitcnt lgkmcnt(0)")
    st.freed = 2 * T + 2
    pump_until(st.freed + 8)
    if B0AT == T + 1:
        e("s_barrier")
stamp(1)
e("s_barrier")
stamp(2)
for i in range(8):
    e("ds_read_b128 v[%d:%d], v%d offset:%d" % (qB + 4 * i, qB + 4 * i + 3, vT0, i * 64))
e("v_mov_b32 v%d, %d" % (vT3, TAGL))
e("ds_read_b32 v%d, v%d" % (vT3, vT3))
e("s_waitcnt lgkmcnt(0)")
e("v_readfirstlane_b32 s9, v%d" % vT3)

LAK, LAV = P["LAK"], P["LAV"]
def ktile(T, from_regs):
    e("; K tile %d" % T)
    if from_regs:
        for i in range(8):
            r = HOLD + 32 * T + 4 * i
            c = "0" if i == 0 else "v[%d:%d]" % (Sreg + 4 * T, Sreg + 4 * T + 3)
            e("v_mfma_f32_16x16x32_bf16 v[%d:%d], v[%d:%d], v[%d:%d], %s" % (Sreg + 4 * T, Sreg + 4 * T + 3, r, r + 3, qB + 4 * i, qB + 4 * i + 3, c))
        return
    nd = 2 * T + 2
    pump_until(nd + LAK)
    need(nd)
    slot = (T % 4) * 8192
    for i in range(8):
        e("ds_read_b128 v[%d:%d], v%d offset:%d" % (AregK + 4 * i, AregK + 4 * i + 3, vKrd[i], slot))
    for i in range(8):
        e("s_waitcnt lgkmcnt(%d)" % (7 - i))
        c = "0" if i == 0 else "v[%d:%d]" % (Sreg + 4 * T, Sreg + 4 * T + 3)
        e("v_mfma_f32_16x16x32_bf16 v[%d:%d], v[%d:%d], v[%d:%d], %s" % (Sreg + 4 * T, Sreg + 4 * T + 3, AregK + 4 * i, AregK + 4 * i + 3, qB + 4 * i, qB + 4 * i + 3, c))
    st.freed = nd
    if T == HOLDN:
        pump_groups(DI // G)
order = []
if HOLDN == 4:
    order = [(0, True)] + [(T, False) for T in range(4, 8)] + [(1, True), (2, True), (3, True)] + [(T, False) for T in range(8, 16)]
    AregK = HOLD
else:
    order = [(T, False) for T in range(HOLDN, HOLDN + 4)] + [(T, True) for T in range(HOLDN)] + [(T, False) for T in range(HOLDN + 4, 16)]
    AregK = HOLD + 32 * HOLDN
for (T, fr) in order:
    ktile(T, fr)
stamp(3)
e("; softmax")
DT = P["DT"]
pump_groups(1, DT)
e("s_nop 7")
e("v_max3_f32 v%d, v%d, v%d, v%d" % (vM, Sreg, Sreg + 1, Sreg + 2))
i = 3
while i < 64:
    if i + 1 < 64:
        e("v_max3_f32 v%d, v%d, v%d, v%d" % (vM, vM, Sreg + i, Sreg + i + 1)); i += 2
    else:
        e("v_max_f32 v%d, v%d, v%d" % (vM, vM, Sreg + i)); i += 1
e("s_mov_b32 exec_lo, 0x00030003\ns_mov_b32 exec_hi, 0x00030003")
e("ds_write_b32 v%d, v%d" % (vT2, vM))
e("s_mov_b64 exec, -1")
pump_groups(P["PB2"], DT)
e("s_waitcnt lgkmcnt(0)")
e("s_barrier")
for i in range(4):
    e("ds_read_b128 v[%d:%d], v%d offset:%d" % (vU + 4 * i, vU + 4 * i + 3, vT1, 16 * i))
e("s_waitcnt lgkmcnt(0)")
e("v_max3_f32 v%d, v%d, v%d, v%d" % (vM, vU, vU + 1, vU + 2))
for i in range(3, 15, 2):
    e("v_max3_f32 v%d, v%d, v%d, v%d" % (vM, vM, vU + i, vU + i + 1))
e("v_max_f32 v%d, v%d, v%d" % (vM, vM, vU + 15))
e("s_mov_b32 s15, 0x%08x" % CEXP)
e("v_mul_f32 v%d, s15, v%d" % (vMc, vM))
e("v_mov_b32 v%d, 0\nv_mov_b32 v%d, 0" % (vL, vL + 1))
for T in range(16):
    s0 = Sreg + 4 * T
    for r in range(4):
        e("v_fma_f32 v%d, v%d, s15, -v%d" % (s0 + r, s0 + r, vMc))
    for r in range(4):
        e("v_exp_f32 v%d, v%d" % (s0 + r, s0 + r))
    if T % P["PEVERY"] == P["PEVERY"] - 1:
        pump_groups(1, DT)
    if T > 0:
        p0 = Sreg + 4 * (T - 1)
        e("v_add_f32 v%d, v%d, v%d\nv_add_f32 v%d, v%d, v%d" % (vL, vL, p0, vL + 1, vL + 1, p0 + 1))
        e("v_add_f32 v%d, v%d, v%d\nv_add_f32 v%d, v%d, v%d" % (vL, vL, p0 + 2, vL + 1, vL + 1, p0 + 3))
        e("v_cvt_pk_bf16_f32 v%d, v%d, v%d\nv_cvt_pk_bf16_f32 v%d, v%d, v%d" % (p0, p0, p0 + 1, p0 + 1, p0 + 2, p0 + 3))
p0 = Sreg + 60
e("s_nop 0")
e("v_add_f32 v%d, v%d, v%d\nv_add_f32 v%d, v%d, v%d" % (vL, vL, p0, vL + 1, vL + 1, p0 + 1))
e("v_add_f32 v%d, v%d, v%d\nv_add_f32 v%d, v%d, v%d" % (vL, vL, p0 + 2, vL + 1, vL + 1, p0 + 3))
e("v_cvt_pk_bf16_f32 v%d, v%d, v%d\nv_cvt_pk_bf16_f32 v%d, v%d, v%d" % (p0, p0, p0 + 1, p0 + 1, p0 + 2, p0 + 3))
e("v_add_f32 v%d, v%d, v%d" % (vL, vL, vL + 1))
e("s_mov_b32 exec_lo, 0x00030003\ns_mov_b32 exec_hi, 0x00030003")
for T in range(16):
    e("ds_write_b64 v%d, v[%d:%d] offset:%d" % (vPwr, Sreg + 4 * T, Sreg + 4 * T + 1, T * 128))
e("ds_write_b32 v%d, v%d offset:%d" % (vT2, vL, LSUM - MAXX))
e("s_mov_b64 exec, -1")
for t in range(16):
    e("v_mov_b32 v%d, 0" % (acc + t))
pump_groups(P["PB2"], DT)
e("s_waitcnt lgkmcnt(0)")
e("s_barrier")
stamp(4)
for u in range(32):
    n = 32 + u
    e("; V unit %d" % u)
    pump_until(n + 1 + LAV)
    need(n + 1)
    slot = (n % 8) * 4096
    e("ds_read_b128 v[%d:%d], v%d offset:%d" % (Pa, Pa + 3, vPrd, u * 64))
    for t in range(4):
        e("ds_read_b64_tr_b16 v[%d:%d], v%d offset:%d" % (Vb + 4 * t, Vb + 4 * t + 1, vVrd[t], slot))
        e("ds_read_b64_tr_b16 v[%d:%d], v%d offset:%d" % (Vb + 4 * t + 2, Vb + 4 * t + 3, vVrd[t], slot + 1024))
    for t in range(4):
        e("s_waitcnt lgkmcnt(%d)" % (6 - 2 * t))
        e("v_mfma_f32_16x16x32_bf16 v[%d:%d], v[%d:%d], v[%d:%d], v[%d:%d]" % (acc + 4 * t, acc + 4 * t + 3, Pa, Pa + 3, Vb + 4 * t, Vb + 4 * t + 3, acc + 4 * t, acc + 4 * t + 3))
    st.freed = n + 1
stamp(5)
e("s_lshl_b32 s12, s8, 2\ns_add_u32 s12, s12, s3\ns_lshl_b32 s12, s12, 2\ns_add_u32 s12, s12, s7\ns_lshl_b32 s12, s12, 10\ns_add_u32 s12, s12, %d" % WS_OP)
e("v_lshlrev_b32 v%d, 4, v1" % vT0)
e("v_add_u32 v%d, s12, v%d" % (vT0, vT0))
e("s_mov_b32 s40, 0xffff0000\ns_mov_b32 s41, 0")
e("s_mov_b32 s42, 0\ns_mov_b32 s43, 0x0000ffff")
e("s_mov_b32 s44, 0\ns_mov_b32 s45, 0xffff0000")
e("v_mov_b32 v%d, s9\nv_mov_b32 v%d, s9" % (vU + 1, vU + 3))
e("s_nop 3")
e("v_cndmask_b32 v%d, v%d, v%d, s[40:41]" % (vU, acc + 0, acc + 4))
e("v_cndmask_b32 v%d, v%d, v%d, s[40:41]" % (vU + 2, acc + 1, acc + 5))
e("v_cndmask_b32 v%d, v%d, v%d, s[42:43]" % (vU, vU, acc + 8))
e("v_cndmask_b32 v%d, v%d, v%d, s[42:43]" % (vU + 2, vU + 2, acc + 9))
e("v_cndmask_b32 v%d, v%d, v%d, s[44:45]" % (vU, vU, acc + 12))
e("v_cndmask_b32 v%d, v%d, v%d, s[44:45]" % (vU + 2, vU + 2, acc + 13))
e("global_store_dwordx4 v%d, v[%d:%d], s[%d:%d] sc1" % (vT0, vU, vU + 3, sWS, sWS + 1))
if STAMPS == 2:
    e("s_cmp_lg_u32 s3, 0\ns_cbranch_scc1 L_dbg_s")
    e("v_mov_b32 v4, %d" % (OST + 256))
    for k in range(5):
        e("v_mov_b32 v5, s%d\nds_write_b32 v4, v5 offset:%d" % (stampregs[1 + k], 4 * k))
    e("s_waitcnt lgkmcnt(0)\nL_dbg_s:")
e("s_barrier")
stamp(6)
stamp_flush(7, "s")
e("s_endpgm")

QDBG[0] = bool(P.get("qdbg", 0))
e("L_helper:")
if P.get("qdbg", 0):
    for i in range(1, 10):
        e("s_mov_b32 s%d, 0\ns_mov_b32 s%d, 0" % (stampregs[i], stampregs[i] + 1))
e("s_sub_u32 s3, s3, 4              ; hw")
e("v_and_b32 v2, 15, v1             ; n")
e("v_lshrrev_b32 v3, 4, v1          ; g")
e("s_waitcnt lgkmcnt(0)")
e("s_cmp_lg_u32 s3, 0")
if P.get("B0AT", -1) >= 0:
    e("s_cbranch_scc0 L_w4\ns_barrier            ; B0\ns_branch L_h_b1\nL_w4:")
else:
    e("s_cbranch_scc1 L_h_b1")
if P["prio"]:
    e("s_setprio 3")
e("s_load_dword s9, s[%d:%d], %d" % (sWS, sWS + 1, WS_E))
e("s_mov_b32 s32, s%d\ns_mov_b32 s33, s%d\ns_mov_b32 s34, %d\ns_mov_b32 s35, 0x20000" % (sWQ, sWQ + 1, 448 * 8192))
e("s_mov_b32 s36, s%d\ns_mov_b32 s37, s%d\ns_mov_b32 s38, %d\ns_mov_b32 s39, 0x20000" % (sX, sX + 1, 8 * 896))
e("s_lshr_b32 s4, s2, 3\ns_add_u32 s4, s4, %d\ns_and_b32 s4, s4, 31\ns_lshl_b32 s10, s5, 5\ns_add_u32 s10, s10, s4" % P["crot"])
e("v_lshrrev_b32 v4, 1, v1\nv_lshlrev_b32 v4, 13, v4\nv_and_b32 v5, 1, v1\nv_lshl_add_u32 v4, v5, 4, v4")
e("s_lshl_b32 s11, s10, 5\nv_add_u32 v4, s11, v4")
for ks in range(14):
    e("s_mov_b32 m0, %d" % (WQS + ks * 1024))
    e("s_mov_b32 s12, %d" % (ks * 262144))
    e("buffer_load_dwordx4 v4, s[32:35], s12 offen %s lds" % P["wqflags"].replace("+", " ").replace("none", ""))
e("v_and_b32 v5, 7, v2\nv_mul_u32_u24 v5, 896, v5\nv_lshl_add_u32 v5, v3, 4, v5")
XB = 8
for ks in range(14):
    e("buffer_load_dwordx4 v[%d:%d], v5, s[36:39], 0 offen offset:%d" % (XB + 4 * ks, XB + 4 * ks + 3, ks * 64))
e("v_lshlrev_b32 v6, 8, v3\nv_lshl_add_u32 v6, v2, 3, v6\nv_add_u32 v6, %d, v6" % WQS)
e("s_waitcnt vmcnt(0) lgkmcnt(0)")
e("s_add_u32 s9, s9, 0x%08x        ; tag" % TAGC)
WA = 64
for ks in range(14):
    r = WA + 4 * (ks & 1)
    e("ds_read_b64_tr_b16 v[%d:%d], v6 offset:%d" % (r, r + 1, ks * 1024))
    e("ds_read_b64_tr_b16 v[%d:%d], v6 offset:%d" % (r + 2, r + 3, ks * 1024 + 128))
    if ks > 0:
        pr = WA + 4 * ((ks - 1) & 1)
        e("s_waitcnt lgkmcnt(2)")
        c = "0" if ks == 1 else "v[72:75]"
        e("v_mfma_f32_16x16x32_bf16 v[72:75], v[%d:%d], v[%d:%d], %s" % (pr, pr + 3, XB + 4 * (ks - 1), XB + 4 * (ks - 1) + 3, c))
e("s_waitcnt lgkmcnt(0)")
pr = WA + 4 * (13 & 1)
e("v_mfma_f32_16x16x32_bf16 v[72:75], v[%d:%d], v[%d:%d], v[72:75]" % (pr, pr + 3, XB + 52, XB + 55))
e("v_lshlrev_b32 v7, 14, v2\nv_lshl_add_u32 v7, v3, 4, v7")
e("s_lshl_b32 s11, s10, 6\ns_add_u32 s11, s11, %d\nv_add_u32 v7, s11, v7" % WS_Q)
e("v_mov_b32 v77, s9\nv_mov_b32 v79, s9")
e("s_nop 3")
e("v_cvt_pk_bf16_f32 v76, v72, v73\nv_cvt_pk_bf16_f32 v78, v74, v75")
e("s_mov_b32 exec_lo, 0x00ff00ff\ns_mov_b32 exec_hi, 0x00ff00ff")
e("global_store_dwordx4 v7, v[76:79], s[%d:%d] sc1" % (sWS, sWS + 1))
e("s_mov_b64 exec, -1")
stamp(1)
e("s_lshl_b32 s11, s6, 14\ns_lshl_b32 s12, s5, 11\ns_add_u32 s11, s11, s12\ns_add_u32 s11, s11, %d" % WS_Q)
e("v_lshlrev_b32 v7, 4, v1\nv_add_u32 v7, s11, v7")
e("s_mov_b32 s13, 0")
if P.get("B0AT", -1) >= 0:
    e("s_barrier            ; B0")
e("L_pollq:")
e("global_load_dwordx4 v[80:83], v7, s[%d:%d] sc1" % (sWS, sWS + 1))
e("global_load_dwordx4 v[84:87], v7, s[%d:%d] offset:1024 sc1" % (sWS, sWS + 1))
e("s_add_u32 s13, s13, 1")
e("s_waitcnt vmcnt(0)")
if P.get("qdbg", 0):
    e("s_memrealtime s[84:85]\ns_waitcnt lgkmcnt(0)")
    for k in range(1, 6):
        e("s_cmp_eq_u32 s13, %d\ns_cselect_b32 s%d, s84, s%d\ns_cselect_b32 s%d, s85, s%d" % (k, stampregs[2 + k], stampregs[2 + k], stampregs[2 + k] + 1, stampregs[2 + k] + 1))
    e("s_mov_b32 s%d, s13" % stampregs[8])
e("v_cmp_ne_u32 s[40:41], s9, v81\nv_cmp_ne_u32 s[42:43], s9, v83\nv_cmp_ne_u32 s[44:45], s9, v85\nv_cmp_ne_u32 vcc, s9, v87")
e("s_or_b64 s[40:41], s[40:41], s[42:43]\ns_or_b64 s[44:45], s[44:45], vcc\ns_or_b64 s[40:41], s[40:41], s[44:45]")
e("s_cmp_gt_u32 s13, %d\ns_cbranch_scc1 L_pollq_done" % P["spinmax"])
e("s_cmp_lg_u64 s[40:41], 0\ns_cbranch_scc1 L_pollq")
e("L_pollq_done:")
e("v_mov_b32 v81, v82\nv_mov_b32 v85, v86")
e("v_lshlrev_b32 v7, 3, v1\nv_add_u32 v7, %d, v7" % QB)
e("ds_write_b64 v7, v[80:81]\nds_write_b64 v7, v[84:85] offset:512")
e("v_mov_b32 v8, %d\nv_mov_b32 v9, s9\nds_write_b32 v8, v9" % TAGL)
e("s_waitcnt lgkmcnt(0)")
if P["prio"]:
    e("s_setprio 0")
e("L_h_b1:")
stamp(2)
e("s_barrier            ; B1")
e("v_mov_b32 v8, %d" % TAGL)
e("ds_read_b32 v8, v8")
e("s_waitcnt lgkmcnt(0)")
e("v_readfirstlane_b32 s9, v8")
e("s_mov_b32 s32, s%d\ns_mov_b32 s33, s%d\ns_mov_b32 s34, %d\ns_mov_b32 s35, 0x20000" % (sWO, sWO + 1, 4096 * 896))
e("v_mul_u32_u24 v47, %d, v3" % (8 * 896))
e("v_lshl_add_u32 v47, v2, 4, v47")
e("s_lshl_b32 s10, s3, 8\nv_add_u32 v47, s10, v47")
e("s_cmp_eq_u32 s3, 3\ns_cselect_b32 s12, 0x7fffffff, 0")
e("v_mov_b32 v9, s12\nv_cmp_lt_u32 vcc, 7, v2\ns_nop 1\nv_cndmask_b32 v9, 0, v9, vcc\nv_or_b32 v47, v47, v9")
e("s_lshl_b32 s54, s5, 9\ns_lshl_b32 s11, s7, 6\ns_add_u32 s54, s54, s11\ns_mul_i32 s54, s54, 896")
e("s_mov_b32 s46, 0x05040100\ns_mov_b32 s47, 0x07060302")
woflags = P["woflags"].replace("+", " ").replace("none", "")
RAW = 96; WOB = 128
WOH = [WOB + 32 * ks for ks in range(4)]
def wo_load(ks):
    rowoff = ((ks >> 1) * 256 + (ks & 1) * 32) * 896
    R = P["worr"]
    for j0 in range(0, 8, R):
        if P["woprio"]:
            e("s_setprio 3")
        for j in range(j0, j0 + R):
            e("s_add_u32 s12, s54, %d" % (rowoff + j * 896))
            e("buffer_load_dwordx4 v[%d:%d], v47, s[32:35], s12 offen %s" % (RAW + 4 * j, RAW + 4 * j + 3, woflags))
        if P["woprio"]:
            e("s_setprio 0")
        e("s_waitcnt vmcnt(0)")
    for t in range(8):
        for p in range(4):
            sel = "s47" if (t & 1) else "s46"
            e("v_perm_b32 v%d, v%d, v%d, %s" % (WOH[ks] + t * 4 + p, RAW + 4 * (2 * p + 1) + (t >> 1), RAW + 4 * (2 * p) + (t >> 1), sel))
NPRE = P["wopre"]
for ks in range(NPRE):
    wo_load(ks)
stamp(3)
e("s_barrier            ; B2")
e("s_barrier            ; B3")
e("v_and_b32 v4, 1, v2\nv_lshlrev_b32 v4, 6, v4\nv_add_u32 v4, %d, v4" % MAXX)
for i in range(4):
    e("ds_read_b128 v[%d:%d], v4 offset:%d" % (8 + 4 * i, 8 + 4 * i + 3, 16 * i))
for i in range(4):
    e("ds_read_b128 v[%d:%d], v4 offset:%d" % (24 + 4 * i, 24 + 4 * i + 3, LSUM - MAXX + 16 * i))
e("s_waitcnt lgkmcnt(0)")
e("v_max3_f32 v40, v8, v9, v10")
for i in range(3, 15, 2):
    e("v_max3_f32 v40, v40, v%d, v%d" % (8 + i, 8 + i + 1))
e("v_max_f32 v40, v40, v23")
e("v_add_f32 v42, v24, v25")
for i in range(2, 16):
    e("v_add_f32 v42, v42, v%d" % (24 + i))
e("v_mov_b32 v41, s9\nv_mov_b32 v43, s9")
e("s_lshl_b32 s10, s8, 2\ns_add_u32 s10, s10, s7\ns_lshl_b32 s10, s10, 5\ns_add_u32 s10, s10, %d" % WS_ST)
e("v_lshlrev_b32 v5, 4, v1\nv_add_u32 v5, s10, v5")
e("s_cmp_lg_u32 s3, 0\ns_cbranch_scc1 L_nostatpub")
e("s_mov_b64 exec, 3")
e("global_store_dwordx4 v5, v[40:43], s[%d:%d] sc1" % (sWS, sWS + 1))
e("s_mov_b64 exec, -1")
e("L_nostatpub:")
e("s_cmp_lg_u32 s3, 0\ns_cbranch_scc1 L_h_b4")
e("s_lshl_b32 s10, s8, 7\ns_add_u32 s10, s10, %d" % WS_ST)
e("v_and_b32 v5, 1, v1\nv_lshlrev_b32 v5, 4, v5\nv_add_u32 v5, s10, v5")
e("s_mov_b32 s13, 0")
e("L_polls:")
for s_ in range(4):
    e("global_load_dwordx4 v[%d:%d], v5, s[%d:%d] offset:%d sc1" % (8 + 4 * s_, 8 + 4 * s_ + 3, sWS, sWS + 1, 32 * s_))
e("s_add_u32 s13, s13, 1")
e("s_waitcnt vmcnt(0)")
e("s_mov_b64 s[40:41], 0")
for s_ in range(4):
    e("v_cmp_ne_u32 s[42:43], s9, v%d\nv_cmp_ne_u32 vcc, s9, v%d" % (8 + 4 * s_ + 1, 8 + 4 * s_ + 3))
    e("s_or_b64 s[40:41], s[40:41], s[42:43]\ns_or_b64 s[40:41], s[40:41], vcc")
e("s_cmp_gt_u32 s13, %d\ns_cbranch_scc1 L_polls_done" % P["spinmax"])
e("s_cmp_eq_u64 s[40:41], 0\ns_cbranch_scc1 L_polls_done")
e("s_sleep 8\ns_branch L_polls")
e("L_polls_done:")
e("v_max3_f32 v24, v8, v12, v16\nv_max_f32 v24, v24, v20")
e("s_mov_b32 s15, 0x%08x" % CEXP)
for s_ in range(4):
    e("v_sub_f32 v%d, v%d, v24\nv_mul_f32 v%d, s15, v%d" % (26 + s_, 8 + 4 * s_, 26 + s_, 26 + s_))
for s_ in range(4):
    e("v_exp_f32 v%d, v%d" % (26 + s_, 26 + s_))
e("s_nop 0")
e("v_mul_f32 v30, v26, v10\nv_fmac_f32 v30, v27, v14\nv_fmac_f32 v30, v28, v18\nv_fmac_f32 v30, v29, v22")
e("v_rcp_f32 v31, v30")
e("s_nop 0")
e("v_fma_f32 v32, -v30, v31, 2.0\nv_mul_f32 v31, v31, v32")
for s_ in range(4):
    e("v_mul_f32 v%d, v%d, v31" % (26 + s_, 26 + s_))
e("s_nop 1")
for s_ in range(4):
    e("v_mov_b32_dpp v%d, v%d quad_perm:[0,0,0,0] row_mask:0xf bank_mask:0xf" % (48 + s_, 26 + s_))
    e("v_mov_b32_dpp v%d, v%d quad_perm:[1,1,1,1] row_mask:0xf bank_mask:0xf" % (52 + s_, 26 + s_))
e("L_h_b4:")
for ks in range(NPRE, 4):
    wo_load(ks)
stamp(4)
e("s_lshl_b32 s10, s8, 2\ns_add_u32 s10, s10, s7\ns_lshl_b32 s10, s10, 12\ns_add_u32 s10, s10, %d" % WS_OP)
e("v_lshlrev_b32 v5, 4, v1\nv_add_u32 v5, s10, v5")
e("v_lshlrev_b32 v6, 1, v1\nv_add_u32 v6, %d, v6" % OST)
e("v_lshlrev_b32 v7, 4, v3\nv_add_u32 v7, %d, v7" % OST)
e("s_lshl_b32 s11, s5, 2\ns_add_u32 s11, s11, s7")
e("s_mul_i32 s12, s6, 28\ns_lshl_b32 s13, s3, 3\ns_add_u32 s12, s12, s13\ns_lshl_b32 s12, s12, 5\ns_add_u32 s12, s12, s11\ns_lshl_b32 s12, s12, 7\ns_add_u32 s12, s12, %d" % WS_OUT)
e("v_lshrrev_b32 v44, 1, v2\nv_lshlrev_b32 v44, 12, v44")
e("v_and_b32 v45, 1, v2\nv_lshl_add_u32 v45, v45, 2, v3\nv_lshl_add_u32 v44, v45, 4, v44\nv_add_u32 v44, s12, v44")
e("s_mul_i32 s12, s6, 28\ns_add_u32 s12, s12, s11\ns_lshl_b32 s12, s12, 12\ns_add_u32 s12, s12, %d" % WS_OUT)
e("v_lshlrev_b32 v46, 4, v1\nv_add_u32 v46, s12, v46")
e("s_mov_b32 s48, 0xffff0000\ns_mov_b32 s49, 0")
e("s_mov_b32 s50, 0\ns_mov_b32 s51, 0x0000ffff")
e("s_mov_b32 s52, 0\ns_mov_b32 s53, 0xffff0000")
e("s_barrier            ; B4")
stamp(5)
e("s_cmp_lg_u32 s3, 0\ns_cbranch_scc1 L_h_b5")
e("s_mov_b32 s13, 0")
e("L_polla:")
for s_ in range(4):
    e("global_load_dwordx4 v[%d:%d], v5, s[%d:%d] offset:%d sc1" % (8 + 4 * s_, 8 + 4 * s_ + 3, sWS, sWS + 1, 1024 * s_))
e("s_add_u32 s13, s13, 1")
e("s_waitcnt vmcnt(0)")
e("s_mov_b64 s[40:41], 0")
for s_ in range(4):
    e("v_cmp_ne_u32 s[42:43], s9, v%d\nv_cmp_ne_u32 vcc, s9, v%d" % (8 + 4 * s_ + 1, 8 + 4 * s_ + 3))
    e("s_or_b64 s[40:41], s[40:41], s[42:43]\ns_or_b64 s[40:41], s[40:41], vcc")
e("s_cmp_gt_u32 s13, %d\ns_cbranch_scc1 L_polla_done" % P["spinmax"])
e("s_cmp_lg_u64 s[40:41], 0\ns_cbranch_scc1 L_polla")
e("L_polla_done:")
e("v_mul_f32 v24, v48, v8\nv_mul_f32 v25, v52, v10")
for s_ in range(1, 4):
    e("v_fmac_f32 v24, v%d, v%d\nv_fmac_f32 v25, v%d, v%d" % (48 + s_, 8 + 4 * s_, 52 + s_, 10 + 4 * s_))
e("v_cvt_pk_bf16_f32 v24, v24, v25")
e("ds_write_b16 v6, v24\nds_write_b16_d16_hi v6, v24 offset:128")
e("s_waitcnt lgkmcnt(0)")
e("L_h_b5:")
stamp(6)
e("s_barrier")
for ks in range(4):
    e("ds_read_b128 v[%d:%d], v7 offset:%d" % (8 + 4 * ks, 8 + 4 * ks + 3, ks * 64))
OA = 56
for ks in range(4):
    e("s_waitcnt lgkmcnt(%d)" % (3 - ks))
    for t in range(8):
        c = "0" if ks == 0 else "v[%d:%d]" % (OA + 4 * t, OA + 4 * t + 3)
        e("v_mfma_f32_16x16x32_bf16 v[%d:%d], v[%d:%d], v[%d:%d], %s" % (OA + 4 * t, OA + 4 * t + 3, 8 + 4 * ks, 8 + 4 * ks + 3, WOH[ks] + t * 4, WOH[ks] + t * 4 + 3, c))
e("v_mov_b32 v25, s9\nv_mov_b32 v27, s9")
e("s_nop 7")
e("v_cndmask_b32 v24, v%d, v%d, s[48:49]\nv_cndmask_b32 v26, v%d, v%d, s[48:49]" % (OA, OA + 8, OA + 4, OA + 12))
e("v_cndmask_b32 v24, v24, v%d, s[50:51]\nv_cndmask_b32 v26, v26, v%d, s[50:51]" % (OA + 16, OA + 20))
e("v_cndmask_b32 v24, v24, v%d, s[52:53]\nv_cndmask_b32 v26, v26, v%d, s[52:53]" % (OA + 24, OA + 28))
e("s_cmp_eq_u32 s3, 3\ns_cselect_b32 s12, 0x00ff00ff, -1\ns_mov_b32 exec_lo, s12\ns_mov_b32 exec_hi, s12")
e("global_store_dwordx4 v44, v[24:27], s[%d:%d] sc1" % (sWS, sWS + 1))
e("s_mov_b64 exec, -1")
stamp(7)
e("s_cmp_lg_u32 s3, 0\ns_cbranch_scc1 L_h_done")
e("s_cmp_ge_u32 s11, 28\ns_cbranch_scc1 L_h_done")
e("s_mov_b32 s13, 0")
e("L_pollo:")
for i in range(4):
    e("global_load_dwordx4 v[%d:%d], v46, s[%d:%d] offset:%d sc1" % (8 + 4 * i, 8 + 4 * i + 3, sWS, sWS + 1, 1024 * i))
e("s_add_u32 s13, s13, 1")
e("s_waitcnt vmcnt(0)")
e("s_mov_b64 s[40:41], 0")
for i in range(4):
    e("v_cmp_ne_u32 s[42:43], s9, v%d\nv_cmp_ne_u32 vcc, s9, v%d" % (8 + 4 * i + 1, 8 + 4 * i + 3))
    e("s_or_b64 s[40:41], s[40:41], s[42:43]\ns_or_b64 s[40:41], s[40:41], vcc")
e("s_cmp_gt_u32 s13, %d\ns_cbranch_scc1 L_pollo_done" % P["spinmax"])
e("s_cmp_lg_u64 s[40:41], 0\ns_cbranch_scc1 L_pollo")
e("L_pollo_done:")
e("v_add_f32 v24, v8, v12\nv_add_f32 v25, v10, v14\nv_add_f32 v26, v16, v20\nv_add_f32 v27, v18, v22")
e("v_add_f32 v24, v24, v26\nv_add_f32 v25, v25, v27")
e("s_nop 1")
e("v_add_f32_dpp v24, v24, v24 row_ror:8 row_mask:0xf bank_mask:0xf\nv_add_f32_dpp v25, v25, v25 row_ror:8 row_mask:0xf bank_mask:0xf")
e("v_mov_b32 v26, v24\nv_mov_b32 v27, v25\ns_nop 1")
e("v_permlane16_swap_b32 v24, v26\nv_permlane16_swap_b32 v25, v27")
e("v_add_f32 v24, v24, v26\nv_add_f32 v25, v25, v27")
e("v_mov_b32 v26, v24\nv_mov_b32 v27, v25\ns_nop 1")
e("v_permlane32_swap_b32 v24, v26\nv_permlane32_swap_b32 v25, v27")
e("v_add_f32 v24, v24, v26\nv_add_f32 v25, v25, v27")
e("v_cvt_pk_bf16_f32 v24, v24, v25")
e("s_mul_i32 s12, s6, 896\ns_lshl_b32 s13, s11, 5\ns_add_u32 s12, s12, s13")
e("v_lshlrev_b32 v26, 2, v1\nv_add_u32 v26, s12, v26")
e("s_mov_b64 exec, 0xff")
e("global_store_dword v26, v24, s[%d:%d]" % (sOUT, sOUT + 1))
e("s_cmp_lg_u32 s2, 0\ns_cbranch_scc1 L_h_done")
e("s_mov_b64 exec, 1")
e("v_mov_b32 v26, %d\nv_mov_b32 v27, s9" % WS_E)
e("global_store_dword v26, v27, s[%d:%d] sc1" % (sWS, sWS + 1))
e("L_h_done:")
stamp(8)
e("s_add_u32 s3, s3, 4")
stamp_flush(10 if P.get('qdbg', 0) else 9, "h")
e("L_end:")
e("s_endpgm")

e('.section .rodata,"a"\n.p2align 6\n.amdhsa_kernel %s' % KN)
e("  .amdhsa_next_free_vgpr 256\n  .amdhsa_next_free_sgpr 96\n  .amdhsa_accum_offset 256")
e("  .amdhsa_group_segment_fixed_size 0\n  .amdhsa_kernarg_size 64\n  .amdhsa_user_sgpr_count 2\n  .amdhsa_user_sgpr_kernarg_segment_ptr 1\n  .amdhsa_system_sgpr_workgroup_id_x 1")
e("  .amdhsa_float_denorm_mode_32 3")
e(".end_amdhsa_kernel")
open(out, "w").write("\n".join(L) + "\n")
```

```python
import sys, struct, copy

out = sys.argv[1]
P = dict(stamps=0, DI=6, DT=9, LAK=2, LAV=2, HOLD=4, B0AT=2, PBL=2, PEVERY=2, PMAX=0, PB2=2,
         NS=24, B3B=99, B3A=13, wo4a=1, wopre=2, worr=8, woprio=1, prio=1, spinmax=200000,
         kflags="nt", vflags="nt", wqflags="nt", woflags="nt", xflags="none", asleep=0, osleep=0, ssleep=8, MAP=1, RANK=0, XLO=1, XHI=1, TLO=85, THI=170, RK1=9, RK2=3)
for a in sys.argv[2:]:
    k, v = a.split("=")
    P[k] = int(v) if v.lstrip("-").isdigit() else v
def fl(name):
    return P[name].replace("+", " ").replace("none", "")
kflags, vflags, wqflags, woflags, xflags = fl("kflags"), fl("vflags"), fl("wqflags"), fl("woflags"), fl("xflags")
STAMPS = P["stamps"]
NS = P["NS"]
NP = 32 - NS
POOL = NP > 0
assert NP in (0, 8)

L = []
def e(s=""):
    L.extend(s.split("\n"))

KN = "standalone__gqa_block_cached__decode_kernel"

WQS = 131072
PB = 131072
HS = 2112
PPB = PB + 4352
TKB = PPB + 4352
FME = TKB + 192
QB = 147456
MAXX = QB + 1024
LSUM = MAXX + 128
TAGL = LSUM + 128
OST = TAGL + 64
DBGL = OST + 256
LVL = DBGL + 64
LDS_TOTAL = LVL + 64
assert FME + 8 <= QB

WS_E = 0x0
WS_CNT = 0x10000
WS_ST = 0x30000
WS_OP = 0x40000
WS_OUT = 0x140000
WS_Q = 0x300000
WS_PP = 0x400000
WS_STAMP = 400 * 1024 * 1024
TAGC = 0x9E3779B9
CEXP = struct.unpack("<I", struct.pack("<f", 1.4426950408889634 / 16.0))[0]

e("; @launch grid=(256,1,1) block=(512,1,1) lds=%d" % LDS_TOTAL)
e('.amdgcn_target "amdgcn-amd-amdhsa--gfx950"')
e(".text")
e(".globl %s\n.p2align 8\n.type %s,@function\n%s:" % (KN, KN, KN))

sX, sK, sV, sWQ, sWO, sOUT, sDBG, sWS = 16, 18, 20, 22, 24, 26, 28, 30
stampregs = list(range(64, 84, 2))
def stamp(i):
    if STAMPS:
        e("s_memrealtime s[%d:%d]\ns_waitcnt lgkmcnt(0)" % (stampregs[i], stampregs[i] + 1))
def stamp_flush(n):
    if STAMPS != 1:
        return
    e("s_getreg_b32 s84, hwreg(HW_REG_XCC_ID)")
    e("s_lshl_b32 s85, s2, 3\ns_add_u32 s85, s85, s3\ns_lshl_b32 s85, s85, 7\ns_add_u32 s85, s85, %d" % WS_STAMP)
    e("s_add_u32 s86, s%d, s85\ns_addc_u32 s87, s%d, 0" % (sWS, sWS + 1))
    e("s_mov_b64 exec, 1\nv_mov_b32 v1, 0")
    for i in range(10):
        k = min(i, n - 1)
        e("v_mov_b32 v2, s%d\nv_mov_b32 v3, s%d" % (stampregs[k], stampregs[k] + 1))
        e("global_store_dwordx2 v1, v[2:3], s[86:87] offset:%d\ns_nop 1" % (i * 8))
    e("v_mov_b32 v2, s84\nv_mov_b32 v3, 0\nglobal_store_dwordx2 v1, v[2:3], s[86:87] offset:80\ns_waitcnt vmcnt(0)")

def spin_guard(cnt, label):
    e("s_add_u32 %s, %s, 1\ns_cmp_gt_u32 %s, %d\ns_cbranch_scc1 %s" % (cnt, cnt, cnt, P["spinmax"], label))

def tags_ok(regs, okl, tmp0, tmp1):
    if len(regs) <= 8:
        e("s_mov_b64 s[40:41], 0")
        for r in regs:
            e("v_cmp_ne_u32 vcc, s9, v%d\ns_or_b64 s[40:41], s[40:41], vcc" % r)
    else:
        e("v_min3_u32 v%d, v%d, v%d, v%d\nv_max3_u32 v%d, v%d, v%d, v%d" % (tmp0, regs[0], regs[1], regs[2], tmp1, regs[0], regs[1], regs[2]))
        k = 3
        while k < len(regs):
            if k + 1 < len(regs):
                e("v_min3_u32 v%d, v%d, v%d, v%d\nv_max3_u32 v%d, v%d, v%d, v%d" % (tmp0, tmp0, regs[k], regs[k + 1], tmp1, tmp1, regs[k], regs[k + 1])); k += 2
            else:
                e("v_min_u32 v%d, v%d, v%d\nv_max_u32 v%d, v%d, v%d" % (tmp0, tmp0, regs[k], tmp1, tmp1, regs[k])); k += 1
        e("v_cmp_ne_u32 s[40:41], s9, v%d\nv_cmp_ne_u32 vcc, s9, v%d\ns_or_b64 s[40:41], s[40:41], vcc" % (tmp0, tmp1))
    e("s_cmp_eq_u64 s[40:41], 0\ns_cbranch_scc1 %s" % okl)

e("s_cmp_ge_u32 s2, 256")
e("s_cbranch_scc1 L_end")
if STAMPS:
    e("s_memrealtime s[64:65]")
e("s_load_dwordx16 s[16:31], s[0:1], 0")
e("v_lshrrev_b32 v1, 6, v0")
e("s_and_b32 s56, s2, 7             ; x")
e("v_readfirstlane_b32 s3, v1       ; wave")
e("s_lshr_b32 s4, s2, 3             ; y")
if P["MAP"] == 1:
    e("s_lshr_b32 s7, s56, 1            ; sp")
    e("s_xor_b32 s8, s56, s7\ns_and_b32 s8, s8, 1")
    e("s_lshl_b32 s5, s4, 1\ns_or_b32 s8, s8, s5              ; pair")
    e("s_and_b32 s5, s8, 7              ; hkv\ns_lshr_b32 s6, s8, 3             ; b")
else:
    e("s_mov_b32 s5, s56\ns_and_b32 s6, s4, 7\ns_lshr_b32 s7, s4, 3\ns_lshl_b32 s8, s6, 3\ns_add_u32 s8, s8, s5")
e("v_and_b32 v1, 63, v0             ; lane")
e("s_cmp_ge_u32 s3, 4")
e("s_cbranch_scc1 L_helper")

vKoff = list(range(2, 10)); vKrd = list(range(10, 18)); vVoff = list(range(18, 22)); vVrd = list(range(22, 26))
vPrd, vPwr, vQrd, vMrd, vMwr, vT3 = 26, 27, 28, 29, 30, 31
qB = 32; Sreg = 64; HOLDR = 128
Pa = 128; Vb = 132; acc = 148
vM, vMc, vL, vU = 164, 165, 166, 168
vA = [200, 201, 202, 203]
vOne, vCnt, vTk, vAd = 204, 205, 206, 208
vPP = 213

e("s_lshl_b32 s10, s3, 15")
e("s_lshl_b32 s11, s3, 12")
e("v_lshrrev_b32 v64, 5, v1\nv_and_b32 v65, 31, v1\nv_xor_b32 v65, v65, v64\nv_lshlrev_b32 v65, 4, v65")
e("v_lshl_add_u32 v%d, v64, 9, v65" % vKoff[0])
for n in range(1, 8):
    e("v_xor_b32 v%d, %d, v%d" % (vKoff[n], n << 5, vKoff[0]))
e("s_waitcnt lgkmcnt(0)")
e("s_lshl_b32 s12, s8, 21\ns_lshl_b32 s59, s7, 19\ns_add_u32 s13, s12, s59")
e("s_add_u32 s32, s%d, s13\ns_addc_u32 s33, s%d, 0\ns_mov_b32 s34, 0x80000\ns_mov_b32 s35, 0x20000" % (sK, sK + 1))
e("s_add_u32 s36, s%d, s12\ns_addc_u32 s37, s%d, 0\ns_mov_b32 s38, 0x200000\ns_mov_b32 s39, 0x20000" % (sV, sV + 1))

DI, LAK, LAV, DT = P["DI"], P["LAK"], P["LAV"], P["DT"]
class St:
    def __init__(self):
        self.ops = 0
        self.done = 0
        self.loads = 0
        self.opof = {}
        self.freed = 0
        self.use_level = False
        self.di0 = P.get('DI0', 0)
lbl = [0]
st = St()
NUNITS = 32 + NS + (2 if POOL else 0)
def wait_ops(x):
    if st.ops - st.done > x:
        e("s_waitcnt vmcnt(%d)" % x)
        st.done = st.ops - x
def wait_op(idx):
    if st.done <= idx:
        wait_ops(st.ops - 1 - idx)
def issue_load(di=None, dynsoff=None):
    n, jj = st.loads // 4, st.loads % 4
    di = (st.di0 if st.di0 else DI) if di is None else di
    assert n < st.freed + 8 and n < NUNITS
    if P["RANK"] and st.use_level and st.ops - st.done > di - 1 - P["XLO"]:
        lbl[0] += 1
        k = lbl[0]
        e("s_cmp_lg_u32 s55, 0\ns_cbranch_scc1 L_lv%da\ns_waitcnt vmcnt(%d)\nL_lv%da:" % (k, di - 1 - P["XLO"], k))
        e("s_cmp_eq_u32 s55, 2\ns_cbranch_scc1 L_lv%db\ns_waitcnt vmcnt(%d)\nL_lv%db:" % (k, di - 1, k))
        wait_ops(di - 1 + P["XHI"])
    else:
        wait_ops(di - 1)
    if jj == 0:
        e("s_add_u32 m0, s10, %d" % ((n % 8) * 4096))
        if n < 32:
            e("s_add_u32 s14, s11, %d" % (n * 16384))
        elif n < 32 + NS:
            e("s_add_u32 s14, s59, %d" % ((n - 32) * 16384))
        else:
            assert dynsoff is not None
            e("s_mov_b32 s14, %s" % dynsoff)
    if n < 32:
        e("buffer_load_dwordx4 v%d, s[32:35], s14 offen offset:%d %s lds" % (vKoff[(n & 1) * 4 + jj], jj * 1024, kflags))
    else:
        e("buffer_load_dwordx4 v%d, s[36:39], s14 offen offset:%d %s lds" % (vVoff[jj], jj * 1024, vflags))
    st.opof[st.loads] = st.ops
    st.ops += 1; st.loads += 1
def pump_until(nunits, di=None):
    nunits = min(nunits, 32 + NS, st.freed + 8)
    while st.loads < 4 * nunits:
        issue_load(di)
def pump(k, di=None):
    for _ in range(k):
        if st.loads // 4 < min(32 + NS, st.freed + 8):
            issue_load(di)
def need(nunits):
    wait_op(st.opof[4 * nunits - 1])

pump(P.get('DI0', 0) or DI)
e("v_lshrrev_b32 v64, 3, v1\nv_lshrrev_b32 v65, 1, v64\nv_and_b32 v65, 3, v65\nv_lshlrev_b32 v65, 1, v65")
e("v_and_b32 v66, 7, v1\nv_xor_b32 v66, v66, v65\nv_lshlrev_b32 v66, 4, v66\nv_lshl_add_u32 v66, v64, 9, v66")
e("s_lshl_b32 s15, s3, 7\nv_add_u32 v%d, s15, v66" % vVoff[0])
for jj in range(1, 4):
    e("v_add_u32 v%d, %d, v%d" % (vVoff[jj], jj * 3072, vVoff[0]))
e("v_and_b32 v64, 15, v1             ; n\nv_lshrrev_b32 v65, 4, v1          ; g")
e("v_xor_b32 v66, v64, v65\nv_lshlrev_b32 v66, 4, v66\nv_lshl_add_u32 v66, v64, 9, v66\nv_add_u32 v%d, s10, v66" % vKrd[0])
for i in range(1, 8):
    e("v_xor_b32 v%d, %d, v%d" % (vKrd[i], i << 6, vKrd[0]))
e("v_and_b32 v66, 1, v65\nv_lshrrev_b32 v67, 3, v64\nv_lshl_or_b32 v67, v66, 1, v67")
e("v_lshrrev_b32 v68, 2, v64\nv_lshl_add_u32 v68, v66, 2, v68\nv_lshlrev_b32 v68, 7, v68")
e("v_lshrrev_b32 v69, 1, v65\nv_lshl_add_u32 v68, v69, 11, v68\nv_and_b32 v70, 3, v64\nv_lshl_add_u32 v68, v70, 3, v68\nv_add_u32 v68, s10, v68")
for t in range(4):
    e("v_xor_b32 v71, %d, v67\nv_lshl_add_u32 v%d, v71, 5, v68" % (t, vVrd[t]))
e("v_and_b32 v66, 1, v64             ; head\nv_mul_u32_u24 v72, %d, v66" % HS)
e("v_lshl_add_u32 v%d, v65, 4, v72\nv_add_u32 v%d, %d, v%d" % (vPrd, vPrd, PB, vPrd))
e("s_lshr_b32 s15, s3, 1\ns_lshl_b32 s15, s15, 5\ns_and_b32 s40, s3, 1\ns_lshl_b32 s40, s40, 3\ns_add_u32 s15, s15, s40\ns_add_u32 s15, s15, %d" % PB)
e("v_lshl_add_u32 v%d, v69, 6, v72\nv_and_b32 v73, 1, v65\nv_lshl_add_u32 v%d, v73, 4, v%d\nv_add_u32 v%d, s15, v%d" % (vPwr, vPwr, vPwr, vPwr, vPwr))
e("v_lshlrev_b32 v%d, 9, v66\nv_lshl_add_u32 v%d, v65, 4, v%d\nv_add_u32 v%d, %d, v%d" % (vQrd, vQrd, vQrd, vQrd, QB, vQrd))
e("v_lshlrev_b32 v%d, 6, v66\nv_add_u32 v%d, %d, v%d" % (vMrd, vMrd, MAXX, vMrd))
e("s_lshl_b32 s15, s3, 4\nv_lshl_add_u32 v%d, v65, 2, v%d\nv_add_u32 v%d, s15, v%d" % (vMwr, vMrd, vMwr, vMwr))

HOLDN = P["HOLD"]; B0AT = P["B0AT"]
pump_until(8)
if B0AT == 0:
    e("s_barrier")
for T in range(HOLDN):
    need(2 * T + 2)
    for i in range(8):
        r = HOLDR + 32 * T + 4 * i
        e("ds_read_b128 v[%d:%d], v%d offset:%d" % (r, r + 3, vKrd[i], (T % 4) * 8192))
    e("s_waitcnt lgkmcnt(0)")
    st.freed = 2 * T + 2
    pump_until(st.freed + 8)
    if B0AT == T + 1:
        e("s_barrier")
stamp(1)
st.di0 = P.get("DI1", 0)
e("s_barrier")
stamp(2)
for i in range(8):
    e("ds_read_b128 v[%d:%d], v%d offset:%d" % (qB + 4 * i, qB + 4 * i + 3, vQrd, i * 64))
e("v_mov_b32 v%d, %d\nds_read_b32 v%d, v%d\ns_waitcnt lgkmcnt(0)\nv_readfirstlane_b32 s9, v%d" % (vT3, TAGL, vT3, vT3, vT3))

def mfma16(d, a, b, c):
    e("v_mfma_f32_16x16x32_bf16 v[%d:%d], v[%d:%d], v[%d:%d], %s" % (d, d + 3, a, a + 3, b, b + 3, "0" if c is None else "v[%d:%d]" % (c, c + 3)))
def ktile(T, from_regs):
    e("; K tile %d" % T)
    S = Sreg + 4 * T
    if from_regs:
        for i in range(8):
            mfma16(S, HOLDR + 32 * T + 4 * i, qB + 4 * i, None if i == 0 else S)
        return
    nd = 2 * T + 2
    pump_until(nd + LAK)
    need(nd)
    for i in range(8):
        e("ds_read_b128 v[%d:%d], v%d offset:%d" % (AregK + 4 * i, AregK + 4 * i + 3, vKrd[i], (T % 4) * 8192))
    for i in range(8):
        e("s_waitcnt lgkmcnt(%d)" % (7 - i))
        mfma16(S, AregK + 4 * i, qB + 4 * i, None if i == 0 else S)
    st.freed = nd
    if T == HOLDN:
        pump(DI)
if HOLDN == 4:
    order = [(0, True)] + [(T, False) for T in range(4, 8)] + [(1, True), (2, True), (3, True)] + [(T, False) for T in range(8, 16)]
    AregK = HOLDR
else:
    order = [(T, False) for T in range(HOLDN, HOLDN + 4)] + [(T, True) for T in range(HOLDN)] + [(T, False) for T in range(HOLDN + 4, 16)]
    AregK = HOLDR + 32 * HOLDN
def read_level(k):
    e("v_mov_b32 v%d, %d\nds_read_b32 v%d, v%d\ns_waitcnt lgkmcnt(0)\nv_readfirstlane_b32 s55, v%d" % (vT3, LVL + 4 * k, vT3, vT3, vT3))
    st.use_level = True
for idx, (T, fr) in enumerate(order):
    if HOLDN and 2 <= idx < HOLDN + 4:
        pump(P["PBL"])
    if P["RANK"] and idx == P["RK1"]:
        read_level(0)
    ktile(T, fr)
stamp(3)
st.di0 = 0
e("; softmax")
pump(1, DT)
e("s_nop 7")
e("v_max3_f32 v%d, v%d, v%d, v%d" % (vM, Sreg, Sreg + 1, Sreg + 2))
i = 3; cnt = 0
while i < 64:
    if i + 1 < 64:
        e("v_max3_f32 v%d, v%d, v%d, v%d" % (vM, vM, Sreg + i, Sreg + i + 1)); i += 2
    else:
        e("v_max_f32 v%d, v%d, v%d" % (vM, vM, Sreg + i)); i += 1
    cnt += 1
    if P["PMAX"] and cnt % P["PMAX"] == 0:
        pump(1, DT)
e("s_mov_b32 exec_lo, 0x00030003\ns_mov_b32 exec_hi, 0x00030003")
e("ds_write_b32 v%d, v%d" % (vMwr, vM))
e("s_mov_b64 exec, -1")
pump(P["PB2"], DT)
e("s_waitcnt lgkmcnt(0)")
e("s_barrier")
for i in range(4):
    e("ds_read_b128 v[%d:%d], v%d offset:%d" % (vU + 4 * i, vU + 4 * i + 3, vMrd, 16 * i))
e("s_waitcnt lgkmcnt(0)")
e("v_max3_f32 v%d, v%d, v%d, v%d" % (vM, vU, vU + 1, vU + 2))
for i in range(3, 15, 2):
    e("v_max3_f32 v%d, v%d, v%d, v%d" % (vM, vM, vU + i, vU + i + 1))
e("v_max_f32 v%d, v%d, v%d" % (vM, vM, vU + 15))
e("s_mov_b32 s15, 0x%08x" % CEXP)
e("v_mul_f32 v%d, s15, v%d" % (vMc, vM))
e("v_mov_b32 v%d, 0\nv_mov_b32 v%d, 0" % (vL, vL + 1))
def fold(p0):
    e("v_add_f32 v%d, v%d, v%d\nv_add_f32 v%d, v%d, v%d" % (vL, vL, p0, vL + 1, vL + 1, p0 + 1))
    e("v_add_f32 v%d, v%d, v%d\nv_add_f32 v%d, v%d, v%d" % (vL, vL, p0 + 2, vL + 1, vL + 1, p0 + 3))
    e("v_cvt_pk_bf16_f32 v%d, v%d, v%d\nv_cvt_pk_bf16_f32 v%d, v%d, v%d" % (p0, p0, p0 + 1, p0 + 1, p0 + 2, p0 + 3))
for T in range(16):
    s0 = Sreg + 4 * T
    for r in range(4):
        e("v_fma_f32 v%d, v%d, s15, -v%d" % (s0 + r, s0 + r, vMc))
    for r in range(4):
        e("v_exp_f32 v%d, v%d" % (s0 + r, s0 + r))
    if T % P["PEVERY"] == P["PEVERY"] - 1:
        pump(1, DT)
    if T > 0:
        fold(Sreg + 4 * (T - 1))
e("s_nop 0")
fold(Sreg + 60)
e("v_add_f32 v%d, v%d, v%d" % (vL, vL, vL + 1))
e("s_mov_b32 exec_lo, 0x00030003\ns_mov_b32 exec_hi, 0x00030003")
for T in range(16):
    e("ds_write_b64 v%d, v[%d:%d] offset:%d" % (vPwr, Sreg + 4 * T, Sreg + 4 * T + 1, T * 128))
e("ds_write_b32 v%d, v%d offset:%d" % (vMwr, vL, LSUM - MAXX))
e("s_mov_b64 exec, -1")
for t in range(16):
    e("v_mov_b32 v%d, 0" % (acc + t))
if POOL:
    e("s_lshl_b32 s12, s8, 7\ns_add_u32 s12, s12, %d\nv_mov_b32 v%d, s12\nv_mov_b32 v%d, 1\nv_mov_b32 v%d, %d" % (WS_CNT, vCnt, vOne, vTk, TKB))
    e("v_add_u32 v%d, %d, v%d" % (vPP, PPB - PB, vPrd))
pump(P["PB2"], DT)
e("s_waitcnt lgkmcnt(0)")
e("s_barrier")
stamp(4)

def vunit_compute(paddr, poff, vaddrs, slot):
    e("ds_read_b128 v[%d:%d], v%d offset:%d" % (Pa, Pa + 3, paddr, poff))
    for t in range(4):
        e("ds_read_b64_tr_b16 v[%d:%d], v%d offset:%d" % (Vb + 4 * t, Vb + 4 * t + 1, vaddrs[t], slot))
        e("ds_read_b64_tr_b16 v[%d:%d], v%d offset:%d" % (Vb + 4 * t + 2, Vb + 4 * t + 3, vaddrs[t], slot + 1024))
    for t in range(4):
        e("s_waitcnt lgkmcnt(%d)" % (6 - 2 * t))
        mfma16(acc + 4 * t, Pa, Vb + 4 * t, acc + 4 * t)
def vunit(u):
    n = 32 + u
    e("; V unit %d" % u)
    if P["RANK"] and u == P["RK2"]:
        read_level(1)
    pump_until(n + 1 + LAV)
    need(n + 1)
    vunit_compute(vPrd, u * 64, vVrd, (n % 8) * 4096)
    st.freed = n + 1
    if u in (7, 15) or (u == 23 and not POOL):
        stamp(7 + (u - 7) // 8)

sI, sSo, sPo0, sPo1, sPo2, sV0, sV1, sTk = 60, 61, 62, 63, 88, 89, 90, 91
def decode(tk, po, valid):
    e("s_and_b32 s12, %s, 3\ns_lshr_b32 s13, %s, 2" % (tk, tk))
    e("s_lshl_b32 s%d, s12, 3\ns_add_u32 s%d, s%d, s13\ns_lshl_b32 s%d, s%d, 6" % (po, po, po, po, po))
    e("s_lshl_b32 s12, s12, 19\ns_lshl_b32 s13, s13, 14\ns_add_u32 s12, s12, s13\ns_add_u32 s12, s12, %d" % (NS * 16384))
    e("s_cmp_lt_u32 %s, %d\ns_cselect_b32 s%d, s12, 0x7fff0000" % (tk, 4 * NP, sSo))
    if valid is not None:
        e("s_cselect_b32 s%d, 1, 0" % valid)
def get_ticket_lds(dyn):
    lbl[0] += 1
    k = lbl[0]
    e("s_mov_b32 s15, 0\nL_tk%d:" % k)
    e("ds_read_b32 v%d, v%d%s\ns_waitcnt lgkmcnt(0)\nv_readfirstlane_b32 s%d, v%d" % (vAd + 5 - 5 + 0, vTk, "" if dyn is None else " offset:%d" % (4 * dyn), sTk, vAd))
    spin_guard("s15", "L_tkd%d" % k)
    e("s_cmp_eq_u32 s%d, -1\ns_cbranch_scc1 L_tk%d\nL_tkd%d:" % (sTk, k, k))
def dyn_compute(po):
    e("s_and_b32 s12, s%d, 7\ns_lshl_b32 s12, s12, 12" % sI)
    for t in range(4):
        e("v_add_u32 v%d, s12, v%d" % (vAd + t, vVrd[t]))
    e("v_add_u32 v%d, s%d, v%d" % (vAd + 4, po, vPP))
    vunit_compute(vAd + 4, 0, [vAd + t for t in range(4)], 0)
def dyn_loads():
    e("s_add_u32 s12, s%d, 2\ns_and_b32 s12, s12, 7\ns_lshl_b32 s12, s12, 12\ns_add_u32 m0, s10, s12\ns_mov_b32 s14, s%d" % (sI, sSo))
    for jj in range(4):
        e("buffer_load_dwordx4 v%d, s[36:39], s14 offen offset:%d %s lds" % (vVoff[jj], jj * 1024, vflags))
def rescale_acc():
    e("; switch from own scale to the pair's scale")
    e("v_mov_b32 v%d, %d\nds_read_b64 v[%d:%d], v%d\ns_waitcnt lgkmcnt(0)\ns_nop 4" % (vAd, FME, vU, vU + 1, vAd))
    for t in range(4):
        e("v_mul_f32 v%d, v%d, v%d\nv_mul_f32 v%d, v%d, v%d" % (acc + 4 * t, acc + 4 * t, vU, acc + 4 * t + 1, acc + 4 * t + 1, vU + 1))
    e("s_nop 1")

if not POOL:
    for u in range(32):
        if u == P["B3A"]:
            e("s_barrier")
        vunit(u)
else:
    UA = NS - 6
    assert P["B3B"] < UA or P["B3B"] >= NS
    for u in range(UA):
        if u == P["B3B"]:
            e("s_barrier")
        if u == P["B3A"]:
            e("s_barrier")
        vunit(u)
    e("s_cmp_lg_u32 s3, 0\ns_cbranch_scc1 L_vfollow")
    snap = copy.deepcopy(st)
    for lead in (True, False):
        if not lead:
            st = snap
            e("L_vfollow:")
        tag = "a" if lead else "b"
        aop = {}
        for u in range(UA, NS):
            n = 32 + u
            e("; V unit %d (%s)" % (u, "leader" if lead else "follower"))
            k = u - UA
            if lead and k < 4:
                e("s_mov_b64 exec, 1\nglobal_atomic_add v%d, v%d, v%d, s[%d:%d] sc0 sc1\ns_mov_b64 exec, -1" % (vA[k], vCnt, vOne, sWS, sWS + 1))
                aop[k] = st.ops; st.ops += 1
            pump_until(n + 1 + LAV)
            kk = u - (NS - 2)
            if kk >= 0:
                if lead:
                    wait_op(aop[kk])
                    e("v_readfirstlane_b32 s%d, v%d\ns_mov_b64 exec, 1\nds_write_b32 v%d, v%d offset:%d\ns_mov_b64 exec, -1" % (sTk, vA[kk], vTk, vA[kk], 4 * kk))
                else:
                    get_ticket_lds(kk)
                decode("s%d" % sTk, sPo0 if kk == 0 else sPo1, sV0 if kk == 0 else sV1)
                for jj in range(4):
                    issue_load(None, "s%d" % sSo)
            need(n + 1)
            vunit_compute(vPrd, u * 64, vVrd, (n % 8) * 4096)
            st.freed = n + 1
        stamp(9)
        if P["B3B"] >= NS:
            e("s_barrier")
        rescale_acc()
        e("s_mov_b32 s%d, 0\nv_add_u32 v%d, 8, v%d" % (sI, vTk, vTk))
        e("s_waitcnt vmcnt(4)")
        e("L_pool_%s:" % tag)
        for par in range(2 if lead else 1):
            if lead:
                e("s_waitcnt vmcnt(5)")
                va = vA[2 + par]
                e("v_readfirstlane_b32 s%d, v%d\ns_mov_b64 exec, 1\nds_write_b32 v%d, v%d\ns_mov_b64 exec, -1" % (sTk, va, vTk, va))
            else:
                e("s_waitcnt vmcnt(4)")
                get_ticket_lds(None)
            e("s_cmp_ge_u32 s%d, %d\ns_cbranch_scc1 L_drain_%s" % (sTk, 4 * NP, tag))
            if lead:
                e("s_mov_b64 exec, 1\nglobal_atomic_add v%d, v%d, v%d, s[%d:%d] sc0 sc1\ns_mov_b64 exec, -1" % (va, vCnt, vOne, sWS, sWS + 1))
            decode("s%d" % sTk, sPo2, None)
            dyn_loads()
            dyn_compute(sPo0)
            e("s_mov_b32 s%d, s%d\ns_mov_b32 s%d, s%d\ns_add_u32 s%d, s%d, 1\nv_add_u32 v%d, 4, v%d" % (sPo0, sPo1, sPo1, sPo2, sI, sI, vTk, vTk))
            e("s_mov_b32 s%d, 1\ns_mov_b32 s%d, 1" % (sV0, sV1))
        e("s_branch L_pool_%s" % tag)
        e("L_drain_%s:" % tag)
        e("s_cmp_eq_u32 s%d, 0\ns_cbranch_scc1 L_dr1_%s" % (sV0, tag))
        dyn_compute(sPo0)
        e("L_dr1_%s:" % tag)
        e("s_waitcnt vmcnt(0)")
        e("s_cmp_eq_u32 s%d, 0\ns_cbranch_scc1 L_dr2_%s" % (sV1, tag))
        e("s_add_u32 s%d, s%d, 1" % (sI, sI))
        dyn_compute(sPo1)
        e("L_dr2_%s:" % tag)
        if lead:
            e("s_branch L_vdone")
    e("L_vdone:")
stamp(5)
e("s_lshl_b32 s12, s8, 2\ns_add_u32 s12, s12, s3\ns_lshl_b32 s12, s12, 2\ns_add_u32 s12, s12, s7\ns_lshl_b32 s12, s12, 10\ns_add_u32 s12, s12, %d" % WS_OP)
e("v_lshlrev_b32 v%d, 4, v1\nv_add_u32 v%d, s12, v%d" % (vQrd, vQrd, vQrd))
e("s_mov_b32 s40, 0xffff0000\ns_mov_b32 s41, 0\ns_mov_b32 s42, 0\ns_mov_b32 s43, 0x0000ffff\ns_mov_b32 s44, 0\ns_mov_b32 s45, 0xffff0000")
e("v_mov_b32 v%d, s9\nv_mov_b32 v%d, s9" % (vU + 1, vU + 3))
e("s_nop 3")
for (m, a0) in (("s[40:41]", 4), ("s[42:43]", 8), ("s[44:45]", 12)):
    src0 = (acc + 0, acc + 1) if a0 == 4 else (vU, vU + 2)
    e("v_cndmask_b32 v%d, v%d, v%d, %s" % (vU, src0[0], acc + a0, m))
    e("v_cndmask_b32 v%d, v%d, v%d, %s" % (vU + 2, src0[1], acc + a0 + 1, m))
e("global_store_dwordx4 v%d, v[%d:%d], s[%d:%d] sc1" % (vQrd, vU, vU + 3, sWS, sWS + 1))
e("s_barrier")
stamp(6)
stamp_flush(10)
e("s_endpgm")

e("L_helper:")
e("s_sub_u32 s3, s3, 4              ; hw")
e("v_and_b32 v2, 15, v1             ; n\nv_lshrrev_b32 v3, 4, v1          ; g")
e("s_waitcnt lgkmcnt(0)")
e("s_cmp_lg_u32 s3, 0")
e("s_cbranch_scc0 L_w4")
if B0AT >= 0:
    e("s_barrier            ; B0")
e("s_branch L_h_b1")
e("L_w4:")
if P["prio"]:
    e("s_setprio 3")
e("s_load_dword s9, s[%d:%d], %d     ; epoch word" % (sWS, sWS + 1, WS_E))
e("s_mov_b32 s32, s%d\ns_mov_b32 s33, s%d\ns_mov_b32 s34, %d\ns_mov_b32 s35, 0x20000" % (sWQ, sWQ + 1, 448 * 8192))
e("s_mov_b32 s36, s%d\ns_mov_b32 s37, s%d\ns_mov_b32 s38, %d\ns_mov_b32 s39, 0x20000" % (sX, sX + 1, 8 * 896))
e("s_and_b32 s57, s4, 7              ; cl\ns_lshr_b32 s58, s4, 3             ; kq")
e("s_lshl_b32 s10, s58, 7\ns_mul_i32 s11, s58, 96\ns_add_u32 s11, s11, 64\ns_cmp_lt_u32 s58, 2\ns_cselect_b32 s10, s10, s11")
e("s_lshl_b32 s11, s10, 13\ns_lshl_b32 s12, s56, 10\ns_add_u32 s11, s11, s12\ns_lshl_b32 s12, s57, 7\ns_add_u32 s11, s11, s12")
e("v_lshrrev_b32 v4, 3, v1\nv_lshlrev_b32 v4, 13, v4\nv_and_b32 v5, 7, v1\nv_lshl_add_u32 v4, v5, 4, v4")
XB = 8
e("v_and_b32 v5, 7, v2\nv_mul_u32_u24 v5, 896, v5\nv_lshl_add_u32 v5, v3, 4, v5")
e("s_lshl_b32 s10, s10, 1")
def wq_loads(a, b):
    for m in range(a, b):
        e("s_mov_b32 m0, %d\ns_add_u32 s12, s11, %d" % (WQS + m * 1024, m * 8 * 8192))
        e("buffer_load_dwordx4 v4, s[32:35], s12 offen %s lds" % wqflags)
def x_load(ks):
    e("buffer_load_dwordx4 v[%d:%d], v5, s[36:39], s10 offen offset:%d %s" % (XB + 4 * ks, XB + 4 * ks + 3, ks * 64, xflags))
wq_loads(0, 12)
for ks in range(3):
    x_load(ks)
e("s_cmp_lt_u32 s58, 2\ns_cbranch_scc0 L_q3")
wq_loads(12, 16); x_load(3)
e("L_q3:")
if POOL:
    e("s_cmp_ge_u32 s4, 8\ns_cbranch_scc1 L_nocnt")
    e("s_lshl_b32 s12, s4, 3\ns_add_u32 s12, s12, s56\ns_lshl_b32 s12, s12, 7\ns_add_u32 s12, s12, %d\nv_mov_b32 v6, s12\nv_mov_b32 v7, 0" % WS_CNT)
    e("s_mov_b64 exec, 1\nglobal_store_dword v6, v7, s[%d:%d] sc1\ns_mov_b64 exec, -1" % (sWS, sWS + 1))
    e("L_nocnt:")
e("v_lshlrev_b32 v6, 10, v3\nv_lshrrev_b32 v7, 2, v2\nv_lshl_add_u32 v6, v7, 7, v6\nv_and_b32 v7, 3, v2\nv_lshl_add_u32 v6, v7, 3, v6\nv_add_u32 v6, %d, v6" % WQS)
e("v_and_b32 v7, 7, v2\nv_lshlrev_b32 v7, 17, v7\nv_lshl_add_u32 v7, v3, 5, v7\nv_lshrrev_b32 v24, 3, v2\nv_lshl_add_u32 v7, v24, 4, v7")
e("s_lshl_b32 s11, s56, 2\ns_add_u32 s11, s11, s58\ns_lshl_b32 s11, s11, 12\ns_lshl_b32 s12, s57, 9\ns_add_u32 s11, s11, s12\ns_add_u32 s11, s11, %d\nv_add_u32 v7, s11, v7" % WS_Q)
e("s_waitcnt vmcnt(0) lgkmcnt(0)")
e("s_add_u32 s9, s9, 0x%08x        ; tag of this launch" % TAGC)
WA = 32; QA = 64
def q_reads(ks):
    b0 = WA + 16 * (ks & 1)
    for ct in range(4):
        e("ds_read_b64_tr_b16 v[%d:%d], v6 offset:%d" % (b0 + 4 * ct, b0 + 4 * ct + 1, ks * 4096 + ct * 32))
        e("ds_read_b64_tr_b16 v[%d:%d], v6 offset:%d" % (b0 + 4 * ct + 2, b0 + 4 * ct + 3, ks * 4096 + 512 + ct * 32))
def q_mfma(ks):
    b0 = WA + 16 * (ks & 1)
    for ct in range(4):
        mfma16(QA + 4 * ct, b0 + 4 * ct, XB + 4 * ks, None if ks == 0 else QA + 4 * ct)
q_reads(0); q_reads(1)
e("s_waitcnt lgkmcnt(8)"); q_mfma(0)
q_reads(2)
e("s_waitcnt lgkmcnt(8)"); q_mfma(1)
e("s_cmp_lt_u32 s58, 2\ns_cbranch_scc0 L_q3b")
q_reads(3)
e("s_waitcnt lgkmcnt(8)"); q_mfma(2)
e("s_waitcnt lgkmcnt(0)"); q_mfma(3)
e("s_branch L_q3c\nL_q3b:")
e("s_waitcnt lgkmcnt(0)"); q_mfma(2)
e("L_q3c:")
QT = 96
e("s_mov_b32 s40, 0xff00ff00\ns_mov_b32 s41, 0xff00ff00")
for ct in range(4):
    e("v_mov_b32 v%d, s9\nv_mov_b32 v%d, s9" % (QT + 4 * ct + 1, QT + 4 * ct + 3))
e("s_nop 1")
for ct in range(4):
    e("v_cndmask_b32 v%d, v%d, v%d, s[40:41]" % (QT + 4 * ct, QA + 4 * ct, QA + 4 * ct + 2))
    e("v_cndmask_b32 v%d, v%d, v%d, s[40:41]" % (QT + 4 * ct + 2, QA + 4 * ct + 1, QA + 4 * ct + 3))
for ct in range(4):
    e("global_store_dwordx4 v7, v[%d:%d], s[%d:%d] offset:%d sc1" % (QT + 4 * ct, QT + 4 * ct + 3, sWS, sWS + 1, ct * 128))
stamp(1)
if POOL:
    e("v_lshlrev_b32 v12, 2, v1\nv_add_u32 v12, %d, v12\nv_mov_b32 v13, -1\ns_mov_b32 exec_lo, -1\ns_mov_b32 exec_hi, 0x0000ffff" % TKB)
    e("ds_write_b32 v12, v13\ns_mov_b64 exec, -1")
e("s_lshl_b32 s11, s8, 14\ns_add_u32 s11, s11, %d" % WS_Q)
e("v_lshlrev_b32 v8, 4, v1\nv_add_u32 v8, s11, v8")
for kq in range(1, 4):
    e("v_add_u32 v%d, %d, v8" % (8 + kq, kq * 4096))
e("s_mov_b32 s13, 0")
GQ = 128
if B0AT >= 0:
    e("s_barrier            ; B0")
e("L_pollq:")
for kq in range(4):
    for i in range(4):
        r = GQ + 16 * kq + 4 * i
        e("global_load_dwordx4 v[%d:%d], v%d, s[%d:%d] offset:%d sc1" % (r, r + 3, 8 + kq, sWS, sWS + 1, i * 1024))
e("s_waitcnt vmcnt(0)")
tags_ok([GQ + 4 * k + o for k in range(16) for o in (1, 3)], "L_pollq_done", 12, 13)
spin_guard("s13", "L_pollq_done")
e("s_branch L_pollq")
e("L_pollq_done:")
e("v_lshlrev_b32 v7, 2, v1\nv_add_u32 v7, %d, v7" % QB)
for i in range(4):
    r = GQ + 4 * i
    e("v_add_f32 v%d, v%d, v%d\nv_add_f32 v%d, v%d, v%d" % (r, r, r + 16, r + 2, r + 2, r + 18))
    e("v_add_f32 v%d, v%d, v%d\nv_add_f32 v%d, v%d, v%d" % (r + 32, r + 32, r + 48, r + 34, r + 34, r + 50))
    e("v_add_f32 v%d, v%d, v%d\nv_add_f32 v%d, v%d, v%d" % (r, r, r + 32, r + 2, r + 2, r + 34))
    e("v_cvt_pk_bf16_f32 v%d, v%d, v%d" % (r, r, r + 2))
    e("ds_write_b32 v7, v%d offset:%d" % (r, i * 256))
e("v_mov_b32 v8, %d\nv_mov_b32 v9, s9\nds_write_b32 v8, v9" % TAGL)
if P["RANK"]:
    e("v_mov_b32 v8, %d\nv_mov_b32 v10, 1\nv_mov_b32 v11, 1\nds_write_b64 v8, v[10:11]" % LVL)
e("s_waitcnt lgkmcnt(0)")
if P["prio"]:
    e("s_setprio 0")
e("L_h_b1:")
stamp(2)
e("s_barrier            ; B1")
e("v_mov_b32 v8, %d\nds_read_b32 v8, v8\ns_waitcnt lgkmcnt(0)\nv_readfirstlane_b32 s9, v8" % TAGL)
def rank_checkpoint(k):
    lbl[0] += 1
    lab = "L_rk%d" % lbl[0]
    e("s_cmp_lg_u32 s3, 1\ns_cbranch_scc1 %s" % lab)
    e("s_mov_b64 exec, 1\nv_mov_b32 v10, %d\nv_mov_b32 v11, 1\nglobal_atomic_add v12, v10, v11, s[%d:%d] sc0 sc1\ns_waitcnt vmcnt(0)" % (4 * k, sDBG, sDBG + 1))
    e("v_readfirstlane_b32 s12, v12\ns_nop 3\ns_cmp_ge_u32 s12, %d\ns_cselect_b32 s13, 1, 0\ns_cmp_ge_u32 s12, %d\ns_cselect_b32 s13, 2, s13" % (P["TLO"], P["THI"]))
    e("v_mov_b32 v10, %d\nv_mov_b32 v11, s13\nds_write_b32 v10, v11\ns_waitcnt lgkmcnt(0)\ns_mov_b64 exec, -1" % (LVL + 4 * k))
    e("%s:" % lab)
if P["RANK"]:
    rank_checkpoint(0)
e("s_mov_b32 s32, s%d\ns_mov_b32 s33, s%d\ns_mov_b32 s34, %d\ns_mov_b32 s35, 0x20000" % (sWO, sWO + 1, 4096 * 896))
e("v_mul_u32_u24 v47, %d, v3\nv_lshl_add_u32 v47, v2, 4, v47\ns_lshl_b32 s10, s3, 8\nv_add_u32 v47, s10, v47" % (8 * 896))
e("s_cmp_eq_u32 s3, 3\ns_cselect_b32 s12, 0x7fffffff, 0")
e("v_mov_b32 v9, s12\nv_cmp_lt_u32 vcc, 7, v2\ns_nop 1\nv_cndmask_b32 v9, 0, v9, vcc\nv_or_b32 v47, v47, v9")
e("s_lshl_b32 s54, s5, 9\ns_lshl_b32 s11, s7, 6\ns_add_u32 s54, s54, s11\ns_mul_i32 s54, s54, 896")
e("s_mov_b32 s46, 0x05040100\ns_mov_b32 s47, 0x07060302")
RAW = 96; WOH = [128 + 32 * ks for ks in range(4)]
def wo_load(ks):
    rowoff = ((ks >> 1) * 256 + (ks & 1) * 32) * 896
    R = P["worr"]
    for j0 in range(0, 8, R):
        if P["woprio"]:
            e("s_setprio 3")
        for j in range(j0, j0 + R):
            e("s_add_u32 s12, s54, %d" % (rowoff + j * 896))
            e("buffer_load_dwordx4 v[%d:%d], v47, s[32:35], s12 offen %s" % (RAW + 4 * j, RAW + 4 * j + 3, woflags))
        if P["woprio"]:
            e("s_setprio 0")
        e("s_waitcnt vmcnt(0)")
    for t in range(8):
        for p in range(4):
            e("v_perm_b32 v%d, v%d, v%d, %s" % (WOH[ks] + t * 4 + p, RAW + 4 * (2 * p + 1) + (t >> 1), RAW + 4 * (2 * p) + (t >> 1), "s47" if (t & 1) else "s46"))
NPRE = P["wopre"]
for ks in range(NPRE):
    wo_load(ks)
stamp(3)
e("s_barrier            ; B2")
e("s_barrier            ; B3")
if P["RANK"]:
    rank_checkpoint(1)
e("s_cmp_lg_u32 s3, 0\ns_cbranch_scc1 L_h_wo2")
e("v_and_b32 v4, 1, v2\nv_lshlrev_b32 v4, 6, v4\nv_add_u32 v4, %d, v4" % MAXX)
for i in range(4):
    e("ds_read_b128 v[%d:%d], v4 offset:%d" % (8 + 4 * i, 8 + 4 * i + 3, 16 * i))
for i in range(4):
    e("ds_read_b128 v[%d:%d], v4 offset:%d" % (24 + 4 * i, 24 + 4 * i + 3, LSUM - MAXX + 16 * i))
if POOL:
    e("v_lshrrev_b32 v5, 5, v1\nv_mul_u32_u24 v5, %d, v5\nv_and_b32 v6, 31, v1\nv_lshl_add_u32 v5, v6, 4, v5\nv_add_u32 v5, %d, v5" % (HS, PB + NS * 64))
    e("ds_read_b128 v[56:59], v5")
e("s_waitcnt lgkmcnt(0)")
e("v_max3_f32 v40, v8, v9, v10")
for i in range(3, 15, 2):
    e("v_max3_f32 v40, v40, v%d, v%d" % (8 + i, 8 + i + 1))
e("v_max_f32 v40, v40, v23")
e("v_add_f32 v42, v24, v25")
for i in range(2, 16):
    e("v_add_f32 v42, v42, v%d" % (24 + i))
e("v_mov_b32 v41, s9\nv_mov_b32 v43, s9")
e("s_lshl_b32 s10, s8, 2\ns_add_u32 s10, s10, s7\ns_lshl_b32 s12, s10, 5\ns_add_u32 s12, s12, %d" % WS_ST)
e("v_lshlrev_b32 v5, 4, v1\nv_add_u32 v6, s12, v5")
e("s_mov_b64 exec, 3\nglobal_store_dwordx4 v6, v[40:43], s[%d:%d] sc1\ns_mov_b64 exec, -1" % (sWS, sWS + 1))
if POOL:
    e("v_mov_b32 v60, v56\nv_mov_b32 v61, s9\nv_mov_b32 v62, v57\nv_mov_b32 v63, s9")
    e("v_mov_b32 v64, v58\nv_mov_b32 v65, s9\nv_mov_b32 v66, v59\nv_mov_b32 v67, s9")
    e("s_lshl_b32 s12, s10, 11\ns_add_u32 s12, s12, %d\nv_add_u32 v6, s12, v5" % WS_PP)
    e("global_store_dwordx4 v6, v[60:63], s[%d:%d] sc1\nglobal_store_dwordx4 v6, v[64:67], s[%d:%d] offset:1024 sc1" % (sWS, sWS + 1, sWS, sWS + 1))
N4A = NPRE
if P["B3A"] >= 0:
    for ks in range(NPRE, min(4, NPRE + P["wo4a"])):
        wo_load(ks)
        N4A = ks + 1
    e("s_barrier            ; B3a")
e("s_lshl_b32 s10, s8, 7\ns_add_u32 s10, s10, %d" % WS_ST)
e("v_and_b32 v5, 1, v1\nv_lshlrev_b32 v5, 4, v5\nv_add_u32 v5, s10, v5")
e("s_mov_b32 s13, 0")
e("L_polls:")
for s_ in range(4):
    e("global_load_dwordx4 v[%d:%d], v5, s[%d:%d] offset:%d sc1" % (8 + 4 * s_, 8 + 4 * s_ + 3, sWS, sWS + 1, 32 * s_))
e("s_waitcnt vmcnt(0)")
tags_ok([8 + 4 * k + o for k in range(4) for o in (1, 3)], "L_polls_done", 0, 0)
spin_guard("s13", "L_polls_done")
e("s_sleep %d\ns_branch L_polls" % P["ssleep"])
e("L_polls_done:")
e("v_max3_f32 v24, v8, v12, v16\nv_max_f32 v24, v24, v20")
e("s_mov_b32 s15, 0x%08x" % CEXP)
for s_ in range(4):
    e("v_sub_f32 v%d, v%d, v24\nv_mul_f32 v%d, s15, v%d" % (26 + s_, 8 + 4 * s_, 26 + s_, 26 + s_))
for s_ in range(4):
    e("v_exp_f32 v%d, v%d" % (26 + s_, 26 + s_))
e("s_nop 0")
e("v_mul_f32 v30, v26, v10\nv_fmac_f32 v30, v27, v14\nv_fmac_f32 v30, v28, v18\nv_fmac_f32 v30, v29, v22")
e("v_rcp_f32 v31, v30\ns_nop 0\nv_fma_f32 v32, -v30, v31, 2.0\nv_mul_f32 v31, v31, v32")
if not POOL:
    for s_ in range(4):
        e("v_mul_f32 v%d, v%d, v31" % (26 + s_, 26 + s_))
    e("s_nop 1")
    for s_ in range(4):
        e("v_mov_b32_dpp v%d, v%d quad_perm:[0,0,0,0] row_mask:0xf bank_mask:0xf" % (48 + s_, 26 + s_))
        e("v_mov_b32_dpp v%d, v%d quad_perm:[1,1,1,1] row_mask:0xf bank_mask:0xf" % (52 + s_, 26 + s_))
else:
    e("s_nop 1")
    e("v_mov_b32_dpp v48, v31 quad_perm:[0,0,0,0] row_mask:0xf bank_mask:0xf\nv_mov_b32_dpp v52, v31 quad_perm:[1,1,1,1] row_mask:0xf bank_mask:0xf")
    e("v_mov_b32 v33, v26")
    for k in range(1, 4):
        e("s_cmp_eq_u32 s7, %d\ns_cselect_b64 s[40:41], -1, 0\nv_cndmask_b32 v33, v33, v%d, s[40:41]" % (k, 26 + k))
    e("v_lshlrev_b32 v34, 2, v1\nv_add_u32 v34, %d, v34\ns_mov_b64 exec, 3\nds_write_b32 v34, v33\ns_mov_b64 exec, -1" % FME)
    for o in range(4):
        e("v_mov_b32_dpp v%d, v%d quad_perm:[0,0,0,0] row_mask:0xf bank_mask:0xf" % (36 + o, 26 + o))
        e("v_mov_b32_dpp v%d, v%d quad_perm:[1,1,1,1] row_mask:0xf bank_mask:0xf" % (40 + o, 26 + o))
    e("s_mov_b32 s40, 0\ns_mov_b32 s41, -1")
    for o in range(4):
        e("v_cndmask_b32 v%d, v%d, v%d, s[40:41]" % (36 + o, 36 + o, 40 + o))
    e("s_lshl_b32 s10, s8, 13\ns_add_u32 s10, s10, %d\nv_lshlrev_b32 v5, 4, v1\nv_add_u32 v5, s10, v5\nv_add_u32 v6, 4096, v5" % WS_PP)
    e("s_mov_b32 s13, 0")
    GP = 56
    e("L_pollp:")
    for o in range(4):
        for i in range(2):
            r = GP + 8 * o + 4 * i
            e("global_load_dwordx4 v[%d:%d], v%d, s[%d:%d] offset:%d sc1" % (r, r + 3, 5 if o < 2 else 6, sWS, sWS + 1, (o & 1) * 2048 + i * 1024))
    e("s_waitcnt vmcnt(0)")
    tags_ok([GP + 4 * k + o for k in range(8) for o in (1, 3)], "L_pollp_done", 12, 13)
    spin_guard("s13", "L_pollp_done")
    e("s_sleep %d\ns_branch L_pollp" % P["ssleep"])
    e("L_pollp_done:")
    e("v_lshrrev_b32 v7, 5, v1\nv_mul_u32_u24 v7, %d, v7\nv_and_b32 v8, 31, v1\nv_lshl_add_u32 v7, v8, 4, v7\nv_add_u32 v7, %d, v7" % (HS, PPB))
    for o in range(4):
        for i in range(2):
            r = GP + 8 * o + 4 * i
            for d in (0, 2):
                e("v_lshlrev_b32 v8, 16, v%d\nv_and_b32 v9, 0xffff0000, v%d" % (r + d, r + d))
                e("v_mul_f32 v8, v8, v%d\nv_mul_f32 v9, v9, v%d" % (36 + o, 36 + o))
                e("v_cvt_pk_bf16_f32 v%d, v8, v9" % (r + d // 2))
            e("ds_write_b64 v7, v[%d:%d] offset:%d" % (r, r + 1, o * 512 + i * 8))
    e("s_waitcnt lgkmcnt(0)")
    e("s_barrier            ; B3b")
for ks in range(N4A, 4):
    wo_load(ks)
e("s_branch L_h_b4")
e("L_h_wo2:")
for ks in range(NPRE, 4):
    wo_load(ks)
if P["B3A"] >= 0:
    e("s_barrier            ; B3a")
if POOL:
    e("s_barrier            ; B3b")
e("L_h_b4:")
stamp(4)
e("s_lshl_b32 s10, s8, 2\ns_add_u32 s10, s10, s7\ns_lshl_b32 s10, s10, 12\ns_add_u32 s10, s10, %d" % WS_OP)
e("v_lshlrev_b32 v5, 4, v1\nv_add_u32 v5, s10, v5")
e("v_lshlrev_b32 v6, 1, v1\nv_add_u32 v6, %d, v6" % OST)
e("v_lshlrev_b32 v7, 4, v3\nv_add_u32 v7, %d, v7" % OST)
e("s_lshl_b32 s11, s5, 2\ns_add_u32 s11, s11, s7          ; p")
e("s_mul_i32 s12, s6, 28\ns_lshl_b32 s13, s3, 3\ns_add_u32 s12, s12, s13\ns_lshl_b32 s12, s12, 5\ns_add_u32 s12, s12, s11\ns_lshl_b32 s12, s12, 7\ns_add_u32 s12, s12, %d" % WS_OUT)
e("v_lshrrev_b32 v44, 1, v2\nv_lshlrev_b32 v44, 12, v44")
e("v_and_b32 v45, 1, v2\nv_lshl_add_u32 v45, v45, 2, v3\nv_lshl_add_u32 v44, v45, 4, v44\nv_add_u32 v44, s12, v44")
e("s_mul_i32 s12, s6, 28\ns_add_u32 s12, s12, s11\ns_lshl_b32 s12, s12, 12\ns_add_u32 s12, s12, %d" % WS_OUT)
e("v_lshlrev_b32 v46, 4, v1\nv_add_u32 v46, s12, v46")
e("s_mov_b32 s48, 0xffff0000\ns_mov_b32 s49, 0\ns_mov_b32 s50, 0\ns_mov_b32 s51, 0x0000ffff\ns_mov_b32 s52, 0\ns_mov_b32 s53, 0xffff0000")
e("s_barrier            ; B4")
stamp(5)
e("s_cmp_lg_u32 s3, 0\ns_cbranch_scc1 L_h_b5")
e("s_mov_b32 s13, 0")
e("L_polla:")
for s_ in range(4):
    e("global_load_dwordx4 v[%d:%d], v5, s[%d:%d] offset:%d sc1" % (8 + 4 * s_, 8 + 4 * s_ + 3, sWS, sWS + 1, 1024 * s_))
e("s_waitcnt vmcnt(0)")
tags_ok([8 + 4 * k + o for k in range(4) for o in (1, 3)], "L_polla_done", 0, 0)
spin_guard("s13", "L_polla_done")
if P["asleep"]:
    e("s_sleep %d" % P["asleep"])
e("s_branch L_polla")
e("L_polla_done:")
if POOL:
    e("v_add_f32 v24, v8, v12\nv_add_f32 v25, v10, v14\nv_add_f32 v26, v16, v20\nv_add_f32 v27, v18, v22")
    e("v_add_f32 v24, v24, v26\nv_add_f32 v25, v25, v27\nv_mul_f32 v24, v24, v48\nv_mul_f32 v25, v25, v52")
else:
    e("v_mul_f32 v24, v48, v8\nv_mul_f32 v25, v52, v10")
    for s_ in range(1, 4):
        e("v_fmac_f32 v24, v%d, v%d\nv_fmac_f32 v25, v%d, v%d" % (48 + s_, 8 + 4 * s_, 52 + s_, 10 + 4 * s_))
e("v_cvt_pk_bf16_f32 v24, v24, v25")
e("ds_write_b16 v6, v24\nds_write_b16_d16_hi v6, v24 offset:128")
e("s_waitcnt lgkmcnt(0)")
e("L_h_b5:")
stamp(6)
e("s_barrier")
for ks in range(4):
    e("ds_read_b128 v[%d:%d], v7 offset:%d" % (8 + 4 * ks, 8 + 4 * ks + 3, ks * 64))
OA = 56
for ks in range(4):
    e("s_waitcnt lgkmcnt(%d)" % (3 - ks))
    for t in range(8):
        mfma16(OA + 4 * t, 8 + 4 * ks, WOH[ks] + t * 4, None if ks == 0 else OA + 4 * t)
e("v_mov_b32 v25, s9\nv_mov_b32 v27, s9")
e("s_nop 7")
e("v_cndmask_b32 v24, v%d, v%d, s[48:49]\nv_cndmask_b32 v26, v%d, v%d, s[48:49]" % (OA, OA + 8, OA + 4, OA + 12))
e("v_cndmask_b32 v24, v24, v%d, s[50:51]\nv_cndmask_b32 v26, v26, v%d, s[50:51]" % (OA + 16, OA + 20))
e("v_cndmask_b32 v24, v24, v%d, s[52:53]\nv_cndmask_b32 v26, v26, v%d, s[52:53]" % (OA + 24, OA + 28))
e("s_cmp_eq_u32 s3, 3\ns_cselect_b32 s12, 0x00ff00ff, -1\ns_mov_b32 exec_lo, s12\ns_mov_b32 exec_hi, s12")
e("global_store_dwordx4 v44, v[24:27], s[%d:%d] sc1" % (sWS, sWS + 1))
e("s_mov_b64 exec, -1")
stamp(7)
e("s_cmp_lg_u32 s3, 0\ns_cbranch_scc1 L_h_done")
e("s_cmp_ge_u32 s11, 28\ns_cbranch_scc1 L_h_done")
e("s_mov_b32 s13, 0")
e("L_pollo:")
for i in range(4):
    e("global_load_dwordx4 v[%d:%d], v46, s[%d:%d] offset:%d sc1" % (8 + 4 * i, 8 + 4 * i + 3, sWS, sWS + 1, 1024 * i))
e("s_waitcnt vmcnt(0)")
tags_ok([8 + 4 * k + o for k in range(4) for o in (1, 3)], "L_pollo_done", 0, 0)
spin_guard("s13", "L_pollo_done")
if P["osleep"]:
    e("s_sleep %d" % P["osleep"])
e("s_branch L_pollo")
e("L_pollo_done:")
e("v_add_f32 v24, v8, v12\nv_add_f32 v25, v10, v14\nv_add_f32 v26, v16, v20\nv_add_f32 v27, v18, v22")
e("v_add_f32 v24, v24, v26\nv_add_f32 v25, v25, v27")
e("s_nop 1")
e("v_add_f32_dpp v24, v24, v24 row_ror:8 row_mask:0xf bank_mask:0xf\nv_add_f32_dpp v25, v25, v25 row_ror:8 row_mask:0xf bank_mask:0xf")
e("v_mov_b32 v26, v24\nv_mov_b32 v27, v25\ns_nop 1")
e("v_permlane16_swap_b32 v24, v26\nv_permlane16_swap_b32 v25, v27")
e("v_add_f32 v24, v24, v26\nv_add_f32 v25, v25, v27")
e("v_mov_b32 v26, v24\nv_mov_b32 v27, v25\ns_nop 1")
e("v_permlane32_swap_b32 v24, v26\nv_permlane32_swap_b32 v25, v27")
e("v_add_f32 v24, v24, v26\nv_add_f32 v25, v25, v27")
e("v_cvt_pk_bf16_f32 v24, v24, v25")
e("s_mul_i32 s12, s6, 896\ns_lshl_b32 s13, s11, 5\ns_add_u32 s12, s12, s13")
e("v_lshlrev_b32 v26, 2, v1\nv_add_u32 v26, s12, v26")
e("s_mov_b64 exec, 0xff")
e("global_store_dword v26, v24, s[%d:%d]" % (sOUT, sOUT + 1))
e("s_cmp_lg_u32 s2, 0\ns_cbranch_scc1 L_h_done")
e("s_mov_b64 exec, 1")
e("v_mov_b32 v26, %d\nv_mov_b32 v27, s9" % WS_E)
e("global_store_dword v26, v27, s[%d:%d] sc1      ; next launch's epoch" % (sWS, sWS + 1))
e("L_h_done:")
stamp(8)
if STAMPS:
    e("s_add_u32 s3, s3, 4")
stamp_flush(9)
e("L_end:")
e("s_endpgm")

e('.section .rodata,"a"\n.p2align 6\n.amdhsa_kernel %s' % KN)
e("  .amdhsa_next_free_vgpr 256\n  .amdhsa_next_free_sgpr 96\n  .amdhsa_accum_offset 256")
e("  .amdhsa_group_segment_fixed_size 0\n  .amdhsa_kernarg_size 64\n  .amdhsa_user_sgpr_count 2\n  .amdhsa_user_sgpr_kernarg_segment_ptr 1\n  .amdhsa_system_sgpr_workgroup_id_x 1")
e("  .amdhsa_float_denorm_mode_32 3")
e(".end_amdhsa_kernel")
open(out, "w").write("\n".join(L) + "\n")
```

```python
import sys, struct, copy

out = sys.argv[1]
P = dict(stamps=0, DI=6, DT=9, LAK=2, LAV=2, HOLD=4, B0AT=2, PBL=2, PEVERY=2, PMAX=0, PB2=2,
         NS=24, B3B=99, B3A=13, wo4a=1, wopre=2, worr=8, woprio=1, prio=1, spinmax=200000,
         kflags="nt", vflags="nt", wqflags="nt", woflags="nt", xflags="none", asleep=0, osleep=0, ssleep=8, MAP=1, RANK=0, XLO=1, XHI=1, TLO=85, THI=170, RK1=9, RK2=3)
for a in sys.argv[2:]:
    k, v = a.split("=")
    P[k] = int(v) if v.lstrip("-").isdigit() else v
def fl(name):
    return P[name].replace("+", " ").replace("none", "")
kflags, vflags, wqflags, woflags, xflags = fl("kflags"), fl("vflags"), fl("wqflags"), fl("woflags"), fl("xflags")
STAMPS = P["stamps"]
NS = P["NS"]
NP = 32 - NS
POOL = NP > 0
assert NP in (0, 8)

L = []
def e(s=""):
    L.extend(s.split("\n"))

KN = "standalone__gqa_block_cached__decode_kernel"

WQS = 131072
PB = 131072
HS = 2112
PPB = PB + 4352
TKB = PPB + 4352
FME = TKB + 192
QB = 147456
MAXX = QB + 1024
LSUM = MAXX + 128
TAGL = LSUM + 128
OST = TAGL + 64
DBGL = OST + 256
LVL = DBGL + 64
LDS_TOTAL = LVL + 64
assert FME + 8 <= QB

WS_E = 0x0
WS_CNT = 0x10000
WS_ST = 0x30000
WS_OP = 0x40000
WS_OUT = 0x140000
WS_Q = 0x300000
WS_PP = 0x400000
WS_STAMP = 400 * 1024 * 1024
TAGC = 0x9E3779B9
CEXP = struct.unpack("<I", struct.pack("<f", 1.4426950408889634 / 16.0))[0]

e("; @launch grid=(256,1,1) block=(512,1,1) lds=%d" % LDS_TOTAL)
e('.amdgcn_target "amdgcn-amd-amdhsa--gfx950"')
e(".text")
e(".globl %s\n.p2align 8\n.type %s,@function\n%s:" % (KN, KN, KN))

sX, sK, sV, sWQ, sWO, sOUT, sDBG, sWS = 16, 18, 20, 22, 24, 26, 28, 30
stampregs = list(range(64, 84, 2))
def stamp(i):
    if STAMPS:
        e("s_memrealtime s[%d:%d]\ns_waitcnt lgkmcnt(0)" % (stampregs[i], stampregs[i] + 1))
def stamp_flush(n):
    if STAMPS != 1:
        return
    e("s_getreg_b32 s84, hwreg(HW_REG_XCC_ID)")
    e("s_lshl_b32 s85, s2, 3\ns_add_u32 s85, s85, s3\ns_lshl_b32 s85, s85, 7\ns_add_u32 s85, s85, %d" % WS_STAMP)
    e("s_add_u32 s86, s%d, s85\ns_addc_u32 s87, s%d, 0" % (sWS, sWS + 1))
    e("s_mov_b64 exec, 1\nv_mov_b32 v1, 0")
    for i in range(10):
        k = min(i, n - 1)
        e("v_mov_b32 v2, s%d\nv_mov_b32 v3, s%d" % (stampregs[k], stampregs[k] + 1))
        e("global_store_dwordx2 v1, v[2:3], s[86:87] offset:%d\ns_nop 1" % (i * 8))
    e("v_mov_b32 v2, s84\nv_mov_b32 v3, 0\nglobal_store_dwordx2 v1, v[2:3], s[86:87] offset:80\ns_waitcnt vmcnt(0)")

def spin_guard(cnt, label):
    e("s_add_u32 %s, %s, 1\ns_cmp_gt_u32 %s, %d\ns_cbranch_scc1 %s" % (cnt, cnt, cnt, P["spinmax"], label))

def tags_ok(regs, okl, tmp0, tmp1):
    if len(regs) <= 8:
        e("s_mov_b64 s[40:41], 0")
        for r in regs:
            e("v_cmp_ne_u32 vcc, s9, v%d\ns_or_b64 s[40:41], s[40:41], vcc" % r)
    else:
        e("v_min3_u32 v%d, v%d, v%d, v%d\nv_max3_u32 v%d, v%d, v%d, v%d" % (tmp0, regs[0], regs[1], regs[2], tmp1, regs[0], regs[1], regs[2]))
        k = 3
        while k < len(regs):
            if k + 1 < len(regs):
                e("v_min3_u32 v%d, v%d, v%d, v%d\nv_max3_u32 v%d, v%d, v%d, v%d" % (tmp0, tmp0, regs[k], regs[k + 1], tmp1, tmp1, regs[k], regs[k + 1])); k += 2
            else:
                e("v_min_u32 v%d, v%d, v%d\nv_max_u32 v%d, v%d, v%d" % (tmp0, tmp0, regs[k], tmp1, tmp1, regs[k])); k += 1
        e("v_cmp_ne_u32 s[40:41], s9, v%d\nv_cmp_ne_u32 vcc, s9, v%d\ns_or_b64 s[40:41], s[40:41], vcc" % (tmp0, tmp1))
    e("s_cmp_eq_u64 s[40:41], 0\ns_cbranch_scc1 %s" % okl)

e("s_cmp_ge_u32 s2, 256")
e("s_cbranch_scc1 L_end")
if STAMPS:
    e("s_memrealtime s[64:65]")
DSP = P.get("diagspin", 0)
if DSP:
    e("s_memrealtime s[92:93]")
e("s_load_dwordx16 s[16:31], s[0:1], 0")
e("v_lshrrev_b32 v1, 6, v0")
e("s_and_b32 s56, s2, 7             ; x")
e("v_readfirstlane_b32 s3, v1       ; wave")
e("s_lshr_b32 s4, s2, 3             ; y")
if P["MAP"] == 1:
    e("s_lshr_b32 s7, s56, 1            ; sp")
    e("s_xor_b32 s8, s56, s7\ns_and_b32 s8, s8, 1")
    e("s_lshl_b32 s5, s4, 1\ns_or_b32 s8, s8, s5              ; pair")
    e("s_and_b32 s5, s8, 7              ; hkv\ns_lshr_b32 s6, s8, 3             ; b")
else:
    e("s_mov_b32 s5, s56\ns_and_b32 s6, s4, 7\ns_lshr_b32 s7, s4, 3\ns_lshl_b32 s8, s6, 3\ns_add_u32 s8, s8, s5")
e("v_and_b32 v1, 63, v0             ; lane")
e("s_cmp_ge_u32 s3, 4")
e("s_cbranch_scc1 L_helper")

vKoff = list(range(2, 10)); vKrd = list(range(10, 18)); vVoff = list(range(18, 22)); vVrd = list(range(22, 26))
vPrd, vPwr, vQrd, vMrd, vMwr, vT3 = 26, 27, 28, 29, 30, 31
qB = 32; Sreg = 64; HOLDR = 128
Pa = 128; Vb = 132; acc = 148
vM, vMc, vL, vU = 164, 165, 166, 168
vA = [200, 201, 202, 203]
vOne, vCnt, vTk, vAd = 204, 205, 206, 208
vPP = 213

e("s_lshl_b32 s10, s3, 15")
e("s_lshl_b32 s11, s3, 12")
e("v_lshrrev_b32 v64, 5, v1\nv_and_b32 v65, 31, v1\nv_xor_b32 v65, v65, v64\nv_lshlrev_b32 v65, 4, v65")
e("v_lshl_add_u32 v%d, v64, 9, v65" % vKoff[0])
for n in range(1, 8):
    e("v_xor_b32 v%d, %d, v%d" % (vKoff[n], n << 5, vKoff[0]))
e("s_waitcnt lgkmcnt(0)")
e("s_lshl_b32 s12, s8, 21\ns_lshl_b32 s59, s7, 19\ns_add_u32 s13, s12, s59")
e("s_add_u32 s32, s%d, s13\ns_addc_u32 s33, s%d, 0\ns_mov_b32 s34, 0x80000\ns_mov_b32 s35, 0x20000" % (sK, sK + 1))
e("s_add_u32 s36, s%d, s12\ns_addc_u32 s37, s%d, 0\ns_mov_b32 s38, 0x200000\ns_mov_b32 s39, 0x20000" % (sV, sV + 1))

DI, LAK, LAV, DT = P["DI"], P["LAK"], P["LAV"], P["DT"]
class St:
    def __init__(self):
        self.ops = 0
        self.done = 0
        self.loads = 0
        self.opof = {}
        self.freed = 0
        self.use_level = False
        self.di0 = P.get('DI0', 0)
lbl = [0]
st = St()
NUNITS = 32 + NS + (2 if POOL else 0)
def wait_ops(x):
    if st.ops - st.done > x:
        e("s_waitcnt vmcnt(%d)" % x)
        st.done = st.ops - x
def wait_op(idx):
    if st.done <= idx:
        wait_ops(st.ops - 1 - idx)
def issue_load(di=None, dynsoff=None):
    n, jj = st.loads // 4, st.loads % 4
    di = (st.di0 if st.di0 else DI) if di is None else di
    assert n < st.freed + 8 and n < NUNITS
    if P["RANK"] and st.use_level and st.ops - st.done > di - 1 - P["XLO"]:
        lbl[0] += 1
        k = lbl[0]
        e("s_cmp_lg_u32 s55, 0\ns_cbranch_scc1 L_lv%da\ns_waitcnt vmcnt(%d)\nL_lv%da:" % (k, di - 1 - P["XLO"], k))
        e("s_cmp_eq_u32 s55, 2\ns_cbranch_scc1 L_lv%db\ns_waitcnt vmcnt(%d)\nL_lv%db:" % (k, di - 1, k))
        wait_ops(di - 1 + P["XHI"])
    else:
        wait_ops(di - 1)
    if jj == 0:
        e("s_add_u32 m0, s10, %d" % ((n % 8) * 4096))
        if n < 32:
            e("s_add_u32 s14, s11, %d" % (n * 16384))
        elif n < 32 + NS:
            e("s_add_u32 s14, s59, %d" % ((n - 32) * 16384))
        else:
            assert dynsoff is not None
            e("s_mov_b32 s14, %s" % dynsoff)
    if n < 32:
        e("buffer_load_dwordx4 v%d, s[32:35], s14 offen offset:%d %s lds" % (vKoff[(n & 1) * 4 + jj], jj * 1024, kflags))
    else:
        e("buffer_load_dwordx4 v%d, s[36:39], s14 offen offset:%d %s lds" % (vVoff[jj], jj * 1024, vflags))
    st.opof[st.loads] = st.ops
    st.ops += 1; st.loads += 1
def pump_until(nunits, di=None):
    nunits = min(nunits, 32 + NS, st.freed + 8)
    while st.loads < 4 * nunits:
        issue_load(di)
def pump(k, di=None):
    for _ in range(k):
        if st.loads // 4 < min(32 + NS, st.freed + 8):
            issue_load(di)
def need(nunits):
    wait_op(st.opof[4 * nunits - 1])

pump(P.get('DI0', 0) or DI)
e("v_lshrrev_b32 v64, 3, v1\nv_lshrrev_b32 v65, 1, v64\nv_and_b32 v65, 3, v65\nv_lshlrev_b32 v65, 1, v65")
e("v_and_b32 v66, 7, v1\nv_xor_b32 v66, v66, v65\nv_lshlrev_b32 v66, 4, v66\nv_lshl_add_u32 v66, v64, 9, v66")
e("s_lshl_b32 s15, s3, 7\nv_add_u32 v%d, s15, v66" % vVoff[0])
for jj in range(1, 4):
    e("v_add_u32 v%d, %d, v%d" % (vVoff[jj], jj * 3072, vVoff[0]))
e("v_and_b32 v64, 15, v1             ; n\nv_lshrrev_b32 v65, 4, v1          ; g")
e("v_xor_b32 v66, v64, v65\nv_lshlrev_b32 v66, 4, v66\nv_lshl_add_u32 v66, v64, 9, v66\nv_add_u32 v%d, s10, v66" % vKrd[0])
for i in range(1, 8):
    e("v_xor_b32 v%d, %d, v%d" % (vKrd[i], i << 6, vKrd[0]))
e("v_and_b32 v66, 1, v65\nv_lshrrev_b32 v67, 3, v64\nv_lshl_or_b32 v67, v66, 1, v67")
e("v_lshrrev_b32 v68, 2, v64\nv_lshl_add_u32 v68, v66, 2, v68\nv_lshlrev_b32 v68, 7, v68")
e("v_lshrrev_b32 v69, 1, v65\nv_lshl_add_u32 v68, v69, 11, v68\nv_and_b32 v70, 3, v64\nv_lshl_add_u32 v68, v70, 3, v68\nv_add_u32 v68, s10, v68")
for t in range(4):
    e("v_xor_b32 v71, %d, v67\nv_lshl_add_u32 v%d, v71, 5, v68" % (t, vVrd[t]))
e("v_and_b32 v66, 1, v64             ; head\nv_mul_u32_u24 v72, %d, v66" % HS)
e("v_lshl_add_u32 v%d, v65, 4, v72\nv_add_u32 v%d, %d, v%d" % (vPrd, vPrd, PB, vPrd))
e("s_lshr_b32 s15, s3, 1\ns_lshl_b32 s15, s15, 5\ns_and_b32 s40, s3, 1\ns_lshl_b32 s40, s40, 3\ns_add_u32 s15, s15, s40\ns_add_u32 s15, s15, %d" % PB)
e("v_lshl_add_u32 v%d, v69, 6, v72\nv_and_b32 v73, 1, v65\nv_lshl_add_u32 v%d, v73, 4, v%d\nv_add_u32 v%d, s15, v%d" % (vPwr, vPwr, vPwr, vPwr, vPwr))
e("v_lshlrev_b32 v%d, 9, v66\nv_lshl_add_u32 v%d, v65, 4, v%d\nv_add_u32 v%d, %d, v%d" % (vQrd, vQrd, vQrd, vQrd, QB, vQrd))
e("v_lshlrev_b32 v%d, 6, v66\nv_add_u32 v%d, %d, v%d" % (vMrd, vMrd, MAXX, vMrd))
e("s_lshl_b32 s15, s3, 4\nv_lshl_add_u32 v%d, v65, 2, v%d\nv_add_u32 v%d, s15, v%d" % (vMwr, vMrd, vMwr, vMwr))

HOLDN = P["HOLD"]; B0AT = P["B0AT"]
pump_until(8)
if B0AT == 0:
    e("s_barrier")
for T in range(HOLDN):
    need(2 * T + 2)
    for i in range(8):
        r = HOLDR + 32 * T + 4 * i
        e("ds_read_b128 v[%d:%d], v%d offset:%d" % (r, r + 3, vKrd[i], (T % 4) * 8192))
    e("s_waitcnt lgkmcnt(0)")
    st.freed = 2 * T + 2
    pump_until(st.freed + 8)
    if B0AT == T + 1:
        e("s_barrier")
stamp(1)
st.di0 = P.get("DI1", 0)
e("s_barrier")
stamp(2)
for i in range(8):
    e("ds_read_b128 v[%d:%d], v%d offset:%d" % (qB + 4 * i, qB + 4 * i + 3, vQrd, i * 64))
e("v_mov_b32 v%d, %d\nds_read_b32 v%d, v%d\ns_waitcnt lgkmcnt(0)\nv_readfirstlane_b32 s9, v%d" % (vT3, TAGL, vT3, vT3, vT3))

def mfma16(d, a, b, c):
    e("v_mfma_f32_16x16x32_bf16 v[%d:%d], v[%d:%d], v[%d:%d], %s" % (d, d + 3, a, a + 3, b, b + 3, "0" if c is None else "v[%d:%d]" % (c, c + 3)))
def ktile(T, from_regs):
    e("; K tile %d" % T)
    S = Sreg + 4 * T
    if from_regs:
        for i in range(8):
            mfma16(S, HOLDR + 32 * T + 4 * i, qB + 4 * i, None if i == 0 else S)
        return
    nd = 2 * T + 2
    pump_until(nd + LAK)
    need(nd)
    for i in range(8):
        e("ds_read_b128 v[%d:%d], v%d offset:%d" % (AregK + 4 * i, AregK + 4 * i + 3, vKrd[i], (T % 4) * 8192))
    for i in range(8):
        e("s_waitcnt lgkmcnt(%d)" % (7 - i))
        mfma16(S, AregK + 4 * i, qB + 4 * i, None if i == 0 else S)
    st.freed = nd
    if T == HOLDN:
        pump(DI)
if HOLDN == 4:
    order = [(0, True)] + [(T, False) for T in range(4, 8)] + [(1, True), (2, True), (3, True)] + [(T, False) for T in range(8, 16)]
    AregK = HOLDR
else:
    order = [(T, False) for T in range(HOLDN, HOLDN + 4)] + [(T, True) for T in range(HOLDN)] + [(T, False) for T in range(HOLDN + 4, 16)]
    AregK = HOLDR + 32 * HOLDN
def read_level(k):
    e("v_mov_b32 v%d, %d\nds_read_b32 v%d, v%d\ns_waitcnt lgkmcnt(0)\nv_readfirstlane_b32 s55, v%d" % (vT3, LVL + 4 * k, vT3, vT3, vT3))
    st.use_level = True
for idx, (T, fr) in enumerate(order):
    if HOLDN and 2 <= idx < HOLDN + 4:
        pump(P["PBL"])
    if P["RANK"] and idx == P["RK1"]:
        read_level(0)
    ktile(T, fr)
stamp(3)
st.di0 = 0
e("; softmax")
pump(1, DT)
e("s_nop 7")
e("v_max3_f32 v%d, v%d, v%d, v%d" % (vM, Sreg, Sreg + 1, Sreg + 2))
i = 3; cnt = 0
while i < 64:
    if i + 1 < 64:
        e("v_max3_f32 v%d, v%d, v%d, v%d" % (vM, vM, Sreg + i, Sreg + i + 1)); i += 2
    else:
        e("v_max_f32 v%d, v%d, v%d" % (vM, vM, Sreg + i)); i += 1
    cnt += 1
    if P["PMAX"] and cnt % P["PMAX"] == 0:
        pump(1, DT)
e("s_mov_b32 exec_lo, 0x00030003\ns_mov_b32 exec_hi, 0x00030003")
e("ds_write_b32 v%d, v%d" % (vMwr, vM))
e("s_mov_b64 exec, -1")
pump(P["PB2"], DT)
e("s_waitcnt lgkmcnt(0)")
e("s_barrier")
for i in range(4):
    e("ds_read_b128 v[%d:%d], v%d offset:%d" % (vU + 4 * i, vU + 4 * i + 3, vMrd, 16 * i))
e("s_waitcnt lgkmcnt(0)")
e("v_max3_f32 v%d, v%d, v%d, v%d" % (vM, vU, vU + 1, vU + 2))
for i in range(3, 15, 2):
    e("v_max3_f32 v%d, v%d, v%d, v%d" % (vM, vM, vU + i, vU + i + 1))
e("v_max_f32 v%d, v%d, v%d" % (vM, vM, vU + 15))
e("s_mov_b32 s15, 0x%08x" % CEXP)
e("v_mul_f32 v%d, s15, v%d" % (vMc, vM))
e("v_mov_b32 v%d, 0\nv_mov_b32 v%d, 0" % (vL, vL + 1))
def fold(p0):
    e("v_add_f32 v%d, v%d, v%d\nv_add_f32 v%d, v%d, v%d" % (vL, vL, p0, vL + 1, vL + 1, p0 + 1))
    e("v_add_f32 v%d, v%d, v%d\nv_add_f32 v%d, v%d, v%d" % (vL, vL, p0 + 2, vL + 1, vL + 1, p0 + 3))
    e("v_cvt_pk_bf16_f32 v%d, v%d, v%d\nv_cvt_pk_bf16_f32 v%d, v%d, v%d" % (p0, p0, p0 + 1, p0 + 1, p0 + 2, p0 + 3))
for T in range(16):
    s0 = Sreg + 4 * T
    for r in range(4):
        e("v_fma_f32 v%d, v%d, s15, -v%d" % (s0 + r, s0 + r, vMc))
    for r in range(4):
        e("v_exp_f32 v%d, v%d" % (s0 + r, s0 + r))
    if T % P["PEVERY"] == P["PEVERY"] - 1:
        pump(1, DT)
    if T > 0:
        fold(Sreg + 4 * (T - 1))
e("s_nop 0")
fold(Sreg + 60)
e("v_add_f32 v%d, v%d, v%d" % (vL, vL, vL + 1))
e("s_mov_b32 exec_lo, 0x00030003\ns_mov_b32 exec_hi, 0x00030003")
for T in range(16):
    e("ds_write_b64 v%d, v[%d:%d] offset:%d" % (vPwr, Sreg + 4 * T, Sreg + 4 * T + 1, T * 128))
e("ds_write_b32 v%d, v%d offset:%d" % (vMwr, vL, LSUM - MAXX))
e("s_mov_b64 exec, -1")
for t in range(16):
    e("v_mov_b32 v%d, 0" % (acc + t))
if POOL:
    e("s_lshl_b32 s12, s8, 7\ns_add_u32 s12, s12, %d\nv_mov_b32 v%d, s12\nv_mov_b32 v%d, 1\nv_mov_b32 v%d, %d" % (WS_CNT, vCnt, vOne, vTk, TKB))
    e("v_add_u32 v%d, %d, v%d" % (vPP, PPB - PB, vPrd))
pump(P["PB2"], DT)
e("s_waitcnt lgkmcnt(0)")
e("s_barrier")
stamp(4)

def vunit_compute(paddr, poff, vaddrs, slot):
    e("ds_read_b128 v[%d:%d], v%d offset:%d" % (Pa, Pa + 3, paddr, poff))
    for t in range(4):
        e("ds_read_b64_tr_b16 v[%d:%d], v%d offset:%d" % (Vb + 4 * t, Vb + 4 * t + 1, vaddrs[t], slot))
        e("ds_read_b64_tr_b16 v[%d:%d], v%d offset:%d" % (Vb + 4 * t + 2, Vb + 4 * t + 3, vaddrs[t], slot + 1024))
    for t in range(4):
        e("s_waitcnt lgkmcnt(%d)" % (6 - 2 * t))
        mfma16(acc + 4 * t, Pa, Vb + 4 * t, acc + 4 * t)
def vunit(u):
    n = 32 + u
    e("; V unit %d" % u)
    if P["RANK"] and u == P["RK2"]:
        read_level(1)
    pump_until(n + 1 + LAV)
    need(n + 1)
    vunit_compute(vPrd, u * 64, vVrd, (n % 8) * 4096)
    st.freed = n + 1
    if u in (7, 15) or (u == 23 and not POOL):
        stamp(7 + (u - 7) // 8)

sI, sSo, sPo0, sPo1, sPo2, sV0, sV1, sTk = 60, 61, 62, 63, 88, 89, 90, 91
def decode(tk, po, valid):
    e("s_and_b32 s12, %s, 3\ns_lshr_b32 s13, %s, 2" % (tk, tk))
    e("s_lshl_b32 s%d, s12, 3\ns_add_u32 s%d, s%d, s13\ns_lshl_b32 s%d, s%d, 6" % (po, po, po, po, po))
    e("s_lshl_b32 s12, s12, 19\ns_lshl_b32 s13, s13, 14\ns_add_u32 s12, s12, s13\ns_add_u32 s12, s12, %d" % (NS * 16384))
    e("s_cmp_lt_u32 %s, %d\ns_cselect_b32 s%d, s12, 0x7fff0000" % (tk, 4 * NP, sSo))
    if valid is not None:
        e("s_cselect_b32 s%d, 1, 0" % valid)
def get_ticket_lds(dyn):
    lbl[0] += 1
    k = lbl[0]
    e("s_mov_b32 s15, 0\nL_tk%d:" % k)
    e("ds_read_b32 v%d, v%d%s\ns_waitcnt lgkmcnt(0)\nv_readfirstlane_b32 s%d, v%d" % (vAd + 5 - 5 + 0, vTk, "" if dyn is None else " offset:%d" % (4 * dyn), sTk, vAd))
    spin_guard("s15", "L_tkd%d" % k)
    e("s_cmp_eq_u32 s%d, -1\ns_cbranch_scc1 L_tk%d\nL_tkd%d:" % (sTk, k, k))
def dyn_compute(po):
    e("s_and_b32 s12, s%d, 7\ns_lshl_b32 s12, s12, 12" % sI)
    for t in range(4):
        e("v_add_u32 v%d, s12, v%d" % (vAd + t, vVrd[t]))
    e("v_add_u32 v%d, s%d, v%d" % (vAd + 4, po, vPP))
    vunit_compute(vAd + 4, 0, [vAd + t for t in range(4)], 0)
def dyn_loads():
    e("s_add_u32 s12, s%d, 2\ns_and_b32 s12, s12, 7\ns_lshl_b32 s12, s12, 12\ns_add_u32 m0, s10, s12\ns_mov_b32 s14, s%d" % (sI, sSo))
    for jj in range(4):
        e("buffer_load_dwordx4 v%d, s[36:39], s14 offen offset:%d %s lds" % (vVoff[jj], jj * 1024, vflags))
def rescale_acc():
    e("; switch from own scale to the pair's scale")
    e("v_mov_b32 v%d, %d\nds_read_b64 v[%d:%d], v%d\ns_waitcnt lgkmcnt(0)\ns_nop 4" % (vAd, FME, vU, vU + 1, vAd))
    for t in range(4):
        e("v_mul_f32 v%d, v%d, v%d\nv_mul_f32 v%d, v%d, v%d" % (acc + 4 * t, acc + 4 * t, vU, acc + 4 * t + 1, acc + 4 * t + 1, vU + 1))
    e("s_nop 1")

if not POOL:
    for u in range(32):
        if u == P["B3A"]:
            e("s_barrier")
        vunit(u)
else:
    UA = NS - 6
    assert P["B3B"] < UA or P["B3B"] >= NS
    for u in range(UA):
        if u == P["B3B"]:
            e("s_barrier")
        if u == P["B3A"]:
            e("s_barrier")
        vunit(u)
    e("s_cmp_lg_u32 s3, 0\ns_cbranch_scc1 L_vfollow")
    snap = copy.deepcopy(st)
    for lead in (True, False):
        if not lead:
            st = snap
            e("L_vfollow:")
        tag = "a" if lead else "b"
        aop = {}
        for u in range(UA, NS):
            n = 32 + u
            e("; V unit %d (%s)" % (u, "leader" if lead else "follower"))
            k = u - UA
            if lead and k < 4:
                e("s_mov_b64 exec, 1\nglobal_atomic_add v%d, v%d, v%d, s[%d:%d] sc0 sc1\ns_mov_b64 exec, -1" % (vA[k], vCnt, vOne, sWS, sWS + 1))
                aop[k] = st.ops; st.ops += 1
            pump_until(n + 1 + LAV)
            kk = u - (NS - 2)
            if kk >= 0:
                if lead:
                    wait_op(aop[kk])
                    e("v_readfirstlane_b32 s%d, v%d\ns_mov_b64 exec, 1\nds_write_b32 v%d, v%d offset:%d\ns_mov_b64 exec, -1" % (sTk, vA[kk], vTk, vA[kk], 4 * kk))
                else:
                    get_ticket_lds(kk)
                decode("s%d" % sTk, sPo0 if kk == 0 else sPo1, sV0 if kk == 0 else sV1)
                for jj in range(4):
                    issue_load(None, "s%d" % sSo)
            need(n + 1)
            vunit_compute(vPrd, u * 64, vVrd, (n % 8) * 4096)
            st.freed = n + 1
        stamp(9)
        if P["B3B"] >= NS:
            e("s_barrier")
        rescale_acc()
        e("s_mov_b32 s%d, 0\nv_add_u32 v%d, 8, v%d" % (sI, vTk, vTk))
        e("s_waitcnt vmcnt(4)")
        e("L_pool_%s:" % tag)
        for par in range(2 if lead else 1):
            if lead:
                e("s_waitcnt vmcnt(5)")
                va = vA[2 + par]
                e("v_readfirstlane_b32 s%d, v%d\ns_mov_b64 exec, 1\nds_write_b32 v%d, v%d\ns_mov_b64 exec, -1" % (sTk, va, vTk, va))
            else:
                e("s_waitcnt vmcnt(4)")
                get_ticket_lds(None)
            e("s_cmp_ge_u32 s%d, %d\ns_cbranch_scc1 L_drain_%s" % (sTk, 4 * NP, tag))
            if lead:
                e("s_mov_b64 exec, 1\nglobal_atomic_add v%d, v%d, v%d, s[%d:%d] sc0 sc1\ns_mov_b64 exec, -1" % (va, vCnt, vOne, sWS, sWS + 1))
            decode("s%d" % sTk, sPo2, None)
            dyn_loads()
            dyn_compute(sPo0)
            e("s_mov_b32 s%d, s%d\ns_mov_b32 s%d, s%d\ns_add_u32 s%d, s%d, 1\nv_add_u32 v%d, 4, v%d" % (sPo0, sPo1, sPo1, sPo2, sI, sI, vTk, vTk))
            e("s_mov_b32 s%d, 1\ns_mov_b32 s%d, 1" % (sV0, sV1))
        e("s_branch L_pool_%s" % tag)
        e("L_drain_%s:" % tag)
        e("s_cmp_eq_u32 s%d, 0\ns_cbranch_scc1 L_dr1_%s" % (sV0, tag))
        dyn_compute(sPo0)
        e("L_dr1_%s:" % tag)
        e("s_waitcnt vmcnt(0)")
        e("s_cmp_eq_u32 s%d, 0\ns_cbranch_scc1 L_dr2_%s" % (sV1, tag))
        e("s_add_u32 s%d, s%d, 1" % (sI, sI))
        dyn_compute(sPo1)
        e("L_dr2_%s:" % tag)
        if lead:
            e("s_branch L_vdone")
    e("L_vdone:")
stamp(5)
e("s_lshl_b32 s12, s8, 2\ns_add_u32 s12, s12, s3\ns_lshl_b32 s12, s12, 2\ns_add_u32 s12, s12, s7\ns_lshl_b32 s12, s12, 10\ns_add_u32 s12, s12, %d" % WS_OP)
e("v_lshlrev_b32 v%d, 4, v1\nv_add_u32 v%d, s12, v%d" % (vQrd, vQrd, vQrd))
e("s_mov_b32 s40, 0xffff0000\ns_mov_b32 s41, 0\ns_mov_b32 s42, 0\ns_mov_b32 s43, 0x0000ffff\ns_mov_b32 s44, 0\ns_mov_b32 s45, 0xffff0000")
e("v_mov_b32 v%d, s9\nv_mov_b32 v%d, s9" % (vU + 1, vU + 3))
e("s_nop 3")
for (m, a0) in (("s[40:41]", 4), ("s[42:43]", 8), ("s[44:45]", 12)):
    src0 = (acc + 0, acc + 1) if a0 == 4 else (vU, vU + 2)
    e("v_cndmask_b32 v%d, v%d, v%d, %s" % (vU, src0[0], acc + a0, m))
    e("v_cndmask_b32 v%d, v%d, v%d, %s" % (vU + 2, src0[1], acc + a0 + 1, m))
e("global_store_dwordx4 v%d, v[%d:%d], s[%d:%d] sc1" % (vQrd, vU, vU + 3, sWS, sWS + 1))
e("s_barrier")
stamp(6)
stamp_flush(10)
e("s_endpgm")

e("L_helper:")
e("s_sub_u32 s3, s3, 4              ; hw")
e("v_and_b32 v2, 15, v1             ; n\nv_lshrrev_b32 v3, 4, v1          ; g")
e("s_waitcnt lgkmcnt(0)")
e("s_cmp_lg_u32 s3, 0")
e("s_cbranch_scc0 L_w4")
if B0AT >= 0:
    e("s_barrier            ; B0")
e("s_branch L_h_b1")
e("L_w4:")
if P["prio"]:
    e("s_setprio 3")
e("s_load_dword s9, s[%d:%d], %d     ; epoch word" % (sWS, sWS + 1, WS_E))
e("s_mov_b32 s32, s%d\ns_mov_b32 s33, s%d\ns_mov_b32 s34, %d\ns_mov_b32 s35, 0x20000" % (sWQ, sWQ + 1, 448 * 8192))
e("s_mov_b32 s36, s%d\ns_mov_b32 s37, s%d\ns_mov_b32 s38, %d\ns_mov_b32 s39, 0x20000" % (sX, sX + 1, 8 * 896))
e("s_and_b32 s57, s4, 7              ; cl\ns_lshr_b32 s58, s4, 3             ; kq")
e("s_lshl_b32 s10, s58, 7\ns_mul_i32 s11, s58, 96\ns_add_u32 s11, s11, 64\ns_cmp_lt_u32 s58, 2\ns_cselect_b32 s10, s10, s11")
e("s_lshl_b32 s11, s10, 13\ns_lshl_b32 s12, s56, 10\ns_add_u32 s11, s11, s12\ns_lshl_b32 s12, s57, 7\ns_add_u32 s11, s11, s12")
e("v_lshrrev_b32 v4, 3, v1\nv_lshlrev_b32 v4, 13, v4\nv_and_b32 v5, 7, v1\nv_lshl_add_u32 v4, v5, 4, v4")
XB = 8
e("v_and_b32 v5, 7, v2\nv_mul_u32_u24 v5, 896, v5\nv_lshl_add_u32 v5, v3, 4, v5")
e("s_lshl_b32 s10, s10, 1")
def wq_loads(a, b):
    for m in range(a, b):
        e("s_mov_b32 m0, %d\ns_add_u32 s12, s11, %d" % (WQS + m * 1024, m * 8 * 8192))
        e("buffer_load_dwordx4 v4, s[32:35], s12 offen %s lds" % wqflags)
def x_load(ks):
    e("buffer_load_dwordx4 v[%d:%d], v5, s[36:39], s10 offen offset:%d %s" % (XB + 4 * ks, XB + 4 * ks + 3, ks * 64, xflags))
wq_loads(0, 12)
for ks in range(3):
    x_load(ks)
e("s_cmp_lt_u32 s58, 2\ns_cbranch_scc0 L_q3")
wq_loads(12, 16); x_load(3)
e("L_q3:")
if POOL:
    e("s_cmp_ge_u32 s4, 8\ns_cbranch_scc1 L_nocnt")
    e("s_lshl_b32 s12, s4, 3\ns_add_u32 s12, s12, s56\ns_lshl_b32 s12, s12, 7\ns_add_u32 s12, s12, %d\nv_mov_b32 v6, s12\nv_mov_b32 v7, 0" % WS_CNT)
    e("s_mov_b64 exec, 1\nglobal_store_dword v6, v7, s[%d:%d] sc1\ns_mov_b64 exec, -1" % (sWS, sWS + 1))
    e("L_nocnt:")
e("v_lshlrev_b32 v6, 10, v3\nv_lshrrev_b32 v7, 2, v2\nv_lshl_add_u32 v6, v7, 7, v6\nv_and_b32 v7, 3, v2\nv_lshl_add_u32 v6, v7, 3, v6\nv_add_u32 v6, %d, v6" % WQS)
e("v_and_b32 v7, 7, v2\nv_lshlrev_b32 v7, 17, v7\nv_lshl_add_u32 v7, v3, 5, v7\nv_lshrrev_b32 v24, 3, v2\nv_lshl_add_u32 v7, v24, 4, v7")
e("s_lshl_b32 s11, s56, 2\ns_add_u32 s11, s11, s58\ns_lshl_b32 s11, s11, 12\ns_lshl_b32 s12, s57, 9\ns_add_u32 s11, s11, s12\ns_add_u32 s11, s11, %d\nv_add_u32 v7, s11, v7" % WS_Q)
e("s_waitcnt vmcnt(0) lgkmcnt(0)")
e("s_add_u32 s9, s9, 0x%08x        ; tag of this launch" % TAGC)
WA = 32; QA = 64
def q_reads(ks):
    b0 = WA + 16 * (ks & 1)
    for ct in range(4):
        e("ds_read_b64_tr_b16 v[%d:%d], v6 offset:%d" % (b0 + 4 * ct, b0 + 4 * ct + 1, ks * 4096 + ct * 32))
        e("ds_read_b64_tr_b16 v[%d:%d], v6 offset:%d" % (b0 + 4 * ct + 2, b0 + 4 * ct + 3, ks * 4096 + 512 + ct * 32))
def q_mfma(ks):
    b0 = WA + 16 * (ks & 1)
    for ct in range(4):
        mfma16(QA + 4 * ct, b0 + 4 * ct, XB + 4 * ks, None if ks == 0 else QA + 4 * ct)
q_reads(0); q_reads(1)
e("s_waitcnt lgkmcnt(8)"); q_mfma(0)
q_reads(2)
e("s_waitcnt lgkmcnt(8)"); q_mfma(1)
e("s_cmp_lt_u32 s58, 2\ns_cbranch_scc0 L_q3b")
q_reads(3)
e("s_waitcnt lgkmcnt(8)"); q_mfma(2)
e("s_waitcnt lgkmcnt(0)"); q_mfma(3)
e("s_branch L_q3c\nL_q3b:")
e("s_waitcnt lgkmcnt(0)"); q_mfma(2)
e("L_q3c:")
QT = 96
e("s_mov_b32 s40, 0xff00ff00\ns_mov_b32 s41, 0xff00ff00")
for ct in range(4):
    e("v_mov_b32 v%d, s9\nv_mov_b32 v%d, s9" % (QT + 4 * ct + 1, QT + 4 * ct + 3))
e("s_nop 1")
for ct in range(4):
    e("v_cndmask_b32 v%d, v%d, v%d, s[40:41]" % (QT + 4 * ct, QA + 4 * ct, QA + 4 * ct + 2))
    e("v_cndmask_b32 v%d, v%d, v%d, s[40:41]" % (QT + 4 * ct + 2, QA + 4 * ct + 1, QA + 4 * ct + 3))
for ct in range(4):
    e("global_store_dwordx4 v7, v[%d:%d], s[%d:%d] offset:%d sc1" % (QT + 4 * ct, QT + 4 * ct + 3, sWS, sWS + 1, ct * 128))
stamp(1)
if POOL:
    e("v_lshlrev_b32 v12, 2, v1\nv_add_u32 v12, %d, v12\nv_mov_b32 v13, -1\ns_mov_b32 exec_lo, -1\ns_mov_b32 exec_hi, 0x0000ffff" % TKB)
    e("ds_write_b32 v12, v13\ns_mov_b64 exec, -1")
e("s_lshl_b32 s11, s8, 14\ns_add_u32 s11, s11, %d" % WS_Q)
e("v_lshlrev_b32 v8, 4, v1\nv_add_u32 v8, s11, v8")
for kq in range(1, 4):
    e("v_add_u32 v%d, %d, v8" % (8 + kq, kq * 4096))
e("s_mov_b32 s13, 0")
GQ = 128
if B0AT >= 0:
    e("s_barrier            ; B0")
e("L_pollq:")
for kq in range(4):
    for i in range(4):
        r = GQ + 16 * kq + 4 * i
        e("global_load_dwordx4 v[%d:%d], v%d, s[%d:%d] offset:%d sc1" % (r, r + 3, 8 + kq, sWS, sWS + 1, i * 1024))
e("s_waitcnt vmcnt(0)")
tags_ok([GQ + 4 * k + o for k in range(16) for o in (1, 3)], "L_pollq_done", 12, 13)
spin_guard("s13", "L_pollq_done")
e("s_branch L_pollq")
e("L_pollq_done:")
e("v_lshlrev_b32 v7, 2, v1\nv_add_u32 v7, %d, v7" % QB)
for i in range(4):
    r = GQ + 4 * i
    e("v_add_f32 v%d, v%d, v%d\nv_add_f32 v%d, v%d, v%d" % (r, r, r + 16, r + 2, r + 2, r + 18))
    e("v_add_f32 v%d, v%d, v%d\nv_add_f32 v%d, v%d, v%d" % (r + 32, r + 32, r + 48, r + 34, r + 34, r + 50))
    e("v_add_f32 v%d, v%d, v%d\nv_add_f32 v%d, v%d, v%d" % (r, r, r + 32, r + 2, r + 2, r + 34))
    e("v_cvt_pk_bf16_f32 v%d, v%d, v%d" % (r, r, r + 2))
    e("ds_write_b32 v7, v%d offset:%d" % (r, i * 256))
e("v_mov_b32 v8, %d\nv_mov_b32 v9, s9\nds_write_b32 v8, v9" % TAGL)
if P["RANK"]:
    e("v_mov_b32 v8, %d\nv_mov_b32 v10, 1\nv_mov_b32 v11, 1\nds_write_b64 v8, v[10:11]" % LVL)
e("s_waitcnt lgkmcnt(0)")
if P["prio"]:
    e("s_setprio 0")
e("L_h_b1:")
stamp(2)
e("s_barrier            ; B1")
if DSP == 2:
    e("s_memrealtime s[94:95]\ns_waitcnt lgkmcnt(0)")

e("v_mov_b32 v8, %d\nds_read_b32 v8, v8\ns_waitcnt lgkmcnt(0)\nv_readfirstlane_b32 s9, v8" % TAGL)
def rank_checkpoint(k):
    lbl[0] += 1
    lab = "L_rk%d" % lbl[0]
    e("s_cmp_lg_u32 s3, 1\ns_cbranch_scc1 %s" % lab)
    e("s_mov_b64 exec, 1\nv_mov_b32 v10, %d\nv_mov_b32 v11, 1\nglobal_atomic_add v12, v10, v11, s[%d:%d] sc0 sc1\ns_waitcnt vmcnt(0)" % (4 * k, sDBG, sDBG + 1))
    e("v_readfirstlane_b32 s12, v12\ns_nop 3\ns_cmp_ge_u32 s12, %d\ns_cselect_b32 s13, 1, 0\ns_cmp_ge_u32 s12, %d\ns_cselect_b32 s13, 2, s13" % (P["TLO"], P["THI"]))
    e("v_mov_b32 v10, %d\nv_mov_b32 v11, s13\nds_write_b32 v10, v11\ns_waitcnt lgkmcnt(0)\ns_mov_b64 exec, -1" % (LVL + 4 * k))
    e("%s:" % lab)
if P["RANK"]:
    rank_checkpoint(0)
e("s_mov_b32 s32, s%d\ns_mov_b32 s33, s%d\ns_mov_b32 s34, %d\ns_mov_b32 s35, 0x20000" % (sWO, sWO + 1, 4096 * 896))
e("v_mul_u32_u24 v47, %d, v3\nv_lshl_add_u32 v47, v2, 4, v47\ns_lshl_b32 s10, s3, 8\nv_add_u32 v47, s10, v47" % (8 * 896))
e("s_cmp_eq_u32 s3, 3\ns_cselect_b32 s12, 0x7fffffff, 0")
e("v_mov_b32 v9, s12\nv_cmp_lt_u32 vcc, 7, v2\ns_nop 1\nv_cndmask_b32 v9, 0, v9, vcc\nv_or_b32 v47, v47, v9")
e("s_lshl_b32 s54, s5, 9\ns_lshl_b32 s11, s7, 6\ns_add_u32 s54, s54, s11\ns_mul_i32 s54, s54, 896")
e("s_mov_b32 s46, 0x05040100\ns_mov_b32 s47, 0x07060302")
RAW = 96; WOH = [128 + 32 * ks for ks in range(4)]
def wo_load(ks):
    rowoff = ((ks >> 1) * 256 + (ks & 1) * 32) * 896
    R = P["worr"]
    for j0 in range(0, 8, R):
        if P["woprio"]:
            e("s_setprio 3")
        for j in range(j0, j0 + R):
            e("s_add_u32 s12, s54, %d" % (rowoff + j * 896))
            e("buffer_load_dwordx4 v[%d:%d], v47, s[32:35], s12 offen %s" % (RAW + 4 * j, RAW + 4 * j + 3, woflags))
        if P["woprio"]:
            e("s_setprio 0")
        e("s_waitcnt vmcnt(0)")
    for t in range(8):
        for p in range(4):
            e("v_perm_b32 v%d, v%d, v%d, %s" % (WOH[ks] + t * 4 + p, RAW + 4 * (2 * p + 1) + (t >> 1), RAW + 4 * (2 * p) + (t >> 1), "s47" if (t & 1) else "s46"))
NPRE = P["wopre"]
for ks in range(NPRE):
    wo_load(ks)
stamp(3)
e("s_barrier            ; B2")
e("s_barrier            ; B3")
if DSP == 3:
    e("s_memrealtime s[94:95]\ns_waitcnt lgkmcnt(0)")

if P["RANK"]:
    rank_checkpoint(1)
e("s_cmp_lg_u32 s3, 0\ns_cbranch_scc1 L_h_wo2")
e("v_and_b32 v4, 1, v2\nv_lshlrev_b32 v4, 6, v4\nv_add_u32 v4, %d, v4" % MAXX)
for i in range(4):
    e("ds_read_b128 v[%d:%d], v4 offset:%d" % (8 + 4 * i, 8 + 4 * i + 3, 16 * i))
for i in range(4):
    e("ds_read_b128 v[%d:%d], v4 offset:%d" % (24 + 4 * i, 24 + 4 * i + 3, LSUM - MAXX + 16 * i))
if POOL:
    e("v_lshrrev_b32 v5, 5, v1\nv_mul_u32_u24 v5, %d, v5\nv_and_b32 v6, 31, v1\nv_lshl_add_u32 v5, v6, 4, v5\nv_add_u32 v5, %d, v5" % (HS, PB + NS * 64))
    e("ds_read_b128 v[56:59], v5")
e("s_waitcnt lgkmcnt(0)")
e("v_max3_f32 v40, v8, v9, v10")
for i in range(3, 15, 2):
    e("v_max3_f32 v40, v40, v%d, v%d" % (8 + i, 8 + i + 1))
e("v_max_f32 v40, v40, v23")
e("v_add_f32 v42, v24, v25")
for i in range(2, 16):
    e("v_add_f32 v42, v42, v%d" % (24 + i))
e("v_mov_b32 v41, s9\nv_mov_b32 v43, s9")
e("s_lshl_b32 s10, s8, 2\ns_add_u32 s10, s10, s7\ns_lshl_b32 s12, s10, 5\ns_add_u32 s12, s12, %d" % WS_ST)
e("v_lshlrev_b32 v5, 4, v1\nv_add_u32 v6, s12, v5")
e("s_mov_b64 exec, 3\nglobal_store_dwordx4 v6, v[40:43], s[%d:%d] sc1\ns_mov_b64 exec, -1" % (sWS, sWS + 1))
if POOL:
    e("v_mov_b32 v60, v56\nv_mov_b32 v61, s9\nv_mov_b32 v62, v57\nv_mov_b32 v63, s9")
    e("v_mov_b32 v64, v58\nv_mov_b32 v65, s9\nv_mov_b32 v66, v59\nv_mov_b32 v67, s9")
    e("s_lshl_b32 s12, s10, 11\ns_add_u32 s12, s12, %d\nv_add_u32 v6, s12, v5" % WS_PP)
    e("global_store_dwordx4 v6, v[60:63], s[%d:%d] sc1\nglobal_store_dwordx4 v6, v[64:67], s[%d:%d] offset:1024 sc1" % (sWS, sWS + 1, sWS, sWS + 1))
N4A = NPRE
if P["B3A"] >= 0:
    for ks in range(NPRE, min(4, NPRE + P["wo4a"])):
        wo_load(ks)
        N4A = ks + 1
    e("s_barrier            ; B3a")
e("s_lshl_b32 s10, s8, 7\ns_add_u32 s10, s10, %d" % WS_ST)
e("v_and_b32 v5, 1, v1\nv_lshlrev_b32 v5, 4, v5\nv_add_u32 v5, s10, v5")
e("s_mov_b32 s13, 0")
e("L_polls:")
for s_ in range(4):
    e("global_load_dwordx4 v[%d:%d], v5, s[%d:%d] offset:%d sc1" % (8 + 4 * s_, 8 + 4 * s_ + 3, sWS, sWS + 1, 32 * s_))
e("s_waitcnt vmcnt(0)")
tags_ok([8 + 4 * k + o for k in range(4) for o in (1, 3)], "L_polls_done", 0, 0)
spin_guard("s13", "L_polls_done")
e("s_sleep %d\ns_branch L_polls" % P["ssleep"])
e("L_polls_done:")
e("v_max3_f32 v24, v8, v12, v16\nv_max_f32 v24, v24, v20")
e("s_mov_b32 s15, 0x%08x" % CEXP)
for s_ in range(4):
    e("v_sub_f32 v%d, v%d, v24\nv_mul_f32 v%d, s15, v%d" % (26 + s_, 8 + 4 * s_, 26 + s_, 26 + s_))
for s_ in range(4):
    e("v_exp_f32 v%d, v%d" % (26 + s_, 26 + s_))
e("s_nop 0")
e("v_mul_f32 v30, v26, v10\nv_fmac_f32 v30, v27, v14\nv_fmac_f32 v30, v28, v18\nv_fmac_f32 v30, v29, v22")
e("v_rcp_f32 v31, v30\ns_nop 0\nv_fma_f32 v32, -v30, v31, 2.0\nv_mul_f32 v31, v31, v32")
if not POOL:
    for s_ in range(4):
        e("v_mul_f32 v%d, v%d, v31" % (26 + s_, 26 + s_))
    e("s_nop 1")
    for s_ in range(4):
        e("v_mov_b32_dpp v%d, v%d quad_perm:[0,0,0,0] row_mask:0xf bank_mask:0xf" % (48 + s_, 26 + s_))
        e("v_mov_b32_dpp v%d, v%d quad_perm:[1,1,1,1] row_mask:0xf bank_mask:0xf" % (52 + s_, 26 + s_))
else:
    e("s_nop 1")
    e("v_mov_b32_dpp v48, v31 quad_perm:[0,0,0,0] row_mask:0xf bank_mask:0xf\nv_mov_b32_dpp v52, v31 quad_perm:[1,1,1,1] row_mask:0xf bank_mask:0xf")
    e("v_mov_b32 v33, v26")
    for k in range(1, 4):
        e("s_cmp_eq_u32 s7, %d\ns_cselect_b64 s[40:41], -1, 0\nv_cndmask_b32 v33, v33, v%d, s[40:41]" % (k, 26 + k))
    e("v_lshlrev_b32 v34, 2, v1\nv_add_u32 v34, %d, v34\ns_mov_b64 exec, 3\nds_write_b32 v34, v33\ns_mov_b64 exec, -1" % FME)
    for o in range(4):
        e("v_mov_b32_dpp v%d, v%d quad_perm:[0,0,0,0] row_mask:0xf bank_mask:0xf" % (36 + o, 26 + o))
        e("v_mov_b32_dpp v%d, v%d quad_perm:[1,1,1,1] row_mask:0xf bank_mask:0xf" % (40 + o, 26 + o))
    e("s_mov_b32 s40, 0\ns_mov_b32 s41, -1")
    for o in range(4):
        e("v_cndmask_b32 v%d, v%d, v%d, s[40:41]" % (36 + o, 36 + o, 40 + o))
    e("s_lshl_b32 s10, s8, 13\ns_add_u32 s10, s10, %d\nv_lshlrev_b32 v5, 4, v1\nv_add_u32 v5, s10, v5\nv_add_u32 v6, 4096, v5" % WS_PP)
    e("s_mov_b32 s13, 0")
    GP = 56
    e("L_pollp:")
    for o in range(4):
        for i in range(2):
            r = GP + 8 * o + 4 * i
            e("global_load_dwordx4 v[%d:%d], v%d, s[%d:%d] offset:%d sc1" % (r, r + 3, 5 if o < 2 else 6, sWS, sWS + 1, (o & 1) * 2048 + i * 1024))
    e("s_waitcnt vmcnt(0)")
    tags_ok([GP + 4 * k + o for k in range(8) for o in (1, 3)], "L_pollp_done", 12, 13)
    spin_guard("s13", "L_pollp_done")
    e("s_sleep %d\ns_branch L_pollp" % P["ssleep"])
    e("L_pollp_done:")
    e("v_lshrrev_b32 v7, 5, v1\nv_mul_u32_u24 v7, %d, v7\nv_and_b32 v8, 31, v1\nv_lshl_add_u32 v7, v8, 4, v7\nv_add_u32 v7, %d, v7" % (HS, PPB))
    for o in range(4):
        for i in range(2):
            r = GP + 8 * o + 4 * i
            for d in (0, 2):
                e("v_lshlrev_b32 v8, 16, v%d\nv_and_b32 v9, 0xffff0000, v%d" % (r + d, r + d))
                e("v_mul_f32 v8, v8, v%d\nv_mul_f32 v9, v9, v%d" % (36 + o, 36 + o))
                e("v_cvt_pk_bf16_f32 v%d, v8, v9" % (r + d // 2))
            e("ds_write_b64 v7, v[%d:%d] offset:%d" % (r, r + 1, o * 512 + i * 8))
    e("s_waitcnt lgkmcnt(0)")
    e("s_barrier            ; B3b")
for ks in range(N4A, 4):
    wo_load(ks)
e("s_branch L_h_b4")
e("L_h_wo2:")
for ks in range(NPRE, 4):
    wo_load(ks)
if P["B3A"] >= 0:
    e("s_barrier            ; B3a")
if POOL:
    e("s_barrier            ; B3b")
e("L_h_b4:")
stamp(4)
e("s_lshl_b32 s10, s8, 2\ns_add_u32 s10, s10, s7\ns_lshl_b32 s10, s10, 12\ns_add_u32 s10, s10, %d" % WS_OP)
e("v_lshlrev_b32 v5, 4, v1\nv_add_u32 v5, s10, v5")
e("v_lshlrev_b32 v6, 1, v1\nv_add_u32 v6, %d, v6" % OST)
e("v_lshlrev_b32 v7, 4, v3\nv_add_u32 v7, %d, v7" % OST)
e("s_lshl_b32 s11, s5, 2\ns_add_u32 s11, s11, s7          ; p")
e("s_mul_i32 s12, s6, 28\ns_lshl_b32 s13, s3, 3\ns_add_u32 s12, s12, s13\ns_lshl_b32 s12, s12, 5\ns_add_u32 s12, s12, s11\ns_lshl_b32 s12, s12, 7\ns_add_u32 s12, s12, %d" % WS_OUT)
e("v_lshrrev_b32 v44, 1, v2\nv_lshlrev_b32 v44, 12, v44")
e("v_and_b32 v45, 1, v2\nv_lshl_add_u32 v45, v45, 2, v3\nv_lshl_add_u32 v44, v45, 4, v44\nv_add_u32 v44, s12, v44")
e("s_mul_i32 s12, s6, 28\ns_add_u32 s12, s12, s11\ns_lshl_b32 s12, s12, 12\ns_add_u32 s12, s12, %d" % WS_OUT)
e("v_lshlrev_b32 v46, 4, v1\nv_add_u32 v46, s12, v46")
e("s_mov_b32 s48, 0xffff0000\ns_mov_b32 s49, 0\ns_mov_b32 s50, 0\ns_mov_b32 s51, 0x0000ffff\ns_mov_b32 s52, 0\ns_mov_b32 s53, 0xffff0000")
e("s_barrier            ; B4")
if DSP == 4:
    e("s_memrealtime s[94:95]\ns_waitcnt lgkmcnt(0)")
stamp(5)
e("s_cmp_lg_u32 s3, 0\ns_cbranch_scc1 L_h_b5")
e("s_mov_b32 s13, 0")
e("L_polla:")
for s_ in range(4):
    e("global_load_dwordx4 v[%d:%d], v5, s[%d:%d] offset:%d sc1" % (8 + 4 * s_, 8 + 4 * s_ + 3, sWS, sWS + 1, 1024 * s_))
e("s_waitcnt vmcnt(0)")
tags_ok([8 + 4 * k + o for k in range(4) for o in (1, 3)], "L_polla_done", 0, 0)
spin_guard("s13", "L_polla_done")
if P["asleep"]:
    e("s_sleep %d" % P["asleep"])
e("s_branch L_polla")
e("L_polla_done:")
if POOL:
    e("v_add_f32 v24, v8, v12\nv_add_f32 v25, v10, v14\nv_add_f32 v26, v16, v20\nv_add_f32 v27, v18, v22")
    e("v_add_f32 v24, v24, v26\nv_add_f32 v25, v25, v27\nv_mul_f32 v24, v24, v48\nv_mul_f32 v25, v25, v52")
else:
    e("v_mul_f32 v24, v48, v8\nv_mul_f32 v25, v52, v10")
    for s_ in range(1, 4):
        e("v_fmac_f32 v24, v%d, v%d\nv_fmac_f32 v25, v%d, v%d" % (48 + s_, 8 + 4 * s_, 52 + s_, 10 + 4 * s_))
e("v_cvt_pk_bf16_f32 v24, v24, v25")
e("ds_write_b16 v6, v24\nds_write_b16_d16_hi v6, v24 offset:128")
e("s_waitcnt lgkmcnt(0)")
e("L_h_b5:")
stamp(6)
e("s_barrier")
for ks in range(4):
    e("ds_read_b128 v[%d:%d], v7 offset:%d" % (8 + 4 * ks, 8 + 4 * ks + 3, ks * 64))
OA = 56
for ks in range(4):
    e("s_waitcnt lgkmcnt(%d)" % (3 - ks))
    for t in range(8):
        mfma16(OA + 4 * t, 8 + 4 * ks, WOH[ks] + t * 4, None if ks == 0 else OA + 4 * t)
e("v_mov_b32 v25, s9\nv_mov_b32 v27, s9")
e("s_nop 7")
e("v_cndmask_b32 v24, v%d, v%d, s[48:49]\nv_cndmask_b32 v26, v%d, v%d, s[48:49]" % (OA, OA + 8, OA + 4, OA + 12))
e("v_cndmask_b32 v24, v24, v%d, s[50:51]\nv_cndmask_b32 v26, v26, v%d, s[50:51]" % (OA + 16, OA + 20))
e("v_cndmask_b32 v24, v24, v%d, s[52:53]\nv_cndmask_b32 v26, v26, v%d, s[52:53]" % (OA + 24, OA + 28))
e("s_cmp_eq_u32 s3, 3\ns_cselect_b32 s12, 0x00ff00ff, -1\ns_mov_b32 exec_lo, s12\ns_mov_b32 exec_hi, s12")
e("global_store_dwordx4 v44, v[24:27], s[%d:%d] sc1" % (sWS, sWS + 1))
e("s_mov_b64 exec, -1")
stamp(7)
e("s_cmp_lg_u32 s3, 0\ns_cbranch_scc1 L_h_done")
e("s_cmp_ge_u32 s11, 28\ns_cbranch_scc1 L_h_done")
e("s_mov_b32 s13, 0")
e("L_pollo:")
for i in range(4):
    e("global_load_dwordx4 v[%d:%d], v46, s[%d:%d] offset:%d sc1" % (8 + 4 * i, 8 + 4 * i + 3, sWS, sWS + 1, 1024 * i))
e("s_waitcnt vmcnt(0)")
tags_ok([8 + 4 * k + o for k in range(4) for o in (1, 3)], "L_pollo_done", 0, 0)
spin_guard("s13", "L_pollo_done")
if P["osleep"]:
    e("s_sleep %d" % P["osleep"])
e("s_branch L_pollo")
e("L_pollo_done:")
e("v_add_f32 v24, v8, v12\nv_add_f32 v25, v10, v14\nv_add_f32 v26, v16, v20\nv_add_f32 v27, v18, v22")
e("v_add_f32 v24, v24, v26\nv_add_f32 v25, v25, v27")
e("s_nop 1")
e("v_add_f32_dpp v24, v24, v24 row_ror:8 row_mask:0xf bank_mask:0xf\nv_add_f32_dpp v25, v25, v25 row_ror:8 row_mask:0xf bank_mask:0xf")
e("v_mov_b32 v26, v24\nv_mov_b32 v27, v25\ns_nop 1")
e("v_permlane16_swap_b32 v24, v26\nv_permlane16_swap_b32 v25, v27")
e("v_add_f32 v24, v24, v26\nv_add_f32 v25, v25, v27")
e("v_mov_b32 v26, v24\nv_mov_b32 v27, v25\ns_nop 1")
e("v_permlane32_swap_b32 v24, v26\nv_permlane32_swap_b32 v25, v27")
e("v_add_f32 v24, v24, v26\nv_add_f32 v25, v25, v27")
e("v_cvt_pk_bf16_f32 v24, v24, v25")
e("s_mul_i32 s12, s6, 896\ns_lshl_b32 s13, s11, 5\ns_add_u32 s12, s12, s13")
e("v_lshlrev_b32 v26, 2, v1\nv_add_u32 v26, s12, v26")
e("s_mov_b64 exec, 0xff")
e("global_store_dword v26, v24, s[%d:%d]" % (sOUT, sOUT + 1))
e("s_cmp_lg_u32 s2, 0\ns_cbranch_scc1 L_h_done")
e("s_mov_b64 exec, 1")
e("v_mov_b32 v26, %d\nv_mov_b32 v27, s9" % WS_E)
e("global_store_dword v26, v27, s[%d:%d] sc1      ; next launch's epoch" % (sWS, sWS + 1))
if DSP:
    e("s_cmp_lg_u32 s2, 0\ns_cbranch_scc1 L_h_done")
    if DSP == 1:
        e("s_memrealtime s[94:95]\ns_waitcnt lgkmcnt(0)")
    e("s_sub_u32 s12, s94, s92")
    e("s_min_u32 s12, s12, 20000")
    e("s_memrealtime s[94:95]\ns_waitcnt lgkmcnt(0)\ns_add_u32 s13, s94, s12")
    e("L_dspin:\ns_memrealtime s[94:95]\ns_waitcnt lgkmcnt(0)\ns_sub_u32 s14, s13, s94\ns_cmp_gt_i32 s14, 0\ns_cbranch_scc1 L_dspin")
e("L_h_done:")
stamp(8)
if STAMPS:
    e("s_add_u32 s3, s3, 4")
stamp_flush(9)
e("L_end:")
e("s_endpgm")

e('.section .rodata,"a"\n.p2align 6\n.amdhsa_kernel %s' % KN)
e("  .amdhsa_next_free_vgpr 256\n  .amdhsa_next_free_sgpr 96\n  .amdhsa_accum_offset 256")
e("  .amdhsa_group_segment_fixed_size 0\n  .amdhsa_kernarg_size 64\n  .amdhsa_user_sgpr_count 2\n  .amdhsa_user_sgpr_kernarg_segment_ptr 1\n  .amdhsa_system_sgpr_workgroup_id_x 1")
e("  .amdhsa_float_denorm_mode_32 3")
e(".end_amdhsa_kernel")
open(out, "w").write("\n".join(L) + "\n")
```

```python
import sys, struct, copy

out = sys.argv[1]
P = dict(stamps=0, DI=6, DT=9, LAK=2, LAV=2, HOLD=4, B0AT=2, PBL=2, PEVERY=2, PMAX=0, PB2=2,
         NS=24, B3B=99, B3A=13, wo4a=1, wopre=2, worr=8, woprio=1, prio=1, spinmax=200000,
         kflags="nt", vflags="nt", wqflags="nt", woflags="nt", xflags="none", asleep=0, osleep=0, ssleep=8, MAP=1, RANK=0, QMODE=2, gflags="sc1", XLO=1, XHI=1, TLO=85, THI=170, RK1=9, RK2=3)
for a in sys.argv[2:]:
    k, v = a.split("=")
    P[k] = int(v) if v.lstrip("-").isdigit() else v
def fl(name):
    return P[name].replace("+", " ").replace("none", "")
kflags, vflags, wqflags, woflags, xflags = fl("kflags"), fl("vflags"), fl("wqflags"), fl("woflags"), fl("xflags")
STAMPS = P["stamps"]
NS = P["NS"]
NP = 32 - NS
POOL = NP > 0
assert NP in (0, 8)

L = []
def e(s=""):
    L.extend(s.split("\n"))

KN = "standalone__gqa_block_cached__decode_kernel"

WQS = 131072
PB = 131072
HS = 2112
PPB = PB + 4352
TKB = PPB + 4352
FME = TKB + 192
QB = 147456
MAXX = QB + 1024
LSUM = MAXX + 128
TAGL = LSUM + 128
OST = TAGL + 64
DBGL = OST + 256
LVL = DBGL + 64
LDS_TOTAL = LVL + 64
assert FME + 8 <= QB

WS_E = 0x0
WS_CNT = 0x10000
WS_ST = 0x30000
WS_OP = 0x40000
WS_OUT = 0x140000
WS_Q = 0x300000
WS_PP = 0x400000
WS_STAMP = 400 * 1024 * 1024
TAGC = 0x9E3779B9
CEXP = struct.unpack("<I", struct.pack("<f", 1.4426950408889634 / 16.0))[0]

e("; @launch grid=(256,1,1) block=(512,1,1) lds=%d" % LDS_TOTAL)
e('.amdgcn_target "amdgcn-amd-amdhsa--gfx950"')
e(".text")
e(".globl %s\n.p2align 8\n.type %s,@function\n%s:" % (KN, KN, KN))

sX, sK, sV, sWQ, sWO, sOUT, sDBG, sWS = 16, 18, 20, 22, 24, 26, 28, 30
stampregs = list(range(64, 84, 2))
def stamp(i):
    if STAMPS:
        e("s_memrealtime s[%d:%d]\ns_waitcnt lgkmcnt(0)" % (stampregs[i], stampregs[i] + 1))
def stamp_flush(n):
    if STAMPS != 1:
        return
    e("s_getreg_b32 s84, hwreg(HW_REG_XCC_ID)")
    e("s_lshl_b32 s85, s2, 3\ns_add_u32 s85, s85, s3\ns_lshl_b32 s85, s85, 7\ns_add_u32 s85, s85, %d" % WS_STAMP)
    e("s_add_u32 s86, s%d, s85\ns_addc_u32 s87, s%d, 0" % (sWS, sWS + 1))
    e("s_mov_b64 exec, 1\nv_mov_b32 v1, 0")
    for i in range(10):
        k = min(i, n - 1)
        e("v_mov_b32 v2, s%d\nv_mov_b32 v3, s%d" % (stampregs[k], stampregs[k] + 1))
        e("global_store_dwordx2 v1, v[2:3], s[86:87] offset:%d\ns_nop 1" % (i * 8))
    e("v_mov_b32 v2, s84\nv_mov_b32 v3, 0\nglobal_store_dwordx2 v1, v[2:3], s[86:87] offset:80\ns_waitcnt vmcnt(0)")

def spin_guard(cnt, label):
    e("s_add_u32 %s, %s, 1\ns_cmp_gt_u32 %s, %d\ns_cbranch_scc1 %s" % (cnt, cnt, cnt, P["spinmax"], label))

def tags_ok(regs, okl, tmp0, tmp1):
    if len(regs) <= 8:
        e("s_mov_b64 s[40:41], 0")
        for r in regs:
            e("v_cmp_ne_u32 vcc, s9, v%d\ns_or_b64 s[40:41], s[40:41], vcc" % r)
    else:
        e("v_min3_u32 v%d, v%d, v%d, v%d\nv_max3_u32 v%d, v%d, v%d, v%d" % (tmp0, regs[0], regs[1], regs[2], tmp1, regs[0], regs[1], regs[2]))
        k = 3
        while k < len(regs):
            if k + 1 < len(regs):
                e("v_min3_u32 v%d, v%d, v%d, v%d\nv_max3_u32 v%d, v%d, v%d, v%d" % (tmp0, tmp0, regs[k], regs[k + 1], tmp1, tmp1, regs[k], regs[k + 1])); k += 2
            else:
                e("v_min_u32 v%d, v%d, v%d\nv_max_u32 v%d, v%d, v%d" % (tmp0, tmp0, regs[k], tmp1, tmp1, regs[k])); k += 1
        e("v_cmp_ne_u32 s[40:41], s9, v%d\nv_cmp_ne_u32 vcc, s9, v%d\ns_or_b64 s[40:41], s[40:41], vcc" % (tmp0, tmp1))
    e("s_cmp_eq_u64 s[40:41], 0\ns_cbranch_scc1 %s" % okl)

e("s_cmp_ge_u32 s2, 256")
e("s_cbranch_scc1 L_end")
if STAMPS:
    e("s_memrealtime s[64:65]")
DSP = P.get("diagspin", 0)
if DSP:
    e("s_memrealtime s[92:93]")
e("s_load_dwordx16 s[16:31], s[0:1], 0")
e("v_lshrrev_b32 v1, 6, v0")
e("s_and_b32 s56, s2, 7             ; x")
e("v_readfirstlane_b32 s3, v1       ; wave")
e("s_lshr_b32 s4, s2, 3             ; y")
if P["MAP"] == 1:
    e("s_lshr_b32 s7, s56, 1            ; sp")
    e("s_xor_b32 s8, s56, s7\ns_and_b32 s8, s8, 1")
    e("s_lshl_b32 s5, s4, 1\ns_or_b32 s8, s8, s5              ; pair")
    e("s_and_b32 s5, s8, 7              ; hkv\ns_lshr_b32 s6, s8, 3             ; b")
else:
    e("s_mov_b32 s5, s56\ns_and_b32 s6, s4, 7\ns_lshr_b32 s7, s4, 3\ns_lshl_b32 s8, s6, 3\ns_add_u32 s8, s8, s5")
e("v_and_b32 v1, 63, v0             ; lane")
e("s_cmp_ge_u32 s3, 4")
e("s_cbranch_scc1 L_helper")

vKoff = list(range(2, 10)); vKrd = list(range(10, 18)); vVoff = list(range(18, 22)); vVrd = list(range(22, 26))
vPrd, vPwr, vQrd, vMrd, vMwr, vT3 = 26, 27, 28, 29, 30, 31
qB = 32; Sreg = 64; HOLDR = 128
Pa = 128; Vb = 132; acc = 148
vM, vMc, vL, vU = 164, 165, 166, 168
vA = [200, 201, 202, 203]
vOne, vCnt, vTk, vAd = 204, 205, 206, 208
vPP = 213

e("s_lshl_b32 s10, s3, 15")
e("s_lshl_b32 s11, s3, 12")
e("v_lshrrev_b32 v64, 5, v1\nv_and_b32 v65, 31, v1\nv_xor_b32 v65, v65, v64\nv_lshlrev_b32 v65, 4, v65")
e("v_lshl_add_u32 v%d, v64, 9, v65" % vKoff[0])
for n in range(1, 8):
    e("v_xor_b32 v%d, %d, v%d" % (vKoff[n], n << 5, vKoff[0]))
e("s_waitcnt lgkmcnt(0)")
e("s_lshl_b32 s12, s8, 21\ns_lshl_b32 s59, s7, 19\ns_add_u32 s13, s12, s59")
e("s_add_u32 s32, s%d, s13\ns_addc_u32 s33, s%d, 0\ns_mov_b32 s34, 0x80000\ns_mov_b32 s35, 0x20000" % (sK, sK + 1))
e("s_add_u32 s36, s%d, s12\ns_addc_u32 s37, s%d, 0\ns_mov_b32 s38, 0x200000\ns_mov_b32 s39, 0x20000" % (sV, sV + 1))

DI, LAK, LAV, DT = P["DI"], P["LAK"], P["LAV"], P["DT"]
class St:
    def __init__(self):
        self.ops = 0
        self.done = 0
        self.loads = 0
        self.opof = {}
        self.freed = 0
        self.use_level = False
        self.di0 = P.get('DI0', 0)
lbl = [0]
st = St()
NUNITS = 32 + NS + (2 if POOL else 0)
def wait_ops(x):
    if st.ops - st.done > x:
        e("s_waitcnt vmcnt(%d)" % x)
        st.done = st.ops - x
def wait_op(idx):
    if st.done <= idx:
        wait_ops(st.ops - 1 - idx)
def issue_load(di=None, dynsoff=None):
    n, jj = st.loads // 4, st.loads % 4
    di = (st.di0 if st.di0 else DI) if di is None else di
    assert n < st.freed + 8 and n < NUNITS
    if P["RANK"] and st.use_level and st.ops - st.done > di - 1 - P["XLO"]:
        lbl[0] += 1
        k = lbl[0]
        e("s_cmp_lg_u32 s55, 0\ns_cbranch_scc1 L_lv%da\ns_waitcnt vmcnt(%d)\nL_lv%da:" % (k, di - 1 - P["XLO"], k))
        e("s_cmp_eq_u32 s55, 2\ns_cbranch_scc1 L_lv%db\ns_waitcnt vmcnt(%d)\nL_lv%db:" % (k, di - 1, k))
        wait_ops(di - 1 + P["XHI"])
    else:
        wait_ops(di - 1)
    if jj == 0:
        e("s_add_u32 m0, s10, %d" % ((n % 8) * 4096))
        if n < 32:
            e("s_add_u32 s14, s11, %d" % (n * 16384))
        elif n < 32 + NS:
            e("s_add_u32 s14, s59, %d" % ((n - 32) * 16384))
        else:
            assert dynsoff is not None
            e("s_mov_b32 s14, %s" % dynsoff)
    if n < 32:
        e("buffer_load_dwordx4 v%d, s[32:35], s14 offen offset:%d %s lds" % (vKoff[(n & 1) * 4 + jj], jj * 1024, kflags))
    else:
        e("buffer_load_dwordx4 v%d, s[36:39], s14 offen offset:%d %s lds" % (vVoff[jj], jj * 1024, vflags))
    st.opof[st.loads] = st.ops
    st.ops += 1; st.loads += 1
def pump_until(nunits, di=None):
    nunits = min(nunits, 32 + NS, st.freed + 8)
    while st.loads < 4 * nunits:
        issue_load(di)
def pump(k, di=None):
    for _ in range(k):
        if st.loads // 4 < min(32 + NS, st.freed + 8):
            issue_load(di)
def need(nunits):
    wait_op(st.opof[4 * nunits - 1])

pump(P.get('DI0', 0) or DI)
e("v_lshrrev_b32 v64, 3, v1\nv_lshrrev_b32 v65, 1, v64\nv_and_b32 v65, 3, v65\nv_lshlrev_b32 v65, 1, v65")
e("v_and_b32 v66, 7, v1\nv_xor_b32 v66, v66, v65\nv_lshlrev_b32 v66, 4, v66\nv_lshl_add_u32 v66, v64, 9, v66")
e("s_lshl_b32 s15, s3, 7\nv_add_u32 v%d, s15, v66" % vVoff[0])
for jj in range(1, 4):
    e("v_add_u32 v%d, %d, v%d" % (vVoff[jj], jj * 3072, vVoff[0]))
e("v_and_b32 v64, 15, v1             ; n\nv_lshrrev_b32 v65, 4, v1          ; g")
e("v_xor_b32 v66, v64, v65\nv_lshlrev_b32 v66, 4, v66\nv_lshl_add_u32 v66, v64, 9, v66\nv_add_u32 v%d, s10, v66" % vKrd[0])
for i in range(1, 8):
    e("v_xor_b32 v%d, %d, v%d" % (vKrd[i], i << 6, vKrd[0]))
e("v_and_b32 v66, 1, v65\nv_lshrrev_b32 v67, 3, v64\nv_lshl_or_b32 v67, v66, 1, v67")
e("v_lshrrev_b32 v68, 2, v64\nv_lshl_add_u32 v68, v66, 2, v68\nv_lshlrev_b32 v68, 7, v68")
e("v_lshrrev_b32 v69, 1, v65\nv_lshl_add_u32 v68, v69, 11, v68\nv_and_b32 v70, 3, v64\nv_lshl_add_u32 v68, v70, 3, v68\nv_add_u32 v68, s10, v68")
for t in range(4):
    e("v_xor_b32 v71, %d, v67\nv_lshl_add_u32 v%d, v71, 5, v68" % (t, vVrd[t]))
e("v_and_b32 v66, 1, v64             ; head\nv_mul_u32_u24 v72, %d, v66" % HS)
e("v_lshl_add_u32 v%d, v65, 4, v72\nv_add_u32 v%d, %d, v%d" % (vPrd, vPrd, PB, vPrd))
e("s_lshr_b32 s15, s3, 1\ns_lshl_b32 s15, s15, 5\ns_and_b32 s40, s3, 1\ns_lshl_b32 s40, s40, 3\ns_add_u32 s15, s15, s40\ns_add_u32 s15, s15, %d" % PB)
e("v_lshl_add_u32 v%d, v69, 6, v72\nv_and_b32 v73, 1, v65\nv_lshl_add_u32 v%d, v73, 4, v%d\nv_add_u32 v%d, s15, v%d" % (vPwr, vPwr, vPwr, vPwr, vPwr))
e("v_lshlrev_b32 v%d, 9, v66\nv_lshl_add_u32 v%d, v65, 4, v%d\nv_add_u32 v%d, %d, v%d" % (vQrd, vQrd, vQrd, vQrd, QB, vQrd))
e("v_lshlrev_b32 v%d, 6, v66\nv_add_u32 v%d, %d, v%d" % (vMrd, vMrd, MAXX, vMrd))
e("s_lshl_b32 s15, s3, 4\nv_lshl_add_u32 v%d, v65, 2, v%d\nv_add_u32 v%d, s15, v%d" % (vMwr, vMrd, vMwr, vMwr))

HOLDN = P["HOLD"]; B0AT = P["B0AT"]
pump_until(8)
if B0AT == 0:
    e("s_barrier")
for T in range(HOLDN):
    need(2 * T + 2)
    for i in range(8):
        r = HOLDR + 32 * T + 4 * i
        e("ds_read_b128 v[%d:%d], v%d offset:%d" % (r, r + 3, vKrd[i], (T % 4) * 8192))
    e("s_waitcnt lgkmcnt(0)")
    st.freed = 2 * T + 2
    pump_until(st.freed + 8)
    if B0AT == T + 1:
        e("s_barrier")
stamp(1)
st.di0 = P.get("DI1", 0)
e("s_barrier")
stamp(2)
for i in range(8):
    e("ds_read_b128 v[%d:%d], v%d offset:%d" % (qB + 4 * i, qB + 4 * i + 3, vQrd, i * 64))
e("v_mov_b32 v%d, %d\nds_read_b32 v%d, v%d\ns_waitcnt lgkmcnt(0)\nv_readfirstlane_b32 s9, v%d" % (vT3, TAGL, vT3, vT3, vT3))

def mfma16(d, a, b, c):
    e("v_mfma_f32_16x16x32_bf16 v[%d:%d], v[%d:%d], v[%d:%d], %s" % (d, d + 3, a, a + 3, b, b + 3, "0" if c is None else "v[%d:%d]" % (c, c + 3)))
def ktile(T, from_regs):
    e("; K tile %d" % T)
    S = Sreg + 4 * T
    if from_regs:
        for i in range(8):
            mfma16(S, HOLDR + 32 * T + 4 * i, qB + 4 * i, None if i == 0 else S)
        return
    nd = 2 * T + 2
    pump_until(nd + LAK)
    need(nd)
    for i in range(8):
        e("ds_read_b128 v[%d:%d], v%d offset:%d" % (AregK + 4 * i, AregK + 4 * i + 3, vKrd[i], (T % 4) * 8192))
    for i in range(8):
        e("s_waitcnt lgkmcnt(%d)" % (7 - i))
        mfma16(S, AregK + 4 * i, qB + 4 * i, None if i == 0 else S)
    st.freed = nd
    if T == HOLDN:
        pump(DI)
if HOLDN == 4:
    order = [(0, True)] + [(T, False) for T in range(4, 8)] + [(1, True), (2, True), (3, True)] + [(T, False) for T in range(8, 16)]
    AregK = HOLDR
else:
    order = [(T, False) for T in range(HOLDN, HOLDN + 4)] + [(T, True) for T in range(HOLDN)] + [(T, False) for T in range(HOLDN + 4, 16)]
    AregK = HOLDR + 32 * HOLDN
def read_level(k):
    e("v_mov_b32 v%d, %d\nds_read_b32 v%d, v%d\ns_waitcnt lgkmcnt(0)\nv_readfirstlane_b32 s55, v%d" % (vT3, LVL + 4 * k, vT3, vT3, vT3))
    st.use_level = True
for idx, (T, fr) in enumerate(order):
    if HOLDN and 2 <= idx < HOLDN + 4:
        pump(P["PBL"])
    if P["RANK"] and idx == P["RK1"]:
        read_level(0)
    ktile(T, fr)
stamp(3)
st.di0 = 0
e("; softmax")
pump(1, DT)
e("s_nop 7")
e("v_max3_f32 v%d, v%d, v%d, v%d" % (vM, Sreg, Sreg + 1, Sreg + 2))
i = 3; cnt = 0
while i < 64:
    if i + 1 < 64:
        e("v_max3_f32 v%d, v%d, v%d, v%d" % (vM, vM, Sreg + i, Sreg + i + 1)); i += 2
    else:
        e("v_max_f32 v%d, v%d, v%d" % (vM, vM, Sreg + i)); i += 1
    cnt += 1
    if P["PMAX"] and cnt % P["PMAX"] == 0:
        pump(1, DT)
e("s_mov_b32 exec_lo, 0x00030003\ns_mov_b32 exec_hi, 0x00030003")
e("ds_write_b32 v%d, v%d" % (vMwr, vM))
e("s_mov_b64 exec, -1")
pump(P["PB2"], DT)
e("s_waitcnt lgkmcnt(0)")
e("s_barrier")
for i in range(4):
    e("ds_read_b128 v[%d:%d], v%d offset:%d" % (vU + 4 * i, vU + 4 * i + 3, vMrd, 16 * i))
e("s_waitcnt lgkmcnt(0)")
e("v_max3_f32 v%d, v%d, v%d, v%d" % (vM, vU, vU + 1, vU + 2))
for i in range(3, 15, 2):
    e("v_max3_f32 v%d, v%d, v%d, v%d" % (vM, vM, vU + i, vU + i + 1))
e("v_max_f32 v%d, v%d, v%d" % (vM, vM, vU + 15))
e("s_mov_b32 s15, 0x%08x" % CEXP)
e("v_mul_f32 v%d, s15, v%d" % (vMc, vM))
e("v_mov_b32 v%d, 0\nv_mov_b32 v%d, 0" % (vL, vL + 1))
def fold(p0):
    e("v_add_f32 v%d, v%d, v%d\nv_add_f32 v%d, v%d, v%d" % (vL, vL, p0, vL + 1, vL + 1, p0 + 1))
    e("v_add_f32 v%d, v%d, v%d\nv_add_f32 v%d, v%d, v%d" % (vL, vL, p0 + 2, vL + 1, vL + 1, p0 + 3))
    e("v_cvt_pk_bf16_f32 v%d, v%d, v%d\nv_cvt_pk_bf16_f32 v%d, v%d, v%d" % (p0, p0, p0 + 1, p0 + 1, p0 + 2, p0 + 3))
for T in range(16):
    s0 = Sreg + 4 * T
    for r in range(4):
        e("v_fma_f32 v%d, v%d, s15, -v%d" % (s0 + r, s0 + r, vMc))
    for r in range(4):
        e("v_exp_f32 v%d, v%d" % (s0 + r, s0 + r))
    if T % P["PEVERY"] == P["PEVERY"] - 1:
        pump(1, DT)
    if T > 0:
        fold(Sreg + 4 * (T - 1))
e("s_nop 0")
fold(Sreg + 60)
e("v_add_f32 v%d, v%d, v%d" % (vL, vL, vL + 1))
e("s_mov_b32 exec_lo, 0x00030003\ns_mov_b32 exec_hi, 0x00030003")
for T in range(16):
    e("ds_write_b64 v%d, v[%d:%d] offset:%d" % (vPwr, Sreg + 4 * T, Sreg + 4 * T + 1, T * 128))
e("ds_write_b32 v%d, v%d offset:%d" % (vMwr, vL, LSUM - MAXX))
e("s_mov_b64 exec, -1")
for t in range(16):
    e("v_mov_b32 v%d, 0" % (acc + t))
if POOL:
    e("s_lshl_b32 s12, s8, 7\ns_add_u32 s12, s12, %d\nv_mov_b32 v%d, s12\nv_mov_b32 v%d, 1\nv_mov_b32 v%d, %d" % (WS_CNT, vCnt, vOne, vTk, TKB))
    e("v_add_u32 v%d, %d, v%d" % (vPP, PPB - PB, vPrd))
pump(P["PB2"], DT)
e("s_waitcnt lgkmcnt(0)")
e("s_barrier")
stamp(4)

def vunit_compute(paddr, poff, vaddrs, slot):
    e("ds_read_b128 v[%d:%d], v%d offset:%d" % (Pa, Pa + 3, paddr, poff))
    for t in range(4):
        e("ds_read_b64_tr_b16 v[%d:%d], v%d offset:%d" % (Vb + 4 * t, Vb + 4 * t + 1, vaddrs[t], slot))
        e("ds_read_b64_tr_b16 v[%d:%d], v%d offset:%d" % (Vb + 4 * t + 2, Vb + 4 * t + 3, vaddrs[t], slot + 1024))
    for t in range(4):
        e("s_waitcnt lgkmcnt(%d)" % (6 - 2 * t))
        mfma16(acc + 4 * t, Pa, Vb + 4 * t, acc + 4 * t)
def vunit(u):
    n = 32 + u
    e("; V unit %d" % u)
    if P["RANK"] and u == P["RK2"]:
        read_level(1)
    pump_until(n + 1 + LAV)
    need(n + 1)
    vunit_compute(vPrd, u * 64, vVrd, (n % 8) * 4096)
    st.freed = n + 1
    if u in (7, 15) or (u == 23 and not POOL):
        stamp(7 + (u - 7) // 8)

sI, sSo, sPo0, sPo1, sPo2, sV0, sV1, sTk = 60, 61, 62, 63, 88, 89, 90, 91
def decode(tk, po, valid):
    e("s_and_b32 s12, %s, 3\ns_lshr_b32 s13, %s, 2" % (tk, tk))
    e("s_lshl_b32 s%d, s12, 3\ns_add_u32 s%d, s%d, s13\ns_lshl_b32 s%d, s%d, 6" % (po, po, po, po, po))
    e("s_lshl_b32 s12, s12, 19\ns_lshl_b32 s13, s13, 14\ns_add_u32 s12, s12, s13\ns_add_u32 s12, s12, %d" % (NS * 16384))
    e("s_cmp_lt_u32 %s, %d\ns_cselect_b32 s%d, s12, 0x7fff0000" % (tk, 4 * NP, sSo))
    if valid is not None:
        e("s_cselect_b32 s%d, 1, 0" % valid)
def get_ticket_lds(dyn):
    lbl[0] += 1
    k = lbl[0]
    e("s_mov_b32 s15, 0\nL_tk%d:" % k)
    e("ds_read_b32 v%d, v%d%s\ns_waitcnt lgkmcnt(0)\nv_readfirstlane_b32 s%d, v%d" % (vAd + 5 - 5 + 0, vTk, "" if dyn is None else " offset:%d" % (4 * dyn), sTk, vAd))
    spin_guard("s15", "L_tkd%d" % k)
    e("s_cmp_eq_u32 s%d, -1\ns_cbranch_scc1 L_tk%d\nL_tkd%d:" % (sTk, k, k))
def dyn_compute(po):
    e("s_and_b32 s12, s%d, 7\ns_lshl_b32 s12, s12, 12" % sI)
    for t in range(4):
        e("v_add_u32 v%d, s12, v%d" % (vAd + t, vVrd[t]))
    e("v_add_u32 v%d, s%d, v%d" % (vAd + 4, po, vPP))
    vunit_compute(vAd + 4, 0, [vAd + t for t in range(4)], 0)
def dyn_loads():
    e("s_add_u32 s12, s%d, 2\ns_and_b32 s12, s12, 7\ns_lshl_b32 s12, s12, 12\ns_add_u32 m0, s10, s12\ns_mov_b32 s14, s%d" % (sI, sSo))
    for jj in range(4):
        e("buffer_load_dwordx4 v%d, s[36:39], s14 offen offset:%d %s lds" % (vVoff[jj], jj * 1024, vflags))
def rescale_acc():
    e("; switch from own scale to the pair's scale")
    e("v_mov_b32 v%d, %d\nds_read_b64 v[%d:%d], v%d\ns_waitcnt lgkmcnt(0)\ns_nop 4" % (vAd, FME, vU, vU + 1, vAd))
    for t in range(4):
        e("v_mul_f32 v%d, v%d, v%d\nv_mul_f32 v%d, v%d, v%d" % (acc + 4 * t, acc + 4 * t, vU, acc + 4 * t + 1, acc + 4 * t + 1, vU + 1))
    e("s_nop 1")

if not POOL:
    for u in range(32):
        if u == P["B3A"]:
            e("s_barrier")
        vunit(u)
else:
    UA = NS - 6
    assert P["B3B"] < UA or P["B3B"] >= NS
    for u in range(UA):
        if u == P["B3B"]:
            e("s_barrier")
        if u == P["B3A"]:
            e("s_barrier")
        vunit(u)
    e("s_cmp_lg_u32 s3, 0\ns_cbranch_scc1 L_vfollow")
    snap = copy.deepcopy(st)
    for lead in (True, False):
        if not lead:
            st = snap
            e("L_vfollow:")
        tag = "a" if lead else "b"
        aop = {}
        for u in range(UA, NS):
            n = 32 + u
            e("; V unit %d (%s)" % (u, "leader" if lead else "follower"))
            k = u - UA
            if lead and k < 4:
                e("s_mov_b64 exec, 1\nglobal_atomic_add v%d, v%d, v%d, s[%d:%d] sc0 sc1\ns_mov_b64 exec, -1" % (vA[k], vCnt, vOne, sWS, sWS + 1))
                aop[k] = st.ops; st.ops += 1
            pump_until(n + 1 + LAV)
            kk = u - (NS - 2)
            if kk >= 0:
                if lead:
                    wait_op(aop[kk])
                    e("v_readfirstlane_b32 s%d, v%d\ns_mov_b64 exec, 1\nds_write_b32 v%d, v%d offset:%d\ns_mov_b64 exec, -1" % (sTk, vA[kk], vTk, vA[kk], 4 * kk))
                else:
                    get_ticket_lds(kk)
                decode("s%d" % sTk, sPo0 if kk == 0 else sPo1, sV0 if kk == 0 else sV1)
                for jj in range(4):
                    issue_load(None, "s%d" % sSo)
            need(n + 1)
            vunit_compute(vPrd, u * 64, vVrd, (n % 8) * 4096)
            st.freed = n + 1
        stamp(9)
        if P["B3B"] >= NS:
            e("s_barrier")
        rescale_acc()
        e("s_mov_b32 s%d, 0\nv_add_u32 v%d, 8, v%d" % (sI, vTk, vTk))
        e("s_waitcnt vmcnt(4)")
        e("L_pool_%s:" % tag)
        for par in range(2 if lead else 1):
            if lead:
                e("s_waitcnt vmcnt(5)")
                va = vA[2 + par]
                e("v_readfirstlane_b32 s%d, v%d\ns_mov_b64 exec, 1\nds_write_b32 v%d, v%d\ns_mov_b64 exec, -1" % (sTk, va, vTk, va))
            else:
                e("s_waitcnt vmcnt(4)")
                get_ticket_lds(None)
            e("s_cmp_ge_u32 s%d, %d\ns_cbranch_scc1 L_drain_%s" % (sTk, 4 * NP, tag))
            if lead:
                e("s_mov_b64 exec, 1\nglobal_atomic_add v%d, v%d, v%d, s[%d:%d] sc0 sc1\ns_mov_b64 exec, -1" % (va, vCnt, vOne, sWS, sWS + 1))
            decode("s%d" % sTk, sPo2, None)
            dyn_loads()
            dyn_compute(sPo0)
            e("s_mov_b32 s%d, s%d\ns_mov_b32 s%d, s%d\ns_add_u32 s%d, s%d, 1\nv_add_u32 v%d, 4, v%d" % (sPo0, sPo1, sPo1, sPo2, sI, sI, vTk, vTk))
            e("s_mov_b32 s%d, 1\ns_mov_b32 s%d, 1" % (sV0, sV1))
        e("s_branch L_pool_%s" % tag)
        e("L_drain_%s:" % tag)
        e("s_cmp_eq_u32 s%d, 0\ns_cbranch_scc1 L_dr1_%s" % (sV0, tag))
        dyn_compute(sPo0)
        e("L_dr1_%s:" % tag)
        e("s_waitcnt vmcnt(0)")
        e("s_cmp_eq_u32 s%d, 0\ns_cbranch_scc1 L_dr2_%s" % (sV1, tag))
        e("s_add_u32 s%d, s%d, 1" % (sI, sI))
        dyn_compute(sPo1)
        e("L_dr2_%s:" % tag)
        if lead:
            e("s_branch L_vdone")
    e("L_vdone:")
stamp(5)
e("s_lshl_b32 s12, s8, 2\ns_add_u32 s12, s12, s3\ns_lshl_b32 s12, s12, 2\ns_add_u32 s12, s12, s7\ns_lshl_b32 s12, s12, 10\ns_add_u32 s12, s12, %d" % WS_OP)
e("v_lshlrev_b32 v%d, 4, v1\nv_add_u32 v%d, s12, v%d" % (vQrd, vQrd, vQrd))
e("s_mov_b32 s40, 0xffff0000\ns_mov_b32 s41, 0\ns_mov_b32 s42, 0\ns_mov_b32 s43, 0x0000ffff\ns_mov_b32 s44, 0\ns_mov_b32 s45, 0xffff0000")
e("v_mov_b32 v%d, s9\nv_mov_b32 v%d, s9" % (vU + 1, vU + 3))
e("s_nop 3")
for (m, a0) in (("s[40:41]", 4), ("s[42:43]", 8), ("s[44:45]", 12)):
    src0 = (acc + 0, acc + 1) if a0 == 4 else (vU, vU + 2)
    e("v_cndmask_b32 v%d, v%d, v%d, %s" % (vU, src0[0], acc + a0, m))
    e("v_cndmask_b32 v%d, v%d, v%d, %s" % (vU + 2, src0[1], acc + a0 + 1, m))
e("global_store_dwordx4 v%d, v[%d:%d], s[%d:%d] sc1" % (vQrd, vU, vU + 3, sWS, sWS + 1))
e("s_barrier")
stamp(6)
stamp_flush(10)
e("s_endpgm")

e("L_helper:")
e("s_sub_u32 s3, s3, 4              ; hw")
e("v_and_b32 v2, 15, v1             ; n\nv_lshrrev_b32 v3, 4, v1          ; g")
e("s_waitcnt lgkmcnt(0)")
e("s_cmp_lg_u32 s3, 0")
e("s_cbranch_scc0 L_w4")
if B0AT >= 0:
    e("s_barrier            ; B0")
e("s_branch L_h_b1")
e("L_w4:")
if P["prio"]:
    e("s_setprio 3")
e("s_load_dword s9, s[%d:%d], %d     ; epoch word" % (sWS, sWS + 1, WS_E))
e("s_mov_b32 s32, s%d\ns_mov_b32 s33, s%d\ns_mov_b32 s34, %d\ns_mov_b32 s35, 0x20000" % (sWQ, sWQ + 1, 448 * 8192))
e("s_mov_b32 s36, s%d\ns_mov_b32 s37, s%d\ns_mov_b32 s38, %d\ns_mov_b32 s39, 0x20000" % (sX, sX + 1, 8 * 896))
QMODE = P['QMODE']
if QMODE == 2:
    e("s_and_b32 s57, s4, 7              ; cl\ns_lshr_b32 s58, s4, 3             ; kq")
    e("s_lshl_b32 s10, s58, 7\ns_mul_i32 s11, s58, 96\ns_add_u32 s11, s11, 64\ns_cmp_lt_u32 s58, 2\ns_cselect_b32 s10, s10, s11")
    e("s_lshl_b32 s11, s10, 13\ns_lshl_b32 s12, s56, 10\ns_add_u32 s11, s11, s12\ns_lshl_b32 s12, s57, 7\ns_add_u32 s11, s11, s12")
    e("v_lshrrev_b32 v4, 3, v1\nv_lshlrev_b32 v4, 13, v4\nv_and_b32 v5, 7, v1\nv_lshl_add_u32 v4, v5, 4, v4")
    XB = 8
    e("v_and_b32 v5, 7, v2\nv_mul_u32_u24 v5, 896, v5\nv_lshl_add_u32 v5, v3, 4, v5")
    e("s_lshl_b32 s10, s10, 1")
    def wq_loads(a, b):
        for m in range(a, b):
            e("s_mov_b32 m0, %d\ns_add_u32 s12, s11, %d" % (WQS + m * 1024, m * 8 * 8192))
            e("buffer_load_dwordx4 v4, s[32:35], s12 offen %s lds" % wqflags)
    def x_load(ks):
        e("buffer_load_dwordx4 v[%d:%d], v5, s[36:39], s10 offen offset:%d %s" % (XB + 4 * ks, XB + 4 * ks + 3, ks * 64, xflags))
    wq_loads(0, 12)
    for ks in range(3):
        x_load(ks)
    e("s_cmp_lt_u32 s58, 2\ns_cbranch_scc0 L_q3")
    wq_loads(12, 16); x_load(3)
    e("L_q3:")
    if POOL:
        e("s_cmp_ge_u32 s4, 8\ns_cbranch_scc1 L_nocnt")
        e("s_lshl_b32 s12, s4, 3\ns_add_u32 s12, s12, s56\ns_lshl_b32 s12, s12, 7\ns_add_u32 s12, s12, %d\nv_mov_b32 v6, s12\nv_mov_b32 v7, 0" % WS_CNT)
        e("s_mov_b64 exec, 1\nglobal_store_dword v6, v7, s[%d:%d] sc1\ns_mov_b64 exec, -1" % (sWS, sWS + 1))
        e("L_nocnt:")
    e("v_lshlrev_b32 v6, 10, v3\nv_lshrrev_b32 v7, 2, v2\nv_lshl_add_u32 v6, v7, 7, v6\nv_and_b32 v7, 3, v2\nv_lshl_add_u32 v6, v7, 3, v6\nv_add_u32 v6, %d, v6" % WQS)
    e("v_and_b32 v7, 7, v2\nv_lshlrev_b32 v7, 17, v7\nv_lshl_add_u32 v7, v3, 5, v7\nv_lshrrev_b32 v24, 3, v2\nv_lshl_add_u32 v7, v24, 4, v7")
    e("s_lshl_b32 s11, s56, 2\ns_add_u32 s11, s11, s58\ns_lshl_b32 s11, s11, 12\ns_lshl_b32 s12, s57, 9\ns_add_u32 s11, s11, s12\ns_add_u32 s11, s11, %d\nv_add_u32 v7, s11, v7" % WS_Q)
    e("s_waitcnt vmcnt(0) lgkmcnt(0)")
    e("s_add_u32 s9, s9, 0x%08x        ; tag of this launch" % TAGC)
    WA = 32; QA = 64
    def q_reads(ks):
        b0 = WA + 16 * (ks & 1)
        for ct in range(4):
            e("ds_read_b64_tr_b16 v[%d:%d], v6 offset:%d" % (b0 + 4 * ct, b0 + 4 * ct + 1, ks * 4096 + ct * 32))
            e("ds_read_b64_tr_b16 v[%d:%d], v6 offset:%d" % (b0 + 4 * ct + 2, b0 + 4 * ct + 3, ks * 4096 + 512 + ct * 32))
    def q_mfma(ks):
        b0 = WA + 16 * (ks & 1)
        for ct in range(4):
            mfma16(QA + 4 * ct, b0 + 4 * ct, XB + 4 * ks, None if ks == 0 else QA + 4 * ct)
    q_reads(0); q_reads(1)
    e("s_waitcnt lgkmcnt(8)"); q_mfma(0)
    q_reads(2)
    e("s_waitcnt lgkmcnt(8)"); q_mfma(1)
    e("s_cmp_lt_u32 s58, 2\ns_cbranch_scc0 L_q3b")
    q_reads(3)
    e("s_waitcnt lgkmcnt(8)"); q_mfma(2)
    e("s_waitcnt lgkmcnt(0)"); q_mfma(3)
    e("s_branch L_q3c\nL_q3b:")
    e("s_waitcnt lgkmcnt(0)"); q_mfma(2)
    e("L_q3c:")
    QT = 96
    e("s_mov_b32 s40, 0xff00ff00\ns_mov_b32 s41, 0xff00ff00")
    for ct in range(4):
        e("v_mov_b32 v%d, s9\nv_mov_b32 v%d, s9" % (QT + 4 * ct + 1, QT + 4 * ct + 3))
    e("s_nop 1")
    for ct in range(4):
        e("v_cndmask_b32 v%d, v%d, v%d, s[40:41]" % (QT + 4 * ct, QA + 4 * ct, QA + 4 * ct + 2))
        e("v_cndmask_b32 v%d, v%d, v%d, s[40:41]" % (QT + 4 * ct + 2, QA + 4 * ct + 1, QA + 4 * ct + 3))
    for ct in range(4):
        e("global_store_dwordx4 v7, v[%d:%d], s[%d:%d] offset:%d sc1" % (QT + 4 * ct, QT + 4 * ct + 3, sWS, sWS + 1, ct * 128))
    stamp(1)
    if POOL:
        e("v_lshlrev_b32 v12, 2, v1\nv_add_u32 v12, %d, v12\nv_mov_b32 v13, -1\ns_mov_b32 exec_lo, -1\ns_mov_b32 exec_hi, 0x0000ffff" % TKB)
        e("ds_write_b32 v12, v13\ns_mov_b64 exec, -1")
    e("s_lshl_b32 s11, s8, 14\ns_add_u32 s11, s11, %d" % WS_Q)
    e("v_lshlrev_b32 v8, 4, v1\nv_add_u32 v8, s11, v8")
    for kq in range(1, 4):
        e("v_add_u32 v%d, %d, v8" % (8 + kq, kq * 4096))
    e("s_mov_b32 s13, 0")
    GQ = 128
    if B0AT >= 0:
        e("s_barrier            ; B0")
    e("L_pollq:")
    for kq in range(4):
        for i in range(4):
            r = GQ + 16 * kq + 4 * i
            e("global_load_dwordx4 v[%d:%d], v%d, s[%d:%d] offset:%d %s" % (r, r + 3, 8 + kq, sWS, sWS + 1, i * 1024, fl("gflags")))
    e("s_waitcnt vmcnt(0)")
    tags_ok([GQ + 4 * k + o for k in range(16) for o in (1, 3)], "L_pollq_done", 12, 13)
    spin_guard("s13", "L_pollq_done")
    e("s_branch L_pollq")
    e("L_pollq_done:")
    e("v_lshlrev_b32 v7, 2, v1\nv_add_u32 v7, %d, v7" % QB)
    for i in range(4):
        r = GQ + 4 * i
        e("v_add_f32 v%d, v%d, v%d\nv_add_f32 v%d, v%d, v%d" % (r, r, r + 16, r + 2, r + 2, r + 18))
        e("v_add_f32 v%d, v%d, v%d\nv_add_f32 v%d, v%d, v%d" % (r + 32, r + 32, r + 48, r + 34, r + 34, r + 50))
        e("v_add_f32 v%d, v%d, v%d\nv_add_f32 v%d, v%d, v%d" % (r, r, r + 32, r + 2, r + 2, r + 34))
        e("v_cvt_pk_bf16_f32 v%d, v%d, v%d" % (r, r, r + 2))
        e("ds_write_b32 v7, v%d offset:%d" % (r, i * 256))
else:
    assert not POOL
    e("s_lshl_b32 s10, s56, 5\ns_add_u32 s10, s10, s4           ; c")
    e("v_lshrrev_b32 v4, 1, v1\nv_lshlrev_b32 v4, 13, v4\nv_and_b32 v5, 1, v1\nv_lshl_add_u32 v4, v5, 4, v4")
    e("s_lshl_b32 s11, s10, 5\nv_add_u32 v4, s11, v4")
    for ks in range(14):
        e("s_mov_b32 m0, %d\ns_mov_b32 s12, %d" % (WQS + ks * 1024, ks * 262144))
        e("buffer_load_dwordx4 v4, s[32:35], s12 offen %s lds" % wqflags)
    XB = 8
    e("v_and_b32 v5, 7, v2\nv_mul_u32_u24 v5, 896, v5\nv_lshl_add_u32 v5, v3, 4, v5\nv_lshrrev_b32 v6, 3, v2\nv_lshl_add_u32 v5, v6, 6, v5")
    for k2 in range(7):
        e("buffer_load_dwordx4 v[%d:%d], v5, s[36:39], 0 offen offset:%d %s" % (XB + 4 * k2, XB + 4 * k2 + 3, k2 * 128, xflags))
    e("v_lshlrev_b32 v6, 8, v3\nv_lshl_add_u32 v6, v2, 3, v6\nv_add_u32 v6, %d, v6" % WQS)
    e("v_lshlrev_b32 v7, 14, v2\nv_lshl_add_u32 v7, v3, 4, v7")
    e("s_lshl_b32 s11, s10, 6\ns_add_u32 s11, s11, %d\nv_add_u32 v7, s11, v7" % WS_Q)
    e("s_waitcnt vmcnt(0) lgkmcnt(0)")
    e("s_add_u32 s9, s9, 0x%08x        ; tag of this launch" % TAGC)
    WA = 40
    for ks in range(14):
        r = WA + 4 * (ks & 3)
        e("ds_read_b64_tr_b16 v[%d:%d], v6 offset:%d" % (r, r + 1, ks * 1024))
        e("ds_read_b64_tr_b16 v[%d:%d], v6 offset:%d" % (r + 2, r + 3, ks * 1024 + 128))
        if ks >= 2:
            pk = ks - 2
            e("s_waitcnt lgkmcnt(4)")
            mfma16(72 + 4 * (pk & 1), WA + 4 * (pk & 3), XB + 4 * (pk >> 1), None if pk < 2 else 72 + 4 * (pk & 1))
    for pk in (12, 13):
        e("s_waitcnt lgkmcnt(%d)" % (2 if pk == 12 else 0))
        mfma16(72 + 4 * (pk & 1), WA + 4 * (pk & 3), XB + 4 * (pk >> 1), 72 + 4 * (pk & 1))
    e("v_mov_b32 v81, s9\nv_mov_b32 v83, s9\ns_nop 7")
    for r in range(4):
        e("v_add_f32_dpp v%d, v%d, v%d row_ror:8 row_mask:0xf bank_mask:0xf" % (72 + r, 76 + r, 72 + r))
    e("v_cvt_pk_bf16_f32 v80, v72, v73\nv_cvt_pk_bf16_f32 v82, v74, v75")
    e("s_mov_b32 exec_lo, 0x00ff00ff\ns_mov_b32 exec_hi, 0x00ff00ff")
    e("global_store_dwordx4 v7, v[80:83], s[%d:%d] sc1" % (sWS, sWS + 1))
    e("s_mov_b64 exec, -1")
    stamp(1)
    e("s_lshl_b32 s11, s6, 14\ns_lshl_b32 s12, s5, 11\ns_add_u32 s11, s11, s12\ns_add_u32 s11, s11, %d" % WS_Q)
    e("v_lshlrev_b32 v7, 4, v1\nv_add_u32 v7, s11, v7")
    e("s_mov_b32 s13, 0")
    if B0AT >= 0:
        e("s_barrier            ; B0")
    e("L_pollq:")
    e("global_load_dwordx4 v[84:87], v7, s[%d:%d] %s" % (sWS, sWS + 1, fl("gflags")))
    e("global_load_dwordx4 v[88:91], v7, s[%d:%d] offset:1024 %s" % (sWS, sWS + 1, fl("gflags")))
    e("s_waitcnt vmcnt(0)")
    tags_ok([85, 87, 89, 91], "L_pollq_done", 0, 0)
    spin_guard("s13", "L_pollq_done")
    e("s_branch L_pollq")
    e("L_pollq_done:")
    e("v_mov_b32 v85, v86\nv_mov_b32 v89, v90")
    e("v_lshlrev_b32 v7, 3, v1\nv_add_u32 v7, %d, v7" % QB)
    e("ds_write_b64 v7, v[84:85]\nds_write_b64 v7, v[88:89] offset:512")
e("v_mov_b32 v8, %d\nv_mov_b32 v9, s9\nds_write_b32 v8, v9" % TAGL)
if P["RANK"]:
    e("v_mov_b32 v8, %d\nv_mov_b32 v10, 1\nv_mov_b32 v11, 1\nds_write_b64 v8, v[10:11]" % LVL)
e("s_waitcnt lgkmcnt(0)")
if P["prio"]:
    e("s_setprio 0")
e("L_h_b1:")
stamp(2)
e("s_barrier            ; B1")
if DSP == 2:
    e("s_memrealtime s[94:95]\ns_waitcnt lgkmcnt(0)")

e("v_mov_b32 v8, %d\nds_read_b32 v8, v8\ns_waitcnt lgkmcnt(0)\nv_readfirstlane_b32 s9, v8" % TAGL)
def rank_checkpoint(k):
    lbl[0] += 1
    lab = "L_rk%d" % lbl[0]
    e("s_cmp_lg_u32 s3, 1\ns_cbranch_scc1 %s" % lab)
    e("s_mov_b64 exec, 1\nv_mov_b32 v10, %d\nv_mov_b32 v11, 1\nglobal_atomic_add v12, v10, v11, s[%d:%d] sc0 sc1\ns_waitcnt vmcnt(0)" % (4 * k, sDBG, sDBG + 1))
    e("v_readfirstlane_b32 s12, v12\ns_nop 3\ns_cmp_ge_u32 s12, %d\ns_cselect_b32 s13, 1, 0\ns_cmp_ge_u32 s12, %d\ns_cselect_b32 s13, 2, s13" % (P["TLO"], P["THI"]))
    e("v_mov_b32 v10, %d\nv_mov_b32 v11, s13\nds_write_b32 v10, v11\ns_waitcnt lgkmcnt(0)\ns_mov_b64 exec, -1" % (LVL + 4 * k))
    e("%s:" % lab)
if P["RANK"]:
    rank_checkpoint(0)
e("s_mov_b32 s32, s%d\ns_mov_b32 s33, s%d\ns_mov_b32 s34, %d\ns_mov_b32 s35, 0x20000" % (sWO, sWO + 1, 4096 * 896))
e("v_mul_u32_u24 v47, %d, v3\nv_lshl_add_u32 v47, v2, 4, v47\ns_lshl_b32 s10, s3, 8\nv_add_u32 v47, s10, v47" % (8 * 896))
e("s_cmp_eq_u32 s3, 3\ns_cselect_b32 s12, 0x7fffffff, 0")
e("v_mov_b32 v9, s12\nv_cmp_lt_u32 vcc, 7, v2\ns_nop 1\nv_cndmask_b32 v9, 0, v9, vcc\nv_or_b32 v47, v47, v9")
e("s_lshl_b32 s54, s5, 9\ns_lshl_b32 s11, s7, 6\ns_add_u32 s54, s54, s11\ns_mul_i32 s54, s54, 896")
e("s_mov_b32 s46, 0x05040100\ns_mov_b32 s47, 0x07060302")
RAW = 96; WOH = [128 + 32 * ks for ks in range(4)]
def wo_load(ks):
    rowoff = ((ks >> 1) * 256 + (ks & 1) * 32) * 896
    R = P["worr"]
    for j0 in range(0, 8, R):
        if P["woprio"]:
            e("s_setprio 3")
        for j in range(j0, j0 + R):
            e("s_add_u32 s12, s54, %d" % (rowoff + j * 896))
            e("buffer_load_dwordx4 v[%d:%d], v47, s[32:35], s12 offen %s" % (RAW + 4 * j, RAW + 4 * j + 3, woflags))
        if P["woprio"]:
            e("s_setprio 0")
        e("s_waitcnt vmcnt(0)")
    for t in range(8):
        for p in range(4):
            e("v_perm_b32 v%d, v%d, v%d, %s" % (WOH[ks] + t * 4 + p, RAW + 4 * (2 * p + 1) + (t >> 1), RAW + 4 * (2 * p) + (t >> 1), "s47" if (t & 1) else "s46"))
NPRE = P["wopre"]
for ks in range(NPRE):
    wo_load(ks)
stamp(3)
e("s_barrier            ; B2")
e("s_barrier            ; B3")
if DSP == 3:
    e("s_memrealtime s[94:95]\ns_waitcnt lgkmcnt(0)")

if P["RANK"]:
    rank_checkpoint(1)
e("s_cmp_lg_u32 s3, 0\ns_cbranch_scc1 L_h_wo2")
e("v_and_b32 v4, 1, v2\nv_lshlrev_b32 v4, 6, v4\nv_add_u32 v4, %d, v4" % MAXX)
for i in range(4):
    e("ds_read_b128 v[%d:%d], v4 offset:%d" % (8 + 4 * i, 8 + 4 * i + 3, 16 * i))
for i in range(4):
    e("ds_read_b128 v[%d:%d], v4 offset:%d" % (24 + 4 * i, 24 + 4 * i + 3, LSUM - MAXX + 16 * i))
if POOL:
    e("v_lshrrev_b32 v5, 5, v1\nv_mul_u32_u24 v5, %d, v5\nv_and_b32 v6, 31, v1\nv_lshl_add_u32 v5, v6, 4, v5\nv_add_u32 v5, %d, v5" % (HS, PB + NS * 64))
    e("ds_read_b128 v[56:59], v5")
e("s_waitcnt lgkmcnt(0)")
e("v_max3_f32 v40, v8, v9, v10")
for i in range(3, 15, 2):
    e("v_max3_f32 v40, v40, v%d, v%d" % (8 + i, 8 + i + 1))
e("v_max_f32 v40, v40, v23")
e("v_add_f32 v42, v24, v25")
for i in range(2, 16):
    e("v_add_f32 v42, v42, v%d" % (24 + i))
e("v_mov_b32 v41, s9\nv_mov_b32 v43, s9")
e("s_lshl_b32 s10, s8, 2\ns_add_u32 s10, s10, s7\ns_lshl_b32 s12, s10, 5\ns_add_u32 s12, s12, %d" % WS_ST)
e("v_lshlrev_b32 v5, 4, v1\nv_add_u32 v6, s12, v5")
e("s_mov_b64 exec, 3\nglobal_store_dwordx4 v6, v[40:43], s[%d:%d] sc1\ns_mov_b64 exec, -1" % (sWS, sWS + 1))
if POOL:
    e("v_mov_b32 v60, v56\nv_mov_b32 v61, s9\nv_mov_b32 v62, v57\nv_mov_b32 v63, s9")
    e("v_mov_b32 v64, v58\nv_mov_b32 v65, s9\nv_mov_b32 v66, v59\nv_mov_b32 v67, s9")
    e("s_lshl_b32 s12, s10, 11\ns_add_u32 s12, s12, %d\nv_add_u32 v6, s12, v5" % WS_PP)
    e("global_store_dwordx4 v6, v[60:63], s[%d:%d] sc1\nglobal_store_dwordx4 v6, v[64:67], s[%d:%d] offset:1024 sc1" % (sWS, sWS + 1, sWS, sWS + 1))
N4A = NPRE
if P["B3A"] >= 0:
    for ks in range(NPRE, min(4, NPRE + P["wo4a"])):
        wo_load(ks)
        N4A = ks + 1
    e("s_barrier            ; B3a")
e("s_lshl_b32 s10, s8, 7\ns_add_u32 s10, s10, %d" % WS_ST)
e("v_and_b32 v5, 1, v1\nv_lshlrev_b32 v5, 4, v5\nv_add_u32 v5, s10, v5")
e("s_mov_b32 s13, 0")
e("L_polls:")
for s_ in range(4):
    e("global_load_dwordx4 v[%d:%d], v5, s[%d:%d] offset:%d sc1" % (8 + 4 * s_, 8 + 4 * s_ + 3, sWS, sWS + 1, 32 * s_))
e("s_waitcnt vmcnt(0)")
tags_ok([8 + 4 * k + o for k in range(4) for o in (1, 3)], "L_polls_done", 0, 0)
spin_guard("s13", "L_polls_done")
e("s_sleep %d\ns_branch L_polls" % P["ssleep"])
e("L_polls_done:")
e("v_max3_f32 v24, v8, v12, v16\nv_max_f32 v24, v24, v20")
e("s_mov_b32 s15, 0x%08x" % CEXP)
for s_ in range(4):
    e("v_sub_f32 v%d, v%d, v24\nv_mul_f32 v%d, s15, v%d" % (26 + s_, 8 + 4 * s_, 26 + s_, 26 + s_))
for s_ in range(4):
    e("v_exp_f32 v%d, v%d" % (26 + s_, 26 + s_))
e("s_nop 0")
e("v_mul_f32 v30, v26, v10\nv_fmac_f32 v30, v27, v14\nv_fmac_f32 v30, v28, v18\nv_fmac_f32 v30, v29, v22")
e("v_rcp_f32 v31, v30\ns_nop 0\nv_fma_f32 v32, -v30, v31, 2.0\nv_mul_f32 v31, v31, v32")
if not POOL:
    for s_ in range(4):
        e("v_mul_f32 v%d, v%d, v31" % (26 + s_, 26 + s_))
    e("s_nop 1")
    for s_ in range(4):
        e("v_mov_b32_dpp v%d, v%d quad_perm:[0,0,0,0] row_mask:0xf bank_mask:0xf" % (48 + s_, 26 + s_))
        e("v_mov_b32_dpp v%d, v%d quad_perm:[1,1,1,1] row_mask:0xf bank_mask:0xf" % (52 + s_, 26 + s_))
else:
    e("s_nop 1")
    e("v_mov_b32_dpp v48, v31 quad_perm:[0,0,0,0] row_mask:0xf bank_mask:0xf\nv_mov_b32_dpp v52, v31 quad_perm:[1,1,1,1] row_mask:0xf bank_mask:0xf")
    e("v_mov_b32 v33, v26")
    for k in range(1, 4):
        e("s_cmp_eq_u32 s7, %d\ns_cselect_b64 s[40:41], -1, 0\nv_cndmask_b32 v33, v33, v%d, s[40:41]" % (k, 26 + k))
    e("v_lshlrev_b32 v34, 2, v1\nv_add_u32 v34, %d, v34\ns_mov_b64 exec, 3\nds_write_b32 v34, v33\ns_mov_b64 exec, -1" % FME)
    for o in range(4):
        e("v_mov_b32_dpp v%d, v%d quad_perm:[0,0,0,0] row_mask:0xf bank_mask:0xf" % (36 + o, 26 + o))
        e("v_mov_b32_dpp v%d, v%d quad_perm:[1,1,1,1] row_mask:0xf bank_mask:0xf" % (40 + o, 26 + o))
    e("s_mov_b32 s40, 0\ns_mov_b32 s41, -1")
    for o in range(4):
        e("v_cndmask_b32 v%d, v%d, v%d, s[40:41]" % (36 + o, 36 + o, 40 + o))
    e("s_lshl_b32 s10, s8, 13\ns_add_u32 s10, s10, %d\nv_lshlrev_b32 v5, 4, v1\nv_add_u32 v5, s10, v5\nv_add_u32 v6, 4096, v5" % WS_PP)
    e("s_mov_b32 s13, 0")
    GP = 56
    e("L_pollp:")
    for o in range(4):
        for i in range(2):
            r = GP + 8 * o + 4 * i
            e("global_load_dwordx4 v[%d:%d], v%d, s[%d:%d] offset:%d sc1" % (r, r + 3, 5 if o < 2 else 6, sWS, sWS + 1, (o & 1) * 2048 + i * 1024))
    e("s_waitcnt vmcnt(0)")
    tags_ok([GP + 4 * k + o for k in range(8) for o in (1, 3)], "L_pollp_done", 12, 13)
    spin_guard("s13", "L_pollp_done")
    e("s_sleep %d\ns_branch L_pollp" % P["ssleep"])
    e("L_pollp_done:")
    e("v_lshrrev_b32 v7, 5, v1\nv_mul_u32_u24 v7, %d, v7\nv_and_b32 v8, 31, v1\nv_lshl_add_u32 v7, v8, 4, v7\nv_add_u32 v7, %d, v7" % (HS, PPB))
    for o in range(4):
        for i in range(2):
            r = GP + 8 * o + 4 * i
            for d in (0, 2):
                e("v_lshlrev_b32 v8, 16, v%d\nv_and_b32 v9, 0xffff0000, v%d" % (r + d, r + d))
                e("v_mul_f32 v8, v8, v%d\nv_mul_f32 v9, v9, v%d" % (36 + o, 36 + o))
                e("v_cvt_pk_bf16_f32 v%d, v8, v9" % (r + d // 2))
            e("ds_write_b64 v7, v[%d:%d] offset:%d" % (r, r + 1, o * 512 + i * 8))
    e("s_waitcnt lgkmcnt(0)")
    e("s_barrier            ; B3b")
for ks in range(N4A, 4):
    wo_load(ks)
e("s_branch L_h_b4")
e("L_h_wo2:")
for ks in range(NPRE, 4):
    wo_load(ks)
if P["B3A"] >= 0:
    e("s_barrier            ; B3a")
if POOL:
    e("s_barrier            ; B3b")
e("L_h_b4:")
stamp(4)
e("s_lshl_b32 s10, s8, 2\ns_add_u32 s10, s10, s7\ns_lshl_b32 s10, s10, 12\ns_add_u32 s10, s10, %d" % WS_OP)
e("v_lshlrev_b32 v5, 4, v1\nv_add_u32 v5, s10, v5")
e("v_lshlrev_b32 v6, 1, v1\nv_add_u32 v6, %d, v6" % OST)
e("v_lshlrev_b32 v7, 4, v3\nv_add_u32 v7, %d, v7" % OST)
e("s_lshl_b32 s11, s5, 2\ns_add_u32 s11, s11, s7          ; p")
e("s_mul_i32 s12, s6, 28\ns_lshl_b32 s13, s3, 3\ns_add_u32 s12, s12, s13\ns_lshl_b32 s12, s12, 5\ns_add_u32 s12, s12, s11\ns_lshl_b32 s12, s12, 7\ns_add_u32 s12, s12, %d" % WS_OUT)
e("v_lshrrev_b32 v44, 1, v2\nv_lshlrev_b32 v44, 12, v44")
e("v_and_b32 v45, 1, v2\nv_lshl_add_u32 v45, v45, 2, v3\nv_lshl_add_u32 v44, v45, 4, v44\nv_add_u32 v44, s12, v44")
e("s_mul_i32 s12, s6, 28\ns_add_u32 s12, s12, s11\ns_lshl_b32 s12, s12, 12\ns_add_u32 s12, s12, %d" % WS_OUT)
e("v_lshlrev_b32 v46, 4, v1\nv_add_u32 v46, s12, v46")
e("s_mov_b32 s48, 0xffff0000\ns_mov_b32 s49, 0\ns_mov_b32 s50, 0\ns_mov_b32 s51, 0x0000ffff\ns_mov_b32 s52, 0\ns_mov_b32 s53, 0xffff0000")
e("s_barrier            ; B4")
if DSP == 4:
    e("s_memrealtime s[94:95]\ns_waitcnt lgkmcnt(0)")
stamp(5)
e("s_cmp_lg_u32 s3, 0\ns_cbranch_scc1 L_h_b5")
e("s_mov_b32 s13, 0")
e("L_polla:")
for s_ in range(4):
    e("global_load_dwordx4 v[%d:%d], v5, s[%d:%d] offset:%d sc1" % (8 + 4 * s_, 8 + 4 * s_ + 3, sWS, sWS + 1, 1024 * s_))
e("s_waitcnt vmcnt(0)")
tags_ok([8 + 4 * k + o for k in range(4) for o in (1, 3)], "L_polla_done", 0, 0)
spin_guard("s13", "L_polla_done")
if P["asleep"]:
    e("s_sleep %d" % P["asleep"])
e("s_branch L_polla")
e("L_polla_done:")
if POOL:
    e("v_add_f32 v24, v8, v12\nv_add_f32 v25, v10, v14\nv_add_f32 v26, v16, v20\nv_add_f32 v27, v18, v22")
    e("v_add_f32 v24, v24, v26\nv_add_f32 v25, v25, v27\nv_mul_f32 v24, v24, v48\nv_mul_f32 v25, v25, v52")
else:
    e("v_mul_f32 v24, v48, v8\nv_mul_f32 v25, v52, v10")
    for s_ in range(1, 4):
        e("v_fmac_f32 v24, v%d, v%d\nv_fmac_f32 v25, v%d, v%d" % (48 + s_, 8 + 4 * s_, 52 + s_, 10 + 4 * s_))
e("v_cvt_pk_bf16_f32 v24, v24, v25")
e("ds_write_b16 v6, v24\nds_write_b16_d16_hi v6, v24 offset:128")
e("s_waitcnt lgkmcnt(0)")
e("L_h_b5:")
stamp(6)
e("s_barrier")
for ks in range(4):
    e("ds_read_b128 v[%d:%d], v7 offset:%d" % (8 + 4 * ks, 8 + 4 * ks + 3, ks * 64))
OA = 56
for ks in range(4):
    e("s_waitcnt lgkmcnt(%d)" % (3 - ks))
    for t in range(8):
        mfma16(OA + 4 * t, 8 + 4 * ks, WOH[ks] + t * 4, None if ks == 0 else OA + 4 * t)
e("v_mov_b32 v25, s9\nv_mov_b32 v27, s9")
e("s_nop 7")
e("v_cndmask_b32 v24, v%d, v%d, s[48:49]\nv_cndmask_b32 v26, v%d, v%d, s[48:49]" % (OA, OA + 8, OA + 4, OA + 12))
e("v_cndmask_b32 v24, v24, v%d, s[50:51]\nv_cndmask_b32 v26, v26, v%d, s[50:51]" % (OA + 16, OA + 20))
e("v_cndmask_b32 v24, v24, v%d, s[52:53]\nv_cndmask_b32 v26, v26, v%d, s[52:53]" % (OA + 24, OA + 28))
e("s_cmp_eq_u32 s3, 3\ns_cselect_b32 s12, 0x00ff00ff, -1\ns_mov_b32 exec_lo, s12\ns_mov_b32 exec_hi, s12")
e("global_store_dwordx4 v44, v[24:27], s[%d:%d] sc1" % (sWS, sWS + 1))
e("s_mov_b64 exec, -1")
stamp(7)
e("s_cmp_lg_u32 s3, 0\ns_cbranch_scc1 L_h_done")
e("s_cmp_ge_u32 s11, 28\ns_cbranch_scc1 L_h_done")
e("s_mov_b32 s13, 0")
e("L_pollo:")
for i in range(4):
    e("global_load_dwordx4 v[%d:%d], v46, s[%d:%d] offset:%d sc1" % (8 + 4 * i, 8 + 4 * i + 3, sWS, sWS + 1, 1024 * i))
e("s_waitcnt vmcnt(0)")
tags_ok([8 + 4 * k + o for k in range(4) for o in (1, 3)], "L_pollo_done", 0, 0)
spin_guard("s13", "L_pollo_done")
if P["osleep"]:
    e("s_sleep %d" % P["osleep"])
e("s_branch L_pollo")
e("L_pollo_done:")
e("v_add_f32 v24, v8, v12\nv_add_f32 v25, v10, v14\nv_add_f32 v26, v16, v20\nv_add_f32 v27, v18, v22")
e("v_add_f32 v24, v24, v26\nv_add_f32 v25, v25, v27")
e("s_nop 1")
e("v_add_f32_dpp v24, v24, v24 row_ror:8 row_mask:0xf bank_mask:0xf\nv_add_f32_dpp v25, v25, v25 row_ror:8 row_mask:0xf bank_mask:0xf")
e("v_mov_b32 v26, v24\nv_mov_b32 v27, v25\ns_nop 1")
e("v_permlane16_swap_b32 v24, v26\nv_permlane16_swap_b32 v25, v27")
e("v_add_f32 v24, v24, v26\nv_add_f32 v25, v25, v27")
e("v_mov_b32 v26, v24\nv_mov_b32 v27, v25\ns_nop 1")
e("v_permlane32_swap_b32 v24, v26\nv_permlane32_swap_b32 v25, v27")
e("v_add_f32 v24, v24, v26\nv_add_f32 v25, v25, v27")
e("v_cvt_pk_bf16_f32 v24, v24, v25")
e("s_mul_i32 s12, s6, 896\ns_lshl_b32 s13, s11, 5\ns_add_u32 s12, s12, s13")
e("v_lshlrev_b32 v26, 2, v1\nv_add_u32 v26, s12, v26")
e("s_mov_b64 exec, 0xff")
e("global_store_dword v26, v24, s[%d:%d]" % (sOUT, sOUT + 1))
e("s_cmp_lg_u32 s2, 0\ns_cbranch_scc1 L_h_done")
e("s_mov_b64 exec, 1")
e("v_mov_b32 v26, %d\nv_mov_b32 v27, s9" % WS_E)
e("global_store_dword v26, v27, s[%d:%d] sc1      ; next launch's epoch" % (sWS, sWS + 1))
if DSP:
    e("s_cmp_lg_u32 s2, 0\ns_cbranch_scc1 L_h_done")
    if DSP == 1:
        e("s_memrealtime s[94:95]\ns_waitcnt lgkmcnt(0)")
    e("s_sub_u32 s12, s94, s92")
    e("s_min_u32 s12, s12, 20000")
    e("s_memrealtime s[94:95]\ns_waitcnt lgkmcnt(0)\ns_add_u32 s13, s94, s12")
    e("L_dspin:\ns_memrealtime s[94:95]\ns_waitcnt lgkmcnt(0)\ns_sub_u32 s14, s13, s94\ns_cmp_gt_i32 s14, 0\ns_cbranch_scc1 L_dspin")
e("L_h_done:")
stamp(8)
if STAMPS:
    e("s_add_u32 s3, s3, 4")
stamp_flush(9)
e("L_end:")
e("s_endpgm")

e('.section .rodata,"a"\n.p2align 6\n.amdhsa_kernel %s' % KN)
e("  .amdhsa_next_free_vgpr 256\n  .amdhsa_next_free_sgpr 96\n  .amdhsa_accum_offset 256")
e("  .amdhsa_group_segment_fixed_size 0\n  .amdhsa_kernarg_size 64\n  .amdhsa_user_sgpr_count 2\n  .amdhsa_user_sgpr_kernarg_segment_ptr 1\n  .amdhsa_system_sgpr_workgroup_id_x 1")
e("  .amdhsa_float_denorm_mode_32 3")
e(".end_amdhsa_kernel")
open(out, "w").write("\n".join(L) + "\n")
```

```python
import sys, struct, copy

out = sys.argv[1]
P = dict(stamps=0, DI=6, DT=9, LAK=2, LAV=2, HOLD=4, B0AT=2, PBL=2, PEVERY=2, PMAX=0, PB2=2,
         NS=24, B3B=99, B3A=13, wo4a=1, wopre=2, worr=8, woprio=1, prio=1, spinmax=200000,
         kflags="nt", vflags="nt", wqflags="nt", woflags="nt", xflags="none", asleep=0, osleep=0, ssleep=8, MAP=1, RANK=0, QMODE=2, gflags="sc1", XLO=1, XHI=1, TLO=85, THI=170, RK1=9, RK2=3)
for a in sys.argv[2:]:
    k, v = a.split("=")
    P[k] = int(v) if v.lstrip("-").isdigit() else v
def fl(name):
    return P[name].replace("+", " ").replace("none", "")
kflags, vflags, wqflags, woflags, xflags = fl("kflags"), fl("vflags"), fl("wqflags"), fl("woflags"), fl("xflags")
STAMPS = P["stamps"]
NS = P["NS"]
NP = 32 - NS
POOL = NP > 0
assert NP in (0, 8)

L = []
def e(s=""):
    L.extend(s.split("\n"))

KN = "standalone__gqa_block_cached__decode_kernel"

WQS = 131072
PB = 131072
HS = 2112
PPB = PB + 4352
TKB = PPB + 4352
FME = TKB + 192
QB = 147456
MAXX = QB + 1024
LSUM = MAXX + 128
TAGL = LSUM + 128
OST = TAGL + 64
DBGL = OST + 256
LVL = DBGL + 64
LDS_TOTAL = LVL + 64
assert FME + 8 <= QB

WS_E = 0x0
WS_CNT = 0x10000
WS_ST = 0x30000
WS_OP = 0x40000
WS_OUT = 0x140000
WS_Q = 0x300000
WS_PP = 0x400000
WS_STAMP = 400 * 1024 * 1024
TAGC = 0x9E3779B9
CEXP = struct.unpack("<I", struct.pack("<f", 1.4426950408889634 / 16.0))[0]

e("; @launch grid=(256,1,1) block=(512,1,1) lds=%d" % LDS_TOTAL)
e('.amdgcn_target "amdgcn-amd-amdhsa--gfx950"')
e(".text")
e(".globl %s\n.p2align 8\n.type %s,@function\n%s:" % (KN, KN, KN))

sX, sK, sV, sWQ, sWO, sOUT, sDBG, sWS = 16, 18, 20, 22, 24, 26, 28, 30
stampregs = list(range(64, 84, 2))
def stamp(i):
    if STAMPS:
        e("s_memrealtime s[%d:%d]\ns_waitcnt lgkmcnt(0)" % (stampregs[i], stampregs[i] + 1))
def stamp_flush(n):
    if STAMPS != 1:
        return
    e("s_getreg_b32 s84, hwreg(HW_REG_XCC_ID)")
    e("s_lshl_b32 s85, s2, 3\ns_add_u32 s85, s85, s3\ns_lshl_b32 s85, s85, 7\ns_add_u32 s85, s85, %d" % WS_STAMP)
    e("s_add_u32 s86, s%d, s85\ns_addc_u32 s87, s%d, 0" % (sWS, sWS + 1))
    e("s_mov_b64 exec, 1\nv_mov_b32 v1, 0")
    for i in range(10):
        k = min(i, n - 1)
        e("v_mov_b32 v2, s%d\nv_mov_b32 v3, s%d" % (stampregs[k], stampregs[k] + 1))
        e("global_store_dwordx2 v1, v[2:3], s[86:87] offset:%d\ns_nop 1" % (i * 8))
    e("v_mov_b32 v2, s84\nv_mov_b32 v3, 0\nglobal_store_dwordx2 v1, v[2:3], s[86:87] offset:80\ns_waitcnt vmcnt(0)")

def spin_guard(cnt, label):
    e("s_add_u32 %s, %s, 1\ns_cmp_gt_u32 %s, %d\ns_cbranch_scc1 %s" % (cnt, cnt, cnt, P["spinmax"], label))

def tags_ok(regs, okl, tmp0, tmp1):
    if len(regs) <= 8:
        e("s_mov_b64 s[40:41], 0")
        for r in regs:
            e("v_cmp_ne_u32 vcc, s9, v%d\ns_or_b64 s[40:41], s[40:41], vcc" % r)
    else:
        e("v_min3_u32 v%d, v%d, v%d, v%d\nv_max3_u32 v%d, v%d, v%d, v%d" % (tmp0, regs[0], regs[1], regs[2], tmp1, regs[0], regs[1], regs[2]))
        k = 3
        while k < len(regs):
            if k + 1 < len(regs):
                e("v_min3_u32 v%d, v%d, v%d, v%d\nv_max3_u32 v%d, v%d, v%d, v%d" % (tmp0, tmp0, regs[k], regs[k + 1], tmp1, tmp1, regs[k], regs[k + 1])); k += 2
            else:
                e("v_min_u32 v%d, v%d, v%d\nv_max_u32 v%d, v%d, v%d" % (tmp0, tmp0, regs[k], tmp1, tmp1, regs[k])); k += 1
        e("v_cmp_ne_u32 s[40:41], s9, v%d\nv_cmp_ne_u32 vcc, s9, v%d\ns_or_b64 s[40:41], s[40:41], vcc" % (tmp0, tmp1))
    e("s_cmp_eq_u64 s[40:41], 0\ns_cbranch_scc1 %s" % okl)

e("s_cmp_ge_u32 s2, 256")
e("s_cbranch_scc1 L_end")
if STAMPS:
    e("s_memrealtime s[64:65]")
DSP = P.get("diagspin", 0)
if DSP:
    e("s_memrealtime s[92:93]")
if DSP == 9:
    e("s_waitcnt lgkmcnt(0)\ns_mov_b32 s94, s92")
e("s_load_dwordx16 s[16:31], s[0:1], 0")
e("v_lshrrev_b32 v1, 6, v0")
e("s_and_b32 s56, s2, 7             ; x")
e("v_readfirstlane_b32 s3, v1       ; wave")
e("s_lshr_b32 s4, s2, 3             ; y")
if P["MAP"] == 1:
    e("s_lshr_b32 s7, s56, 1            ; sp")
    e("s_xor_b32 s8, s56, s7\ns_and_b32 s8, s8, 1")
    e("s_lshl_b32 s5, s4, 1\ns_or_b32 s8, s8, s5              ; pair")
    e("s_and_b32 s5, s8, 7              ; hkv\ns_lshr_b32 s6, s8, 3             ; b")
else:
    e("s_mov_b32 s5, s56\ns_and_b32 s6, s4, 7\ns_lshr_b32 s7, s4, 3\ns_lshl_b32 s8, s6, 3\ns_add_u32 s8, s8, s5")
e("v_and_b32 v1, 63, v0             ; lane")
e("s_cmp_ge_u32 s3, 4")
e("s_cbranch_scc1 L_helper")

vKoff = list(range(2, 10)); vKrd = list(range(10, 18)); vVoff = list(range(18, 22)); vVrd = list(range(22, 26))
vPrd, vPwr, vQrd, vMrd, vMwr, vT3 = 26, 27, 28, 29, 30, 31
qB = 32; Sreg = 64; HOLDR = 128
Pa = 128; Vb = 132; acc = 148
vM, vMc, vL, vU = 164, 165, 166, 168
vA = [200, 201, 202, 203]
vOne, vCnt, vTk, vAd = 204, 205, 206, 208
vPP = 213

e("s_lshl_b32 s10, s3, 15")
e("s_lshl_b32 s11, s3, 12")
e("v_lshrrev_b32 v64, 5, v1\nv_and_b32 v65, 31, v1\nv_xor_b32 v65, v65, v64\nv_lshlrev_b32 v65, 4, v65")
e("v_lshl_add_u32 v%d, v64, 9, v65" % vKoff[0])
for n in range(1, 8):
    e("v_xor_b32 v%d, %d, v%d" % (vKoff[n], n << 5, vKoff[0]))
e("s_waitcnt lgkmcnt(0)")
e("s_lshl_b32 s12, s8, 21\ns_lshl_b32 s59, s7, 19\ns_add_u32 s13, s12, s59")
e("s_add_u32 s32, s%d, s13\ns_addc_u32 s33, s%d, 0\ns_mov_b32 s34, 0x80000\ns_mov_b32 s35, 0x20000" % (sK, sK + 1))
e("s_add_u32 s36, s%d, s12\ns_addc_u32 s37, s%d, 0\ns_mov_b32 s38, 0x200000\ns_mov_b32 s39, 0x20000" % (sV, sV + 1))

DI, LAK, LAV, DT = P["DI"], P["LAK"], P["LAV"], P["DT"]
class St:
    def __init__(self):
        self.ops = 0
        self.done = 0
        self.loads = 0
        self.opof = {}
        self.freed = 0
        self.use_level = False
        self.di0 = P.get('DI0', 0)
lbl = [0]
st = St()
NUNITS = 32 + NS + (2 if POOL else 0)
def wait_ops(x):
    if st.ops - st.done > x:
        e("s_waitcnt vmcnt(%d)" % x)
        st.done = st.ops - x
def wait_op(idx):
    if st.done <= idx:
        wait_ops(st.ops - 1 - idx)
def issue_load(di=None, dynsoff=None):
    n, jj = st.loads // 4, st.loads % 4
    di = (st.di0 if st.di0 else DI) if di is None else di
    assert n < st.freed + 8 and n < NUNITS
    if P["RANK"] and st.use_level and st.ops - st.done > di - 1 - P["XLO"]:
        lbl[0] += 1
        k = lbl[0]
        e("s_cmp_lg_u32 s55, 0\ns_cbranch_scc1 L_lv%da\ns_waitcnt vmcnt(%d)\nL_lv%da:" % (k, di - 1 - P["XLO"], k))
        e("s_cmp_eq_u32 s55, 2\ns_cbranch_scc1 L_lv%db\ns_waitcnt vmcnt(%d)\nL_lv%db:" % (k, di - 1, k))
        wait_ops(di - 1 + P["XHI"])
    else:
        wait_ops(di - 1)
    if jj == 0:
        e("s_add_u32 m0, s10, %d" % ((n % 8) * 4096))
        if n < 32:
            e("s_add_u32 s14, s11, %d" % (n * 16384))
        elif n < 32 + NS:
            e("s_add_u32 s14, s59, %d" % ((n - 32) * 16384))
        else:
            assert dynsoff is not None
            e("s_mov_b32 s14, %s" % dynsoff)
    if n < 32:
        e("buffer_load_dwordx4 v%d, s[32:35], s14 offen offset:%d %s lds" % (vKoff[(n & 1) * 4 + jj], jj * 1024, kflags))
    else:
        e("buffer_load_dwordx4 v%d, s[36:39], s14 offen offset:%d %s lds" % (vVoff[jj], jj * 1024, vflags))
    st.opof[st.loads] = st.ops
    st.ops += 1; st.loads += 1
def pump_until(nunits, di=None):
    nunits = min(nunits, 32 + NS, st.freed + 8)
    while st.loads < 4 * nunits:
        issue_load(di)
def pump(k, di=None):
    for _ in range(k):
        if st.loads // 4 < min(32 + NS, st.freed + 8):
            issue_load(di)
def need(nunits):
    wait_op(st.opof[4 * nunits - 1])

pump(P.get('DI0', 0) or DI)
e("v_lshrrev_b32 v64, 3, v1\nv_lshrrev_b32 v65, 1, v64\nv_and_b32 v65, 3, v65\nv_lshlrev_b32 v65, 1, v65")
e("v_and_b32 v66, 7, v1\nv_xor_b32 v66, v66, v65\nv_lshlrev_b32 v66, 4, v66\nv_lshl_add_u32 v66, v64, 9, v66")
e("s_lshl_b32 s15, s3, 7\nv_add_u32 v%d, s15, v66" % vVoff[0])
for jj in range(1, 4):
    e("v_add_u32 v%d, %d, v%d" % (vVoff[jj], jj * 3072, vVoff[0]))
e("v_and_b32 v64, 15, v1             ; n\nv_lshrrev_b32 v65, 4, v1          ; g")
e("v_xor_b32 v66, v64, v65\nv_lshlrev_b32 v66, 4, v66\nv_lshl_add_u32 v66, v64, 9, v66\nv_add_u32 v%d, s10, v66" % vKrd[0])
for i in range(1, 8):
    e("v_xor_b32 v%d, %d, v%d" % (vKrd[i], i << 6, vKrd[0]))
e("v_and_b32 v66, 1, v65\nv_lshrrev_b32 v67, 3, v64\nv_lshl_or_b32 v67, v66, 1, v67")
e("v_lshrrev_b32 v68, 2, v64\nv_lshl_add_u32 v68, v66, 2, v68\nv_lshlrev_b32 v68, 7, v68")
e("v_lshrrev_b32 v69, 1, v65\nv_lshl_add_u32 v68, v69, 11, v68\nv_and_b32 v70, 3, v64\nv_lshl_add_u32 v68, v70, 3, v68\nv_add_u32 v68, s10, v68")
for t in range(4):
    e("v_xor_b32 v71, %d, v67\nv_lshl_add_u32 v%d, v71, 5, v68" % (t, vVrd[t]))
e("v_and_b32 v66, 1, v64             ; head\nv_mul_u32_u24 v72, %d, v66" % HS)
e("v_lshl_add_u32 v%d, v65, 4, v72\nv_add_u32 v%d, %d, v%d" % (vPrd, vPrd, PB, vPrd))
e("s_lshr_b32 s15, s3, 1\ns_lshl_b32 s15, s15, 5\ns_and_b32 s40, s3, 1\ns_lshl_b32 s40, s40, 3\ns_add_u32 s15, s15, s40\ns_add_u32 s15, s15, %d" % PB)
e("v_lshl_add_u32 v%d, v69, 6, v72\nv_and_b32 v73, 1, v65\nv_lshl_add_u32 v%d, v73, 4, v%d\nv_add_u32 v%d, s15, v%d" % (vPwr, vPwr, vPwr, vPwr, vPwr))
e("v_lshlrev_b32 v%d, 9, v66\nv_lshl_add_u32 v%d, v65, 4, v%d\nv_add_u32 v%d, %d, v%d" % (vQrd, vQrd, vQrd, vQrd, QB, vQrd))
e("v_lshlrev_b32 v%d, 6, v66\nv_add_u32 v%d, %d, v%d" % (vMrd, vMrd, MAXX, vMrd))
e("s_lshl_b32 s15, s3, 4\nv_lshl_add_u32 v%d, v65, 2, v%d\nv_add_u32 v%d, s15, v%d" % (vMwr, vMrd, vMwr, vMwr))

HOLDN = P["HOLD"]; B0AT = P["B0AT"]
pump_until(8)
if B0AT == 0:
    e("s_barrier")
for T in range(HOLDN):
    need(2 * T + 2)
    for i in range(8):
        r = HOLDR + 32 * T + 4 * i
        e("ds_read_b128 v[%d:%d], v%d offset:%d" % (r, r + 3, vKrd[i], (T % 4) * 8192))
    e("s_waitcnt lgkmcnt(0)")
    st.freed = 2 * T + 2
    pump_until(st.freed + 8)
    if B0AT == T + 1:
        e("s_barrier")
stamp(1)
st.di0 = P.get("DI1", 0)
e("s_barrier")
stamp(2)
for i in range(8):
    e("ds_read_b128 v[%d:%d], v%d offset:%d" % (qB + 4 * i, qB + 4 * i + 3, vQrd, i * 64))
e("v_mov_b32 v%d, %d\nds_read_b32 v%d, v%d\ns_waitcnt lgkmcnt(0)\nv_readfirstlane_b32 s9, v%d" % (vT3, TAGL, vT3, vT3, vT3))

def mfma16(d, a, b, c):
    e("v_mfma_f32_16x16x32_bf16 v[%d:%d], v[%d:%d], v[%d:%d], %s" % (d, d + 3, a, a + 3, b, b + 3, "0" if c is None else "v[%d:%d]" % (c, c + 3)))
def ktile(T, from_regs):
    e("; K tile %d" % T)
    S = Sreg + 4 * T
    if from_regs:
        for i in range(8):
            mfma16(S, HOLDR + 32 * T + 4 * i, qB + 4 * i, None if i == 0 else S)
        return
    nd = 2 * T + 2
    pump_until(nd + LAK)
    need(nd)
    for i in range(8):
        e("ds_read_b128 v[%d:%d], v%d offset:%d" % (AregK + 4 * i, AregK + 4 * i + 3, vKrd[i], (T % 4) * 8192))
    for i in range(8):
        e("s_waitcnt lgkmcnt(%d)" % (7 - i))
        mfma16(S, AregK + 4 * i, qB + 4 * i, None if i == 0 else S)
    st.freed = nd
    if T == HOLDN:
        pump(DI)
if HOLDN == 4:
    order = [(0, True)] + [(T, False) for T in range(4, 8)] + [(1, True), (2, True), (3, True)] + [(T, False) for T in range(8, 16)]
    AregK = HOLDR
else:
    order = [(T, False) for T in range(HOLDN, HOLDN + 4)] + [(T, True) for T in range(HOLDN)] + [(T, False) for T in range(HOLDN + 4, 16)]
    AregK = HOLDR + 32 * HOLDN
def read_level(k):
    e("v_mov_b32 v%d, %d\nds_read_b32 v%d, v%d\ns_waitcnt lgkmcnt(0)\nv_readfirstlane_b32 s55, v%d" % (vT3, LVL + 4 * k, vT3, vT3, vT3))
    st.use_level = True
for idx, (T, fr) in enumerate(order):
    if HOLDN and 2 <= idx < HOLDN + 4:
        pump(P["PBL"])
    if P["RANK"] and idx == P["RK1"]:
        read_level(0)
    ktile(T, fr)
stamp(3)
st.di0 = 0
e("; softmax")
pump(1, DT)
e("s_nop 7")
e("v_max3_f32 v%d, v%d, v%d, v%d" % (vM, Sreg, Sreg + 1, Sreg + 2))
i = 3; cnt = 0
while i < 64:
    if i + 1 < 64:
        e("v_max3_f32 v%d, v%d, v%d, v%d" % (vM, vM, Sreg + i, Sreg + i + 1)); i += 2
    else:
        e("v_max_f32 v%d, v%d, v%d" % (vM, vM, Sreg + i)); i += 1
    cnt += 1
    if P["PMAX"] and cnt % P["PMAX"] == 0:
        pump(1, DT)
e("s_mov_b32 exec_lo, 0x00030003\ns_mov_b32 exec_hi, 0x00030003")
e("ds_write_b32 v%d, v%d" % (vMwr, vM))
e("s_mov_b64 exec, -1")
pump(P["PB2"], DT)
e("s_waitcnt lgkmcnt(0)")
e("s_barrier")
for i in range(4):
    e("ds_read_b128 v[%d:%d], v%d offset:%d" % (vU + 4 * i, vU + 4 * i + 3, vMrd, 16 * i))
e("s_waitcnt lgkmcnt(0)")
e("v_max3_f32 v%d, v%d, v%d, v%d" % (vM, vU, vU + 1, vU + 2))
for i in range(3, 15, 2):
    e("v_max3_f32 v%d, v%d, v%d, v%d" % (vM, vM, vU + i, vU + i + 1))
e("v_max_f32 v%d, v%d, v%d" % (vM, vM, vU + 15))
e("s_mov_b32 s15, 0x%08x" % CEXP)
e("v_mul_f32 v%d, s15, v%d" % (vMc, vM))
e("v_mov_b32 v%d, 0\nv_mov_b32 v%d, 0" % (vL, vL + 1))
def fold(p0):
    e("v_add_f32 v%d, v%d, v%d\nv_add_f32 v%d, v%d, v%d" % (vL, vL, p0, vL + 1, vL + 1, p0 + 1))
    e("v_add_f32 v%d, v%d, v%d\nv_add_f32 v%d, v%d, v%d" % (vL, vL, p0 + 2, vL + 1, vL + 1, p0 + 3))
    e("v_cvt_pk_bf16_f32 v%d, v%d, v%d\nv_cvt_pk_bf16_f32 v%d, v%d, v%d" % (p0, p0, p0 + 1, p0 + 1, p0 + 2, p0 + 3))
for T in range(16):
    s0 = Sreg + 4 * T
    for r in range(4):
        e("v_fma_f32 v%d, v%d, s15, -v%d" % (s0 + r, s0 + r, vMc))
    for r in range(4):
        e("v_exp_f32 v%d, v%d" % (s0 + r, s0 + r))
    if T % P["PEVERY"] == P["PEVERY"] - 1:
        pump(1, DT)
    if T > 0:
        fold(Sreg + 4 * (T - 1))
e("s_nop 0")
fold(Sreg + 60)
e("v_add_f32 v%d, v%d, v%d" % (vL, vL, vL + 1))
e("s_mov_b32 exec_lo, 0x00030003\ns_mov_b32 exec_hi, 0x00030003")
for T in range(16):
    e("ds_write_b64 v%d, v[%d:%d] offset:%d" % (vPwr, Sreg + 4 * T, Sreg + 4 * T + 1, T * 128))
e("ds_write_b32 v%d, v%d offset:%d" % (vMwr, vL, LSUM - MAXX))
e("s_mov_b64 exec, -1")
for t in range(16):
    e("v_mov_b32 v%d, 0" % (acc + t))
if POOL:
    e("s_lshl_b32 s12, s8, 7\ns_add_u32 s12, s12, %d\nv_mov_b32 v%d, s12\nv_mov_b32 v%d, 1\nv_mov_b32 v%d, %d" % (WS_CNT, vCnt, vOne, vTk, TKB))
    e("v_add_u32 v%d, %d, v%d" % (vPP, PPB - PB, vPrd))
pump(P["PB2"], DT)
e("s_waitcnt lgkmcnt(0)")
e("s_barrier")
stamp(4)

def vunit_compute(paddr, poff, vaddrs, slot):
    e("ds_read_b128 v[%d:%d], v%d offset:%d" % (Pa, Pa + 3, paddr, poff))
    for t in range(4):
        e("ds_read_b64_tr_b16 v[%d:%d], v%d offset:%d" % (Vb + 4 * t, Vb + 4 * t + 1, vaddrs[t], slot))
        e("ds_read_b64_tr_b16 v[%d:%d], v%d offset:%d" % (Vb + 4 * t + 2, Vb + 4 * t + 3, vaddrs[t], slot + 1024))
    for t in range(4):
        e("s_waitcnt lgkmcnt(%d)" % (6 - 2 * t))
        mfma16(acc + 4 * t, Pa, Vb + 4 * t, acc + 4 * t)
def vunit(u):
    n = 32 + u
    e("; V unit %d" % u)
    if P["RANK"] and u == P["RK2"]:
        read_level(1)
    pump_until(n + 1 + LAV)
    need(n + 1)
    vunit_compute(vPrd, u * 64, vVrd, (n % 8) * 4096)
    st.freed = n + 1
    if u in (7, 15) or (u == 23 and not POOL):
        stamp(7 + (u - 7) // 8)

sI, sSo, sPo0, sPo1, sPo2, sV0, sV1, sTk = 60, 61, 62, 63, 88, 89, 90, 91
def decode(tk, po, valid):
    e("s_and_b32 s12, %s, 3\ns_lshr_b32 s13, %s, 2" % (tk, tk))
    e("s_lshl_b32 s%d, s12, 3\ns_add_u32 s%d, s%d, s13\ns_lshl_b32 s%d, s%d, 6" % (po, po, po, po, po))
    e("s_lshl_b32 s12, s12, 19\ns_lshl_b32 s13, s13, 14\ns_add_u32 s12, s12, s13\ns_add_u32 s12, s12, %d" % (NS * 16384))
    e("s_cmp_lt_u32 %s, %d\ns_cselect_b32 s%d, s12, 0x7fff0000" % (tk, 4 * NP, sSo))
    if valid is not None:
        e("s_cselect_b32 s%d, 1, 0" % valid)
def get_ticket_lds(dyn):
    lbl[0] += 1
    k = lbl[0]
    e("s_mov_b32 s15, 0\nL_tk%d:" % k)
    e("ds_read_b32 v%d, v%d%s\ns_waitcnt lgkmcnt(0)\nv_readfirstlane_b32 s%d, v%d" % (vAd + 5 - 5 + 0, vTk, "" if dyn is None else " offset:%d" % (4 * dyn), sTk, vAd))
    spin_guard("s15", "L_tkd%d" % k)
    e("s_cmp_eq_u32 s%d, -1\ns_cbranch_scc1 L_tk%d\nL_tkd%d:" % (sTk, k, k))
def dyn_compute(po):
    e("s_and_b32 s12, s%d, 7\ns_lshl_b32 s12, s12, 12" % sI)
    for t in range(4):
        e("v_add_u32 v%d, s12, v%d" % (vAd + t, vVrd[t]))
    e("v_add_u32 v%d, s%d, v%d" % (vAd + 4, po, vPP))
    vunit_compute(vAd + 4, 0, [vAd + t for t in range(4)], 0)
def dyn_loads():
    e("s_add_u32 s12, s%d, 2\ns_and_b32 s12, s12, 7\ns_lshl_b32 s12, s12, 12\ns_add_u32 m0, s10, s12\ns_mov_b32 s14, s%d" % (sI, sSo))
    for jj in range(4):
        e("buffer_load_dwordx4 v%d, s[36:39], s14 offen offset:%d %s lds" % (vVoff[jj], jj * 1024, vflags))
def rescale_acc():
    e("; switch from own scale to the pair's scale")
    e("v_mov_b32 v%d, %d\nds_read_b64 v[%d:%d], v%d\ns_waitcnt lgkmcnt(0)\ns_nop 4" % (vAd, FME, vU, vU + 1, vAd))
    for t in range(4):
        e("v_mul_f32 v%d, v%d, v%d\nv_mul_f32 v%d, v%d, v%d" % (acc + 4 * t, acc + 4 * t, vU, acc + 4 * t + 1, acc + 4 * t + 1, vU + 1))
    e("s_nop 1")

if not POOL:
    for u in range(32):
        if u == P["B3A"]:
            e("s_barrier")
        vunit(u)
else:
    UA = NS - 6
    assert P["B3B"] < UA or P["B3B"] >= NS
    for u in range(UA):
        if u == P["B3B"]:
            e("s_barrier")
        if u == P["B3A"]:
            e("s_barrier")
        vunit(u)
    e("s_cmp_lg_u32 s3, 0\ns_cbranch_scc1 L_vfollow")
    snap = copy.deepcopy(st)
    for lead in (True, False):
        if not lead:
            st = snap
            e("L_vfollow:")
        tag = "a" if lead else "b"
        aop = {}
        for u in range(UA, NS):
            n = 32 + u
            e("; V unit %d (%s)" % (u, "leader" if lead else "follower"))
            k = u - UA
            if lead and k < 4:
                e("s_mov_b64 exec, 1\nglobal_atomic_add v%d, v%d, v%d, s[%d:%d] sc0 sc1\ns_mov_b64 exec, -1" % (vA[k], vCnt, vOne, sWS, sWS + 1))
                aop[k] = st.ops; st.ops += 1
            pump_until(n + 1 + LAV)
            kk = u - (NS - 2)
            if kk >= 0:
                if lead:
                    wait_op(aop[kk])
                    e("v_readfirstlane_b32 s%d, v%d\ns_mov_b64 exec, 1\nds_write_b32 v%d, v%d offset:%d\ns_mov_b64 exec, -1" % (sTk, vA[kk], vTk, vA[kk], 4 * kk))
                else:
                    get_ticket_lds(kk)
                decode("s%d" % sTk, sPo0 if kk == 0 else sPo1, sV0 if kk == 0 else sV1)
                for jj in range(4):
                    issue_load(None, "s%d" % sSo)
            need(n + 1)
            vunit_compute(vPrd, u * 64, vVrd, (n % 8) * 4096)
            st.freed = n + 1
        stamp(9)
        if P["B3B"] >= NS:
            e("s_barrier")
        rescale_acc()
        e("s_mov_b32 s%d, 0\nv_add_u32 v%d, 8, v%d" % (sI, vTk, vTk))
        e("s_waitcnt vmcnt(4)")
        e("L_pool_%s:" % tag)
        for par in range(2 if lead else 1):
            if lead:
                e("s_waitcnt vmcnt(5)")
                va = vA[2 + par]
                e("v_readfirstlane_b32 s%d, v%d\ns_mov_b64 exec, 1\nds_write_b32 v%d, v%d\ns_mov_b64 exec, -1" % (sTk, va, vTk, va))
            else:
                e("s_waitcnt vmcnt(4)")
                get_ticket_lds(None)
            e("s_cmp_ge_u32 s%d, %d\ns_cbranch_scc1 L_drain_%s" % (sTk, 4 * NP, tag))
            if lead:
                e("s_mov_b64 exec, 1\nglobal_atomic_add v%d, v%d, v%d, s[%d:%d] sc0 sc1\ns_mov_b64 exec, -1" % (va, vCnt, vOne, sWS, sWS + 1))
            decode("s%d" % sTk, sPo2, None)
            dyn_loads()
            dyn_compute(sPo0)
            e("s_mov_b32 s%d, s%d\ns_mov_b32 s%d, s%d\ns_add_u32 s%d, s%d, 1\nv_add_u32 v%d, 4, v%d" % (sPo0, sPo1, sPo1, sPo2, sI, sI, vTk, vTk))
            e("s_mov_b32 s%d, 1\ns_mov_b32 s%d, 1" % (sV0, sV1))
        e("s_branch L_pool_%s" % tag)
        e("L_drain_%s:" % tag)
        e("s_cmp_eq_u32 s%d, 0\ns_cbranch_scc1 L_dr1_%s" % (sV0, tag))
        dyn_compute(sPo0)
        e("L_dr1_%s:" % tag)
        e("s_waitcnt vmcnt(0)")
        e("s_cmp_eq_u32 s%d, 0\ns_cbranch_scc1 L_dr2_%s" % (sV1, tag))
        e("s_add_u32 s%d, s%d, 1" % (sI, sI))
        dyn_compute(sPo1)
        e("L_dr2_%s:" % tag)
        if lead:
            e("s_branch L_vdone")
    e("L_vdone:")
stamp(5)
e("s_lshl_b32 s12, s8, 2\ns_add_u32 s12, s12, s3\ns_lshl_b32 s12, s12, 2\ns_add_u32 s12, s12, s7\ns_lshl_b32 s12, s12, 10\ns_add_u32 s12, s12, %d" % WS_OP)
e("v_lshlrev_b32 v%d, 4, v1\nv_add_u32 v%d, s12, v%d" % (vQrd, vQrd, vQrd))
e("s_mov_b32 s40, 0xffff0000\ns_mov_b32 s41, 0\ns_mov_b32 s42, 0\ns_mov_b32 s43, 0x0000ffff\ns_mov_b32 s44, 0\ns_mov_b32 s45, 0xffff0000")
e("v_mov_b32 v%d, s9\nv_mov_b32 v%d, s9" % (vU + 1, vU + 3))
e("s_nop 3")
for (m, a0) in (("s[40:41]", 4), ("s[42:43]", 8), ("s[44:45]", 12)):
    src0 = (acc + 0, acc + 1) if a0 == 4 else (vU, vU + 2)
    e("v_cndmask_b32 v%d, v%d, v%d, %s" % (vU, src0[0], acc + a0, m))
    e("v_cndmask_b32 v%d, v%d, v%d, %s" % (vU + 2, src0[1], acc + a0 + 1, m))
e("global_store_dwordx4 v%d, v[%d:%d], s[%d:%d] sc1" % (vQrd, vU, vU + 3, sWS, sWS + 1))
e("s_barrier")
stamp(6)
stamp_flush(10)
e("s_endpgm")

e("L_helper:")
e("s_sub_u32 s3, s3, 4              ; hw")
e("v_and_b32 v2, 15, v1             ; n\nv_lshrrev_b32 v3, 4, v1          ; g")
e("s_waitcnt lgkmcnt(0)")
e("s_cmp_lg_u32 s3, 0")
e("s_cbranch_scc0 L_w4")
if B0AT >= 0:
    e("s_barrier            ; B0")
e("s_branch L_h_b1")
e("L_w4:")
if P["prio"]:
    e("s_setprio 3")
e("s_load_dword s9, s[%d:%d], %d     ; epoch word" % (sWS, sWS + 1, WS_E))
e("s_mov_b32 s32, s%d\ns_mov_b32 s33, s%d\ns_mov_b32 s34, %d\ns_mov_b32 s35, 0x20000" % (sWQ, sWQ + 1, 448 * 8192))
e("s_mov_b32 s36, s%d\ns_mov_b32 s37, s%d\ns_mov_b32 s38, %d\ns_mov_b32 s39, 0x20000" % (sX, sX + 1, 8 * 896))
QMODE = P['QMODE']
if QMODE == 2:
    e("s_and_b32 s57, s4, 7              ; cl\ns_lshr_b32 s58, s4, 3             ; kq")
    e("s_lshl_b32 s10, s58, 7\ns_mul_i32 s11, s58, 96\ns_add_u32 s11, s11, 64\ns_cmp_lt_u32 s58, 2\ns_cselect_b32 s10, s10, s11")
    e("s_lshl_b32 s11, s10, 13\ns_lshl_b32 s12, s56, 10\ns_add_u32 s11, s11, s12\ns_lshl_b32 s12, s57, 7\ns_add_u32 s11, s11, s12")
    e("v_lshrrev_b32 v4, 3, v1\nv_lshlrev_b32 v4, 13, v4\nv_and_b32 v5, 7, v1\nv_lshl_add_u32 v4, v5, 4, v4")
    XB = 8
    e("v_and_b32 v5, 7, v2\nv_mul_u32_u24 v5, 896, v5\nv_lshl_add_u32 v5, v3, 4, v5")
    e("s_lshl_b32 s10, s10, 1")
    def wq_loads(a, b):
        for m in range(a, b):
            e("s_mov_b32 m0, %d\ns_add_u32 s12, s11, %d" % (WQS + m * 1024, m * 8 * 8192))
            e("buffer_load_dwordx4 v4, s[32:35], s12 offen %s lds" % wqflags)
    def x_load(ks):
        e("buffer_load_dwordx4 v[%d:%d], v5, s[36:39], s10 offen offset:%d %s" % (XB + 4 * ks, XB + 4 * ks + 3, ks * 64, xflags))
    wq_loads(0, 12)
    for ks in range(3):
        x_load(ks)
    e("s_cmp_lt_u32 s58, 2\ns_cbranch_scc0 L_q3")
    wq_loads(12, 16); x_load(3)
    e("L_q3:")
    if POOL:
        e("s_cmp_ge_u32 s4, 8\ns_cbranch_scc1 L_nocnt")
        e("s_lshl_b32 s12, s4, 3\ns_add_u32 s12, s12, s56\ns_lshl_b32 s12, s12, 7\ns_add_u32 s12, s12, %d\nv_mov_b32 v6, s12\nv_mov_b32 v7, 0" % WS_CNT)
        e("s_mov_b64 exec, 1\nglobal_store_dword v6, v7, s[%d:%d] sc1\ns_mov_b64 exec, -1" % (sWS, sWS + 1))
        e("L_nocnt:")
    e("v_lshlrev_b32 v6, 10, v3\nv_lshrrev_b32 v7, 2, v2\nv_lshl_add_u32 v6, v7, 7, v6\nv_and_b32 v7, 3, v2\nv_lshl_add_u32 v6, v7, 3, v6\nv_add_u32 v6, %d, v6" % WQS)
    e("v_and_b32 v7, 7, v2\nv_lshlrev_b32 v7, 17, v7\nv_lshl_add_u32 v7, v3, 5, v7\nv_lshrrev_b32 v24, 3, v2\nv_lshl_add_u32 v7, v24, 4, v7")
    e("s_lshl_b32 s11, s56, 2\ns_add_u32 s11, s11, s58\ns_lshl_b32 s11, s11, 12\ns_lshl_b32 s12, s57, 9\ns_add_u32 s11, s11, s12\ns_add_u32 s11, s11, %d\nv_add_u32 v7, s11, v7" % WS_Q)
    e("s_waitcnt vmcnt(0) lgkmcnt(0)")
    e("s_add_u32 s9, s9, 0x%08x        ; tag of this launch" % TAGC)
    WA = 32; QA = 64
    def q_reads(ks):
        b0 = WA + 16 * (ks & 1)
        for ct in range(4):
            e("ds_read_b64_tr_b16 v[%d:%d], v6 offset:%d" % (b0 + 4 * ct, b0 + 4 * ct + 1, ks * 4096 + ct * 32))
            e("ds_read_b64_tr_b16 v[%d:%d], v6 offset:%d" % (b0 + 4 * ct + 2, b0 + 4 * ct + 3, ks * 4096 + 512 + ct * 32))
    def q_mfma(ks):
        b0 = WA + 16 * (ks & 1)
        for ct in range(4):
            mfma16(QA + 4 * ct, b0 + 4 * ct, XB + 4 * ks, None if ks == 0 else QA + 4 * ct)
    q_reads(0); q_reads(1)
    e("s_waitcnt lgkmcnt(8)"); q_mfma(0)
    q_reads(2)
    e("s_waitcnt lgkmcnt(8)"); q_mfma(1)
    e("s_cmp_lt_u32 s58, 2\ns_cbranch_scc0 L_q3b")
    q_reads(3)
    e("s_waitcnt lgkmcnt(8)"); q_mfma(2)
    e("s_waitcnt lgkmcnt(0)"); q_mfma(3)
    e("s_branch L_q3c\nL_q3b:")
    e("s_waitcnt lgkmcnt(0)"); q_mfma(2)
    e("L_q3c:")
    QT = 96
    e("s_mov_b32 s40, 0xff00ff00\ns_mov_b32 s41, 0xff00ff00")
    for ct in range(4):
        e("v_mov_b32 v%d, s9\nv_mov_b32 v%d, s9" % (QT + 4 * ct + 1, QT + 4 * ct + 3))
    e("s_nop 1")
    for ct in range(4):
        e("v_cndmask_b32 v%d, v%d, v%d, s[40:41]" % (QT + 4 * ct, QA + 4 * ct, QA + 4 * ct + 2))
        e("v_cndmask_b32 v%d, v%d, v%d, s[40:41]" % (QT + 4 * ct + 2, QA + 4 * ct + 1, QA + 4 * ct + 3))
    for ct in range(4):
        e("global_store_dwordx4 v7, v[%d:%d], s[%d:%d] offset:%d sc1" % (QT + 4 * ct, QT + 4 * ct + 3, sWS, sWS + 1, ct * 128))
    stamp(1)
    if POOL:
        e("v_lshlrev_b32 v12, 2, v1\nv_add_u32 v12, %d, v12\nv_mov_b32 v13, -1\ns_mov_b32 exec_lo, -1\ns_mov_b32 exec_hi, 0x0000ffff" % TKB)
        e("ds_write_b32 v12, v13\ns_mov_b64 exec, -1")
    e("s_lshl_b32 s11, s8, 14\ns_add_u32 s11, s11, %d" % WS_Q)
    e("v_lshlrev_b32 v8, 4, v1\nv_add_u32 v8, s11, v8")
    for kq in range(1, 4):
        e("v_add_u32 v%d, %d, v8" % (8 + kq, kq * 4096))
    e("s_mov_b32 s13, 0")
    GQ = 128
    if B0AT >= 0:
        e("s_barrier            ; B0")
    e("L_pollq:")
    for kq in range(4):
        for i in range(4):
            r = GQ + 16 * kq + 4 * i
            e("global_load_dwordx4 v[%d:%d], v%d, s[%d:%d] offset:%d %s" % (r, r + 3, 8 + kq, sWS, sWS + 1, i * 1024, fl("gflags")))
    e("s_waitcnt vmcnt(0)")
    tags_ok([GQ + 4 * k + o for k in range(16) for o in (1, 3)], "L_pollq_done", 12, 13)
    spin_guard("s13", "L_pollq_done")
    e("s_branch L_pollq")
    e("L_pollq_done:")
    e("v_lshlrev_b32 v7, 2, v1\nv_add_u32 v7, %d, v7" % QB)
    for i in range(4):
        r = GQ + 4 * i
        e("v_add_f32 v%d, v%d, v%d\nv_add_f32 v%d, v%d, v%d" % (r, r, r + 16, r + 2, r + 2, r + 18))
        e("v_add_f32 v%d, v%d, v%d\nv_add_f32 v%d, v%d, v%d" % (r + 32, r + 32, r + 48, r + 34, r + 34, r + 50))
        e("v_add_f32 v%d, v%d, v%d\nv_add_f32 v%d, v%d, v%d" % (r, r, r + 32, r + 2, r + 2, r + 34))
        e("v_cvt_pk_bf16_f32 v%d, v%d, v%d" % (r, r, r + 2))
        e("ds_write_b32 v7, v%d offset:%d" % (r, i * 256))
else:
    assert not POOL
    e("s_lshl_b32 s10, s56, 5\ns_add_u32 s10, s10, s4           ; c")
    e("v_lshrrev_b32 v4, 1, v1\nv_lshlrev_b32 v4, 13, v4\nv_and_b32 v5, 1, v1\nv_lshl_add_u32 v4, v5, 4, v4")
    e("s_lshl_b32 s11, s10, 5\nv_add_u32 v4, s11, v4")
    for ks in range(14):
        e("s_mov_b32 m0, %d\ns_mov_b32 s12, %d" % (WQS + ks * 1024, ks * 262144))
        e("buffer_load_dwordx4 v4, s[32:35], s12 offen %s lds" % wqflags)
    XB = 8
    e("v_and_b32 v5, 7, v2\nv_mul_u32_u24 v5, 896, v5\nv_lshl_add_u32 v5, v3, 4, v5\nv_lshrrev_b32 v6, 3, v2\nv_lshl_add_u32 v5, v6, 6, v5")
    for k2 in range(7):
        e("buffer_load_dwordx4 v[%d:%d], v5, s[36:39], 0 offen offset:%d %s" % (XB + 4 * k2, XB + 4 * k2 + 3, k2 * 128, xflags))
    e("v_lshlrev_b32 v6, 8, v3\nv_lshl_add_u32 v6, v2, 3, v6\nv_add_u32 v6, %d, v6" % WQS)
    e("v_lshlrev_b32 v7, 14, v2\nv_lshl_add_u32 v7, v3, 4, v7")
    e("s_lshl_b32 s11, s10, 6\ns_add_u32 s11, s11, %d\nv_add_u32 v7, s11, v7" % WS_Q)
    e("s_waitcnt vmcnt(0) lgkmcnt(0)")
    e("s_add_u32 s9, s9, 0x%08x        ; tag of this launch" % TAGC)
    WA = 40
    for ks in range(14):
        r = WA + 4 * (ks & 3)
        e("ds_read_b64_tr_b16 v[%d:%d], v6 offset:%d" % (r, r + 1, ks * 1024))
        e("ds_read_b64_tr_b16 v[%d:%d], v6 offset:%d" % (r + 2, r + 3, ks * 1024 + 128))
        if ks >= 2:
            pk = ks - 2
            e("s_waitcnt lgkmcnt(4)")
            mfma16(72 + 4 * (pk & 1), WA + 4 * (pk & 3), XB + 4 * (pk >> 1), None if pk < 2 else 72 + 4 * (pk & 1))
    for pk in (12, 13):
        e("s_waitcnt lgkmcnt(%d)" % (2 if pk == 12 else 0))
        mfma16(72 + 4 * (pk & 1), WA + 4 * (pk & 3), XB + 4 * (pk >> 1), 72 + 4 * (pk & 1))
    e("v_mov_b32 v81, s9\nv_mov_b32 v83, s9\ns_nop 7")
    for r in range(4):
        e("v_add_f32_dpp v%d, v%d, v%d row_ror:8 row_mask:0xf bank_mask:0xf" % (72 + r, 76 + r, 72 + r))
    e("v_cvt_pk_bf16_f32 v80, v72, v73\nv_cvt_pk_bf16_f32 v82, v74, v75")
    e("s_mov_b32 exec_lo, 0x00ff00ff\ns_mov_b32 exec_hi, 0x00ff00ff")
    e("global_store_dwordx4 v7, v[80:83], s[%d:%d] sc1" % (sWS, sWS + 1))
    e("s_mov_b64 exec, -1")
    stamp(1)
    e("s_lshl_b32 s11, s6, 14\ns_lshl_b32 s12, s5, 11\ns_add_u32 s11, s11, s12\ns_add_u32 s11, s11, %d" % WS_Q)
    e("v_lshlrev_b32 v7, 4, v1\nv_add_u32 v7, s11, v7")
    e("s_mov_b32 s13, 0")
    if B0AT >= 0:
        e("s_barrier            ; B0")
    e("L_pollq:")
    e("global_load_dwordx4 v[84:87], v7, s[%d:%d] %s" % (sWS, sWS + 1, fl("gflags")))
    e("global_load_dwordx4 v[88:91], v7, s[%d:%d] offset:1024 %s" % (sWS, sWS + 1, fl("gflags")))
    e("s_waitcnt vmcnt(0)")
    tags_ok([85, 87, 89, 91], "L_pollq_done", 0, 0)
    spin_guard("s13", "L_pollq_done")
    e("s_branch L_pollq")
    e("L_pollq_done:")
    e("v_mov_b32 v85, v86\nv_mov_b32 v89, v90")
    e("v_lshlrev_b32 v7, 3, v1\nv_add_u32 v7, %d, v7" % QB)
    e("ds_write_b64 v7, v[84:85]\nds_write_b64 v7, v[88:89] offset:512")
e("v_mov_b32 v8, %d\nv_mov_b32 v9, s9\nds_write_b32 v8, v9" % TAGL)
if P["RANK"]:
    e("v_mov_b32 v8, %d\nv_mov_b32 v10, 1\nv_mov_b32 v11, 1\nds_write_b64 v8, v[10:11]" % LVL)
e("s_waitcnt lgkmcnt(0)")
if P["prio"]:
    e("s_setprio 0")
e("L_h_b1:")
if DSP == 8:
    e("s_memrealtime s[94:95]\ns_waitcnt lgkmcnt(0)")
stamp(2)
e("s_barrier            ; B1")
if DSP == 2:
    e("s_memrealtime s[94:95]\ns_waitcnt lgkmcnt(0)")

e("v_mov_b32 v8, %d\nds_read_b32 v8, v8\ns_waitcnt lgkmcnt(0)\nv_readfirstlane_b32 s9, v8" % TAGL)
def rank_checkpoint(k):
    lbl[0] += 1
    lab = "L_rk%d" % lbl[0]
    e("s_cmp_lg_u32 s3, 1\ns_cbranch_scc1 %s" % lab)
    e("s_mov_b64 exec, 1\nv_mov_b32 v10, %d\nv_mov_b32 v11, 1\nglobal_atomic_add v12, v10, v11, s[%d:%d] sc0 sc1\ns_waitcnt vmcnt(0)" % (4 * k, sDBG, sDBG + 1))
    e("v_readfirstlane_b32 s12, v12\ns_nop 3\ns_cmp_ge_u32 s12, %d\ns_cselect_b32 s13, 1, 0\ns_cmp_ge_u32 s12, %d\ns_cselect_b32 s13, 2, s13" % (P["TLO"], P["THI"]))
    e("v_mov_b32 v10, %d\nv_mov_b32 v11, s13\nds_write_b32 v10, v11\ns_waitcnt lgkmcnt(0)\ns_mov_b64 exec, -1" % (LVL + 4 * k))
    e("%s:" % lab)
if P["RANK"]:
    rank_checkpoint(0)
e("s_mov_b32 s32, s%d\ns_mov_b32 s33, s%d\ns_mov_b32 s34, %d\ns_mov_b32 s35, 0x20000" % (sWO, sWO + 1, 4096 * 896))
e("v_mul_u32_u24 v47, %d, v3\nv_lshl_add_u32 v47, v2, 4, v47\ns_lshl_b32 s10, s3, 8\nv_add_u32 v47, s10, v47" % (8 * 896))
e("s_cmp_eq_u32 s3, 3\ns_cselect_b32 s12, 0x7fffffff, 0")
e("v_mov_b32 v9, s12\nv_cmp_lt_u32 vcc, 7, v2\ns_nop 1\nv_cndmask_b32 v9, 0, v9, vcc\nv_or_b32 v47, v47, v9")
e("s_lshl_b32 s54, s5, 9\ns_lshl_b32 s11, s7, 6\ns_add_u32 s54, s54, s11\ns_mul_i32 s54, s54, 896")
e("s_mov_b32 s46, 0x05040100\ns_mov_b32 s47, 0x07060302")
RAW = 96; WOH = [128 + 32 * ks for ks in range(4)]
def wo_load(ks):
    rowoff = ((ks >> 1) * 256 + (ks & 1) * 32) * 896
    R = P["worr"]
    for j0 in range(0, 8, R):
        if P["woprio"]:
            e("s_setprio 3")
        for j in range(j0, j0 + R):
            e("s_add_u32 s12, s54, %d" % (rowoff + j * 896))
            e("buffer_load_dwordx4 v[%d:%d], v47, s[32:35], s12 offen %s" % (RAW + 4 * j, RAW + 4 * j + 3, woflags))
        if P["woprio"]:
            e("s_setprio 0")
        e("s_waitcnt vmcnt(0)")
    for t in range(8):
        for p in range(4):
            e("v_perm_b32 v%d, v%d, v%d, %s" % (WOH[ks] + t * 4 + p, RAW + 4 * (2 * p + 1) + (t >> 1), RAW + 4 * (2 * p) + (t >> 1), "s47" if (t & 1) else "s46"))
NPRE = P["wopre"]
for ks in range(NPRE):
    wo_load(ks)
stamp(3)
e("s_barrier            ; B2")
e("s_barrier            ; B3")
if DSP == 3:
    e("s_memrealtime s[94:95]\ns_waitcnt lgkmcnt(0)")

if P["RANK"]:
    rank_checkpoint(1)
e("s_cmp_lg_u32 s3, 0\ns_cbranch_scc1 L_h_wo2")
e("v_and_b32 v4, 1, v2\nv_lshlrev_b32 v4, 6, v4\nv_add_u32 v4, %d, v4" % MAXX)
for i in range(4):
    e("ds_read_b128 v[%d:%d], v4 offset:%d" % (8 + 4 * i, 8 + 4 * i + 3, 16 * i))
for i in range(4):
    e("ds_read_b128 v[%d:%d], v4 offset:%d" % (24 + 4 * i, 24 + 4 * i + 3, LSUM - MAXX + 16 * i))
if POOL:
    e("v_lshrrev_b32 v5, 5, v1\nv_mul_u32_u24 v5, %d, v5\nv_and_b32 v6, 31, v1\nv_lshl_add_u32 v5, v6, 4, v5\nv_add_u32 v5, %d, v5" % (HS, PB + NS * 64))
    e("ds_read_b128 v[56:59], v5")
e("s_waitcnt lgkmcnt(0)")
e("v_max3_f32 v40, v8, v9, v10")
for i in range(3, 15, 2):
    e("v_max3_f32 v40, v40, v%d, v%d" % (8 + i, 8 + i + 1))
e("v_max_f32 v40, v40, v23")
e("v_add_f32 v42, v24, v25")
for i in range(2, 16):
    e("v_add_f32 v42, v42, v%d" % (24 + i))
e("v_mov_b32 v41, s9\nv_mov_b32 v43, s9")
e("s_lshl_b32 s10, s8, 2\ns_add_u32 s10, s10, s7\ns_lshl_b32 s12, s10, 5\ns_add_u32 s12, s12, %d" % WS_ST)
e("v_lshlrev_b32 v5, 4, v1\nv_add_u32 v6, s12, v5")
e("s_mov_b64 exec, 3\nglobal_store_dwordx4 v6, v[40:43], s[%d:%d] sc1\ns_mov_b64 exec, -1" % (sWS, sWS + 1))
if POOL:
    e("v_mov_b32 v60, v56\nv_mov_b32 v61, s9\nv_mov_b32 v62, v57\nv_mov_b32 v63, s9")
    e("v_mov_b32 v64, v58\nv_mov_b32 v65, s9\nv_mov_b32 v66, v59\nv_mov_b32 v67, s9")
    e("s_lshl_b32 s12, s10, 11\ns_add_u32 s12, s12, %d\nv_add_u32 v6, s12, v5" % WS_PP)
    e("global_store_dwordx4 v6, v[60:63], s[%d:%d] sc1\nglobal_store_dwordx4 v6, v[64:67], s[%d:%d] offset:1024 sc1" % (sWS, sWS + 1, sWS, sWS + 1))
N4A = NPRE
if P["B3A"] >= 0:
    for ks in range(NPRE, min(4, NPRE + P["wo4a"])):
        wo_load(ks)
        N4A = ks + 1
    e("s_barrier            ; B3a")
e("s_lshl_b32 s10, s8, 7\ns_add_u32 s10, s10, %d" % WS_ST)
e("v_and_b32 v5, 1, v1\nv_lshlrev_b32 v5, 4, v5\nv_add_u32 v5, s10, v5")
e("s_mov_b32 s13, 0")
e("L_polls:")
for s_ in range(4):
    e("global_load_dwordx4 v[%d:%d], v5, s[%d:%d] offset:%d sc1" % (8 + 4 * s_, 8 + 4 * s_ + 3, sWS, sWS + 1, 32 * s_))
e("s_waitcnt vmcnt(0)")
tags_ok([8 + 4 * k + o for k in range(4) for o in (1, 3)], "L_polls_done", 0, 0)
spin_guard("s13", "L_polls_done")
e("s_sleep %d\ns_branch L_polls" % P["ssleep"])
e("L_polls_done:")
e("v_max3_f32 v24, v8, v12, v16\nv_max_f32 v24, v24, v20")
e("s_mov_b32 s15, 0x%08x" % CEXP)
for s_ in range(4):
    e("v_sub_f32 v%d, v%d, v24\nv_mul_f32 v%d, s15, v%d" % (26 + s_, 8 + 4 * s_, 26 + s_, 26 + s_))
for s_ in range(4):
    e("v_exp_f32 v%d, v%d" % (26 + s_, 26 + s_))
e("s_nop 0")
e("v_mul_f32 v30, v26, v10\nv_fmac_f32 v30, v27, v14\nv_fmac_f32 v30, v28, v18\nv_fmac_f32 v30, v29, v22")
e("v_rcp_f32 v31, v30\ns_nop 0\nv_fma_f32 v32, -v30, v31, 2.0\nv_mul_f32 v31, v31, v32")
if not POOL:
    for s_ in range(4):
        e("v_mul_f32 v%d, v%d, v31" % (26 + s_, 26 + s_))
    e("s_nop 1")
    for s_ in range(4):
        e("v_mov_b32_dpp v%d, v%d quad_perm:[0,0,0,0] row_mask:0xf bank_mask:0xf" % (48 + s_, 26 + s_))
        e("v_mov_b32_dpp v%d, v%d quad_perm:[1,1,1,1] row_mask:0xf bank_mask:0xf" % (52 + s_, 26 + s_))
else:
    e("s_nop 1")
    e("v_mov_b32_dpp v48, v31 quad_perm:[0,0,0,0] row_mask:0xf bank_mask:0xf\nv_mov_b32_dpp v52, v31 quad_perm:[1,1,1,1] row_mask:0xf bank_mask:0xf")
    e("v_mov_b32 v33, v26")
    for k in range(1, 4):
        e("s_cmp_eq_u32 s7, %d\ns_cselect_b64 s[40:41], -1, 0\nv_cndmask_b32 v33, v33, v%d, s[40:41]" % (k, 26 + k))
    e("v_lshlrev_b32 v34, 2, v1\nv_add_u32 v34, %d, v34\ns_mov_b64 exec, 3\nds_write_b32 v34, v33\ns_mov_b64 exec, -1" % FME)
    for o in range(4):
        e("v_mov_b32_dpp v%d, v%d quad_perm:[0,0,0,0] row_mask:0xf bank_mask:0xf" % (36 + o, 26 + o))
        e("v_mov_b32_dpp v%d, v%d quad_perm:[1,1,1,1] row_mask:0xf bank_mask:0xf" % (40 + o, 26 + o))
    e("s_mov_b32 s40, 0\ns_mov_b32 s41, -1")
    for o in range(4):
        e("v_cndmask_b32 v%d, v%d, v%d, s[40:41]" % (36 + o, 36 + o, 40 + o))
    e("s_lshl_b32 s10, s8, 13\ns_add_u32 s10, s10, %d\nv_lshlrev_b32 v5, 4, v1\nv_add_u32 v5, s10, v5\nv_add_u32 v6, 4096, v5" % WS_PP)
    e("s_mov_b32 s13, 0")
    GP = 56
    e("L_pollp:")
    for o in range(4):
        for i in range(2):
            r = GP + 8 * o + 4 * i
            e("global_load_dwordx4 v[%d:%d], v%d, s[%d:%d] offset:%d sc1" % (r, r + 3, 5 if o < 2 else 6, sWS, sWS + 1, (o & 1) * 2048 + i * 1024))
    e("s_waitcnt vmcnt(0)")
    tags_ok([GP + 4 * k + o for k in range(8) for o in (1, 3)], "L_pollp_done", 12, 13)
    spin_guard("s13", "L_pollp_done")
    e("s_sleep %d\ns_branch L_pollp" % P["ssleep"])
    e("L_pollp_done:")
    e("v_lshrrev_b32 v7, 5, v1\nv_mul_u32_u24 v7, %d, v7\nv_and_b32 v8, 31, v1\nv_lshl_add_u32 v7, v8, 4, v7\nv_add_u32 v7, %d, v7" % (HS, PPB))
    for o in range(4):
        for i in range(2):
            r = GP + 8 * o + 4 * i
            for d in (0, 2):
                e("v_lshlrev_b32 v8, 16, v%d\nv_and_b32 v9, 0xffff0000, v%d" % (r + d, r + d))
                e("v_mul_f32 v8, v8, v%d\nv_mul_f32 v9, v9, v%d" % (36 + o, 36 + o))
                e("v_cvt_pk_bf16_f32 v%d, v8, v9" % (r + d // 2))
            e("ds_write_b64 v7, v[%d:%d] offset:%d" % (r, r + 1, o * 512 + i * 8))
    e("s_waitcnt lgkmcnt(0)")
    e("s_barrier            ; B3b")
for ks in range(N4A, 4):
    wo_load(ks)
e("s_branch L_h_b4")
e("L_h_wo2:")
for ks in range(NPRE, 4):
    wo_load(ks)
if P["B3A"] >= 0:
    e("s_barrier            ; B3a")
if POOL:
    e("s_barrier            ; B3b")
e("L_h_b4:")
stamp(4)
e("s_lshl_b32 s10, s8, 2\ns_add_u32 s10, s10, s7\ns_lshl_b32 s10, s10, 12\ns_add_u32 s10, s10, %d" % WS_OP)
e("v_lshlrev_b32 v5, 4, v1\nv_add_u32 v5, s10, v5")
e("v_lshlrev_b32 v6, 1, v1\nv_add_u32 v6, %d, v6" % OST)
e("v_lshlrev_b32 v7, 4, v3\nv_add_u32 v7, %d, v7" % OST)
e("s_lshl_b32 s11, s5, 2\ns_add_u32 s11, s11, s7          ; p")
e("s_mul_i32 s12, s6, 28\ns_lshl_b32 s13, s3, 3\ns_add_u32 s12, s12, s13\ns_lshl_b32 s12, s12, 5\ns_add_u32 s12, s12, s11\ns_lshl_b32 s12, s12, 7\ns_add_u32 s12, s12, %d" % WS_OUT)
e("v_lshrrev_b32 v44, 1, v2\nv_lshlrev_b32 v44, 12, v44")
e("v_and_b32 v45, 1, v2\nv_lshl_add_u32 v45, v45, 2, v3\nv_lshl_add_u32 v44, v45, 4, v44\nv_add_u32 v44, s12, v44")
e("s_mul_i32 s12, s6, 28\ns_add_u32 s12, s12, s11\ns_lshl_b32 s12, s12, 12\ns_add_u32 s12, s12, %d" % WS_OUT)
e("v_lshlrev_b32 v46, 4, v1\nv_add_u32 v46, s12, v46")
e("s_mov_b32 s48, 0xffff0000\ns_mov_b32 s49, 0\ns_mov_b32 s50, 0\ns_mov_b32 s51, 0x0000ffff\ns_mov_b32 s52, 0\ns_mov_b32 s53, 0xffff0000")
e("s_barrier            ; B4")
if DSP == 4:
    e("s_memrealtime s[94:95]\ns_waitcnt lgkmcnt(0)")
stamp(5)
e("s_cmp_lg_u32 s3, 0\ns_cbranch_scc1 L_h_b5")
e("s_mov_b32 s13, 0")
e("L_polla:")
for s_ in range(4):
    e("global_load_dwordx4 v[%d:%d], v5, s[%d:%d] offset:%d sc1" % (8 + 4 * s_, 8 + 4 * s_ + 3, sWS, sWS + 1, 1024 * s_))
e("s_waitcnt vmcnt(0)")
tags_ok([8 + 4 * k + o for k in range(4) for o in (1, 3)], "L_polla_done", 0, 0)
spin_guard("s13", "L_polla_done")
if P["asleep"]:
    e("s_sleep %d" % P["asleep"])
e("s_branch L_polla")
e("L_polla_done:")
if POOL:
    e("v_add_f32 v24, v8, v12\nv_add_f32 v25, v10, v14\nv_add_f32 v26, v16, v20\nv_add_f32 v27, v18, v22")
    e("v_add_f32 v24, v24, v26\nv_add_f32 v25, v25, v27\nv_mul_f32 v24, v24, v48\nv_mul_f32 v25, v25, v52")
else:
    e("v_mul_f32 v24, v48, v8\nv_mul_f32 v25, v52, v10")
    for s_ in range(1, 4):
        e("v_fmac_f32 v24, v%d, v%d\nv_fmac_f32 v25, v%d, v%d" % (48 + s_, 8 + 4 * s_, 52 + s_, 10 + 4 * s_))
e("v_cvt_pk_bf16_f32 v24, v24, v25")
e("ds_write_b16 v6, v24\nds_write_b16_d16_hi v6, v24 offset:128")
e("s_waitcnt lgkmcnt(0)")
e("L_h_b5:")
if DSP == 5:
    e("s_memrealtime s[94:95]\ns_waitcnt lgkmcnt(0)")
stamp(6)
e("s_barrier")
for ks in range(4):
    e("ds_read_b128 v[%d:%d], v7 offset:%d" % (8 + 4 * ks, 8 + 4 * ks + 3, ks * 64))
OA = 56
for ks in range(4):
    e("s_waitcnt lgkmcnt(%d)" % (3 - ks))
    for t in range(8):
        mfma16(OA + 4 * t, 8 + 4 * ks, WOH[ks] + t * 4, None if ks == 0 else OA + 4 * t)
e("v_mov_b32 v25, s9\nv_mov_b32 v27, s9")
e("s_nop 7")
e("v_cndmask_b32 v24, v%d, v%d, s[48:49]\nv_cndmask_b32 v26, v%d, v%d, s[48:49]" % (OA, OA + 8, OA + 4, OA + 12))
e("v_cndmask_b32 v24, v24, v%d, s[50:51]\nv_cndmask_b32 v26, v26, v%d, s[50:51]" % (OA + 16, OA + 20))
e("v_cndmask_b32 v24, v24, v%d, s[52:53]\nv_cndmask_b32 v26, v26, v%d, s[52:53]" % (OA + 24, OA + 28))
e("s_cmp_eq_u32 s3, 3\ns_cselect_b32 s12, 0x00ff00ff, -1\ns_mov_b32 exec_lo, s12\ns_mov_b32 exec_hi, s12")
e("global_store_dwordx4 v44, v[24:27], s[%d:%d] sc1" % (sWS, sWS + 1))
e("s_mov_b64 exec, -1")
stamp(7)
e("s_cmp_lg_u32 s3, 0\ns_cbranch_scc1 L_h_done")
e("s_cmp_ge_u32 s11, 28\ns_cbranch_scc1 L_h_done")
e("s_mov_b32 s13, 0")
e("L_pollo:")
for i in range(4):
    e("global_load_dwordx4 v[%d:%d], v46, s[%d:%d] offset:%d sc1" % (8 + 4 * i, 8 + 4 * i + 3, sWS, sWS + 1, 1024 * i))
e("s_waitcnt vmcnt(0)")
tags_ok([8 + 4 * k + o for k in range(4) for o in (1, 3)], "L_pollo_done", 0, 0)
spin_guard("s13", "L_pollo_done")
if P["osleep"]:
    e("s_sleep %d" % P["osleep"])
e("s_branch L_pollo")
e("L_pollo_done:")
e("v_add_f32 v24, v8, v12\nv_add_f32 v25, v10, v14\nv_add_f32 v26, v16, v20\nv_add_f32 v27, v18, v22")
e("v_add_f32 v24, v24, v26\nv_add_f32 v25, v25, v27")
e("s_nop 1")
e("v_add_f32_dpp v24, v24, v24 row_ror:8 row_mask:0xf bank_mask:0xf\nv_add_f32_dpp v25, v25, v25 row_ror:8 row_mask:0xf bank_mask:0xf")
e("v_mov_b32 v26, v24\nv_mov_b32 v27, v25\ns_nop 1")
e("v_permlane16_swap_b32 v24, v26\nv_permlane16_swap_b32 v25, v27")
e("v_add_f32 v24, v24, v26\nv_add_f32 v25, v25, v27")
e("v_mov_b32 v26, v24\nv_mov_b32 v27, v25\ns_nop 1")
e("v_permlane32_swap_b32 v24, v26\nv_permlane32_swap_b32 v25, v27")
e("v_add_f32 v24, v24, v26\nv_add_f32 v25, v25, v27")
e("v_cvt_pk_bf16_f32 v24, v24, v25")
e("s_mul_i32 s12, s6, 896\ns_lshl_b32 s13, s11, 5\ns_add_u32 s12, s12, s13")
e("v_lshlrev_b32 v26, 2, v1\nv_add_u32 v26, s12, v26")
e("s_mov_b64 exec, 0xff")
e("global_store_dword v26, v24, s[%d:%d]" % (sOUT, sOUT + 1))
e("s_cmp_lg_u32 s2, 0\ns_cbranch_scc1 L_h_done")
e("s_mov_b64 exec, 1")
e("v_mov_b32 v26, %d\nv_mov_b32 v27, s9" % WS_E)
e("global_store_dword v26, v27, s[%d:%d] sc1      ; next launch's epoch" % (sWS, sWS + 1))
if DSP and not P.get("diagall", 0):
    e("s_cmp_lg_u32 s2, 0\ns_cbranch_scc1 L_h_done")
    if DSP == 1:
        e("s_memrealtime s[94:95]\ns_waitcnt lgkmcnt(0)")
    e("s_sub_u32 s12, s94, s92")
    e("s_min_u32 s12, s12, 20000")
    e("s_memrealtime s[94:95]\ns_waitcnt lgkmcnt(0)\ns_add_u32 s13, s94, s12")
    e("L_dspin:\ns_memrealtime s[94:95]\ns_waitcnt lgkmcnt(0)\ns_sub_u32 s14, s13, s94\ns_cmp_gt_i32 s14, 0\ns_cbranch_scc1 L_dspin")
e("L_h_done:")
if DSP and P.get("diagall", 0):
    e("s_cmp_lg_u32 s3, 0\ns_cbranch_scc1 L_dsp_done")
    e("s_sub_u32 s12, s94, s92\ns_min_u32 s12, s12, 20000\ns_add_u32 s13, s92, s12\ns_add_u32 s13, s13, s12\ns_add_u32 s13, s13, 6000")
    e("L_dspin:\ns_memrealtime s[94:95]\ns_waitcnt lgkmcnt(0)\ns_sub_u32 s14, s13, s94\ns_cmp_gt_i32 s14, 0\ns_cbranch_scc1 L_dspin")
    e("L_dsp_done:")
stamp(8)
if STAMPS:
    e("s_add_u32 s3, s3, 4")
stamp_flush(9)
e("L_end:")
e("s_endpgm")

e('.section .rodata,"a"\n.p2align 6\n.amdhsa_kernel %s' % KN)
e("  .amdhsa_next_free_vgpr 256\n  .amdhsa_next_free_sgpr 96\n  .amdhsa_accum_offset 256")
e("  .amdhsa_group_segment_fixed_size 0\n  .amdhsa_kernarg_size 64\n  .amdhsa_user_sgpr_count 2\n  .amdhsa_user_sgpr_kernarg_segment_ptr 1\n  .amdhsa_system_sgpr_workgroup_id_x 1")
e("  .amdhsa_float_denorm_mode_32 3")
e(".end_amdhsa_kernel")
open(out, "w").write("\n".join(L) + "\n")
```

```python
import sys, struct, copy

out = sys.argv[1]
P = dict(stamps=0, DI=6, DT=9, LAK=2, LAV=2, HOLD=4, B0AT=2, PBL=2, PEVERY=2, PMAX=0, PB2=2,
         NS=24, B3B=99, B3A=13, wo4a=1, wopre=2, worr=8, woprio=1, prio=1, spinmax=200000,
         kflags="nt", vflags="nt", wqflags="nt", woflags="nt", xflags="none", asleep=0, osleep=0, ssleep=8, MAP=1, RANK=0, QMODE=2, gflags="sc1", XLO=1, XHI=1, TLO=85, THI=170, RK1=9, RK2=3)
for a in sys.argv[2:]:
    k, v = a.split("=")
    P[k] = int(v) if v.lstrip("-").isdigit() else v
def fl(name):
    return P[name].replace("+", " ").replace("none", "")
kflags, vflags, wqflags, woflags, xflags = fl("kflags"), fl("vflags"), fl("wqflags"), fl("woflags"), fl("xflags")
STAMPS = P["stamps"]
NS = P["NS"]
NP = 32 - NS
POOL = NP > 0
assert NP in (0, 8)

L = []
def e(s=""):
    L.extend(s.split("\n"))

KN = "standalone__gqa_block_cached__decode_kernel"

WQS = 131072
PB = 131072
HS = 2112
PPB = PB + 4352
TKB = PPB + 4352
FME = TKB + 192
QB = 147456
MAXX = QB + 1024
LSUM = MAXX + 128
TAGL = LSUM + 128
OST = TAGL + 64
DBGL = OST + 256
LVL = DBGL + 64
LDS_TOTAL = LVL + 64
assert FME + 8 <= QB

WS_E = 0x0
WS_CNT = 0x10000
WS_ST = 0x30000
WS_OP = 0x40000
WS_OUT = 0x140000
WS_Q = 0x300000
WS_PP = 0x400000
WS_STAMP = 400 * 1024 * 1024
TAGC = 0x9E3779B9
CEXP = struct.unpack("<I", struct.pack("<f", 1.4426950408889634 / 16.0))[0]

e("; @launch grid=(256,1,1) block=(512,1,1) lds=%d" % LDS_TOTAL)
e('.amdgcn_target "amdgcn-amd-amdhsa--gfx950"')
e(".text")
e(".globl %s\n.p2align 8\n.type %s,@function\n%s:" % (KN, KN, KN))

sX, sK, sV, sWQ, sWO, sOUT, sDBG, sWS = 16, 18, 20, 22, 24, 26, 28, 30
stampregs = list(range(64, 84, 2))
def stamp(i):
    if STAMPS:
        e("s_memrealtime s[%d:%d]\ns_waitcnt lgkmcnt(0)" % (stampregs[i], stampregs[i] + 1))
def stamp_flush(n):
    if STAMPS != 1:
        return
    e("s_getreg_b32 s84, hwreg(HW_REG_XCC_ID)")
    e("s_lshl_b32 s85, s2, 3\ns_add_u32 s85, s85, s3\ns_lshl_b32 s85, s85, 7\ns_add_u32 s85, s85, %d" % WS_STAMP)
    e("s_add_u32 s86, s%d, s85\ns_addc_u32 s87, s%d, 0" % (sWS, sWS + 1))
    e("s_mov_b64 exec, 1\nv_mov_b32 v1, 0")
    for i in range(10):
        k = min(i, n - 1)
        e("v_mov_b32 v2, s%d\nv_mov_b32 v3, s%d" % (stampregs[k], stampregs[k] + 1))
        e("global_store_dwordx2 v1, v[2:3], s[86:87] offset:%d\ns_nop 1" % (i * 8))
    e("v_mov_b32 v2, s84\nv_mov_b32 v3, 0\nglobal_store_dwordx2 v1, v[2:3], s[86:87] offset:80\ns_waitcnt vmcnt(0)")

def spin_guard(cnt, label):
    e("s_add_u32 %s, %s, 1\ns_cmp_gt_u32 %s, %d\ns_cbranch_scc1 %s" % (cnt, cnt, cnt, P["spinmax"], label))

def tags_ok(regs, okl, tmp0, tmp1):
    if len(regs) <= 8:
        e("s_mov_b64 s[40:41], 0")
        for r in regs:
            e("v_cmp_ne_u32 vcc, s9, v%d\ns_or_b64 s[40:41], s[40:41], vcc" % r)
    else:
        e("v_min3_u32 v%d, v%d, v%d, v%d\nv_max3_u32 v%d, v%d, v%d, v%d" % (tmp0, regs[0], regs[1], regs[2], tmp1, regs[0], regs[1], regs[2]))
        k = 3
        while k < len(regs):
            if k + 1 < len(regs):
                e("v_min3_u32 v%d, v%d, v%d, v%d\nv_max3_u32 v%d, v%d, v%d, v%d" % (tmp0, tmp0, regs[k], regs[k + 1], tmp1, tmp1, regs[k], regs[k + 1])); k += 2
            else:
                e("v_min_u32 v%d, v%d, v%d\nv_max_u32 v%d, v%d, v%d" % (tmp0, tmp0, regs[k], tmp1, tmp1, regs[k])); k += 1
        e("v_cmp_ne_u32 s[40:41], s9, v%d\nv_cmp_ne_u32 vcc, s9, v%d\ns_or_b64 s[40:41], s[40:41], vcc" % (tmp0, tmp1))
    e("s_cmp_eq_u64 s[40:41], 0\ns_cbranch_scc1 %s" % okl)

e("s_cmp_ge_u32 s2, 256")
e("s_cbranch_scc1 L_end")
if STAMPS:
    e("s_memrealtime s[64:65]")
DSP = P.get("diagspin", 0)
if DSP:
    e("s_memrealtime s[92:93]")
if DSP == 9:
    e("s_waitcnt lgkmcnt(0)\ns_mov_b32 s94, s92")
e("s_load_dwordx16 s[16:31], s[0:1], 0")
e("v_lshrrev_b32 v1, 6, v0")
e("s_and_b32 s56, s2, 7             ; x")
e("v_readfirstlane_b32 s3, v1       ; wave")
e("s_lshr_b32 s4, s2, 3             ; y")
if P["MAP"] == 1:
    e("s_lshr_b32 s7, s56, 1            ; sp")
    e("s_xor_b32 s8, s56, s7\ns_and_b32 s8, s8, 1")
    e("s_lshl_b32 s5, s4, 1\ns_or_b32 s8, s8, s5              ; pair")
    e("s_and_b32 s5, s8, 7              ; hkv\ns_lshr_b32 s6, s8, 3             ; b")
else:
    e("s_mov_b32 s5, s56\ns_and_b32 s6, s4, 7\ns_lshr_b32 s7, s4, 3\ns_lshl_b32 s8, s6, 3\ns_add_u32 s8, s8, s5")
e("v_and_b32 v1, 63, v0             ; lane")
e("s_cmp_ge_u32 s3, 4")
e("s_cbranch_scc1 L_helper")

vKoff = list(range(2, 10)); vKrd = list(range(10, 18)); vVoff = list(range(18, 22)); vVrd = list(range(22, 26))
vPrd, vPwr, vQrd, vMrd, vMwr, vT3 = 26, 27, 28, 29, 30, 31
qB = 32; Sreg = 64; HOLDR = 128
Pa = 128; Vb = 132; acc = 148
vM, vMc, vL, vU = 164, 165, 166, 168
vA = [200, 201, 202, 203]
vOne, vCnt, vTk, vAd = 204, 205, 206, 208
vPP = 213

e("s_lshl_b32 s10, s3, 15")
e("s_lshl_b32 s11, s3, 12")
e("v_lshrrev_b32 v64, 5, v1\nv_and_b32 v65, 31, v1\nv_xor_b32 v65, v65, v64\nv_lshlrev_b32 v65, 4, v65")
e("v_lshl_add_u32 v%d, v64, 9, v65" % vKoff[0])
for n in range(1, 8):
    e("v_xor_b32 v%d, %d, v%d" % (vKoff[n], n << 5, vKoff[0]))
e("s_waitcnt lgkmcnt(0)")
e("s_lshl_b32 s12, s8, 21\ns_lshl_b32 s59, s7, 19\ns_add_u32 s13, s12, s59")
e("s_add_u32 s32, s%d, s13\ns_addc_u32 s33, s%d, 0\ns_mov_b32 s34, 0x80000\ns_mov_b32 s35, 0x20000" % (sK, sK + 1))
e("s_add_u32 s36, s%d, s12\ns_addc_u32 s37, s%d, 0\ns_mov_b32 s38, 0x200000\ns_mov_b32 s39, 0x20000" % (sV, sV + 1))

DI, LAK, LAV, DT = P["DI"], P["LAK"], P["LAV"], P["DT"]
class St:
    def __init__(self):
        self.ops = 0
        self.done = 0
        self.loads = 0
        self.opof = {}
        self.freed = 0
        self.use_level = False
        self.di0 = P.get('DI0', 0)
lbl = [0]
st = St()
NUNITS = 32 + NS + (2 if POOL else 0)
def wait_ops(x):
    if st.ops - st.done > x:
        e("s_waitcnt vmcnt(%d)" % x)
        st.done = st.ops - x
def wait_op(idx):
    if st.done <= idx:
        wait_ops(st.ops - 1 - idx)
def issue_load(di=None, dynsoff=None):
    n, jj = st.loads // 4, st.loads % 4
    di = (st.di0 if st.di0 else DI) if di is None else di
    assert n < st.freed + 8 and n < NUNITS
    if P["RANK"] and st.use_level and st.ops - st.done > di - 1 - P["XLO"]:
        lbl[0] += 1
        k = lbl[0]
        e("s_cmp_lg_u32 s55, 0\ns_cbranch_scc1 L_lv%da\ns_waitcnt vmcnt(%d)\nL_lv%da:" % (k, di - 1 - P["XLO"], k))
        e("s_cmp_eq_u32 s55, 2\ns_cbranch_scc1 L_lv%db\ns_waitcnt vmcnt(%d)\nL_lv%db:" % (k, di - 1, k))
        wait_ops(di - 1 + P["XHI"])
    else:
        wait_ops(di - 1)
    if jj == 0:
        e("s_add_u32 m0, s10, %d" % ((n % 8) * 4096))
        if n < 32:
            e("s_add_u32 s14, s11, %d" % (n * 16384))
        elif n < 32 + NS:
            e("s_add_u32 s14, s59, %d" % ((n - 32) * 16384))
        else:
            assert dynsoff is not None
            e("s_mov_b32 s14, %s" % dynsoff)
    if n < 32:
        e("buffer_load_dwordx4 v%d, s[32:35], s14 offen offset:%d %s lds" % (vKoff[(n & 1) * 4 + jj], jj * 1024, kflags))
    else:
        e("buffer_load_dwordx4 v%d, s[36:39], s14 offen offset:%d %s lds" % (vVoff[jj], jj * 1024, vflags))
    st.opof[st.loads] = st.ops
    st.ops += 1; st.loads += 1
    if P.get("trace", 0) and jj == 3 and n < 64:
        e("s_memrealtime s[84:85]\ns_waitcnt lgkmcnt(0)\nv_writelane_b32 v0, s84, %d" % n)
def pump_until(nunits, di=None):
    nunits = min(nunits, 32 + NS, st.freed + 8)
    while st.loads < 4 * nunits:
        issue_load(di)
def pump(k, di=None):
    for _ in range(k):
        if st.loads // 4 < min(32 + NS, st.freed + 8):
            issue_load(di)
def need(nunits):
    wait_op(st.opof[4 * nunits - 1])

pump(P.get('DI0', 0) or DI)
e("v_lshrrev_b32 v64, 3, v1\nv_lshrrev_b32 v65, 1, v64\nv_and_b32 v65, 3, v65\nv_lshlrev_b32 v65, 1, v65")
e("v_and_b32 v66, 7, v1\nv_xor_b32 v66, v66, v65\nv_lshlrev_b32 v66, 4, v66\nv_lshl_add_u32 v66, v64, 9, v66")
e("s_lshl_b32 s15, s3, 7\nv_add_u32 v%d, s15, v66" % vVoff[0])
for jj in range(1, 4):
    e("v_add_u32 v%d, %d, v%d" % (vVoff[jj], jj * 3072, vVoff[0]))
e("v_and_b32 v64, 15, v1             ; n\nv_lshrrev_b32 v65, 4, v1          ; g")
e("v_xor_b32 v66, v64, v65\nv_lshlrev_b32 v66, 4, v66\nv_lshl_add_u32 v66, v64, 9, v66\nv_add_u32 v%d, s10, v66" % vKrd[0])
for i in range(1, 8):
    e("v_xor_b32 v%d, %d, v%d" % (vKrd[i], i << 6, vKrd[0]))
e("v_and_b32 v66, 1, v65\nv_lshrrev_b32 v67, 3, v64\nv_lshl_or_b32 v67, v66, 1, v67")
e("v_lshrrev_b32 v68, 2, v64\nv_lshl_add_u32 v68, v66, 2, v68\nv_lshlrev_b32 v68, 7, v68")
e("v_lshrrev_b32 v69, 1, v65\nv_lshl_add_u32 v68, v69, 11, v68\nv_and_b32 v70, 3, v64\nv_lshl_add_u32 v68, v70, 3, v68\nv_add_u32 v68, s10, v68")
for t in range(4):
    e("v_xor_b32 v71, %d, v67\nv_lshl_add_u32 v%d, v71, 5, v68" % (t, vVrd[t]))
e("v_and_b32 v66, 1, v64             ; head\nv_mul_u32_u24 v72, %d, v66" % HS)
e("v_lshl_add_u32 v%d, v65, 4, v72\nv_add_u32 v%d, %d, v%d" % (vPrd, vPrd, PB, vPrd))
e("s_lshr_b32 s15, s3, 1\ns_lshl_b32 s15, s15, 5\ns_and_b32 s40, s3, 1\ns_lshl_b32 s40, s40, 3\ns_add_u32 s15, s15, s40\ns_add_u32 s15, s15, %d" % PB)
e("v_lshl_add_u32 v%d, v69, 6, v72\nv_and_b32 v73, 1, v65\nv_lshl_add_u32 v%d, v73, 4, v%d\nv_add_u32 v%d, s15, v%d" % (vPwr, vPwr, vPwr, vPwr, vPwr))
e("v_lshlrev_b32 v%d, 9, v66\nv_lshl_add_u32 v%d, v65, 4, v%d\nv_add_u32 v%d, %d, v%d" % (vQrd, vQrd, vQrd, vQrd, QB, vQrd))
e("v_lshlrev_b32 v%d, 6, v66\nv_add_u32 v%d, %d, v%d" % (vMrd, vMrd, MAXX, vMrd))
e("s_lshl_b32 s15, s3, 4\nv_lshl_add_u32 v%d, v65, 2, v%d\nv_add_u32 v%d, s15, v%d" % (vMwr, vMrd, vMwr, vMwr))

HOLDN = P["HOLD"]; B0AT = P["B0AT"]
pump_until(8)
if B0AT == 0:
    e("s_barrier")
for T in range(HOLDN):
    need(2 * T + 2)
    for i in range(8):
        r = HOLDR + 32 * T + 4 * i
        e("ds_read_b128 v[%d:%d], v%d offset:%d" % (r, r + 3, vKrd[i], (T % 4) * 8192))
    e("s_waitcnt lgkmcnt(0)")
    st.freed = 2 * T + 2
    pump_until(st.freed + 8)
    if B0AT == T + 1:
        e("s_barrier")
stamp(1)
st.di0 = P.get("DI1", 0)
e("s_barrier")
stamp(2)
for i in range(8):
    e("ds_read_b128 v[%d:%d], v%d offset:%d" % (qB + 4 * i, qB + 4 * i + 3, vQrd, i * 64))
e("v_mov_b32 v%d, %d\nds_read_b32 v%d, v%d\ns_waitcnt lgkmcnt(0)\nv_readfirstlane_b32 s9, v%d" % (vT3, TAGL, vT3, vT3, vT3))

def mfma16(d, a, b, c):
    e("v_mfma_f32_16x16x32_bf16 v[%d:%d], v[%d:%d], v[%d:%d], %s" % (d, d + 3, a, a + 3, b, b + 3, "0" if c is None else "v[%d:%d]" % (c, c + 3)))
def ktile(T, from_regs):
    e("; K tile %d" % T)
    S = Sreg + 4 * T
    if from_regs:
        for i in range(8):
            mfma16(S, HOLDR + 32 * T + 4 * i, qB + 4 * i, None if i == 0 else S)
        return
    nd = 2 * T + 2
    pump_until(nd + LAK)
    need(nd)
    for i in range(8):
        e("ds_read_b128 v[%d:%d], v%d offset:%d" % (AregK + 4 * i, AregK + 4 * i + 3, vKrd[i], (T % 4) * 8192))
    for i in range(8):
        e("s_waitcnt lgkmcnt(%d)" % (7 - i))
        mfma16(S, AregK + 4 * i, qB + 4 * i, None if i == 0 else S)
    st.freed = nd
    if T == HOLDN:
        pump(DI)
if HOLDN == 4:
    order = [(0, True)] + [(T, False) for T in range(4, 8)] + [(1, True), (2, True), (3, True)] + [(T, False) for T in range(8, 16)]
    AregK = HOLDR
else:
    order = [(T, False) for T in range(HOLDN, HOLDN + 4)] + [(T, True) for T in range(HOLDN)] + [(T, False) for T in range(HOLDN + 4, 16)]
    AregK = HOLDR + 32 * HOLDN
def read_level(k):
    e("v_mov_b32 v%d, %d\nds_read_b32 v%d, v%d\ns_waitcnt lgkmcnt(0)\nv_readfirstlane_b32 s55, v%d" % (vT3, LVL + 4 * k, vT3, vT3, vT3))
    st.use_level = True
for idx, (T, fr) in enumerate(order):
    if HOLDN and 2 <= idx < HOLDN + 4:
        pump(P["PBL"])
    if P["RANK"] and idx == P["RK1"]:
        read_level(0)
    ktile(T, fr)
stamp(3)
st.di0 = 0
e("; softmax")
pump(1, DT)
e("s_nop 7")
e("v_max3_f32 v%d, v%d, v%d, v%d" % (vM, Sreg, Sreg + 1, Sreg + 2))
i = 3; cnt = 0
while i < 64:
    if i + 1 < 64:
        e("v_max3_f32 v%d, v%d, v%d, v%d" % (vM, vM, Sreg + i, Sreg + i + 1)); i += 2
    else:
        e("v_max_f32 v%d, v%d, v%d" % (vM, vM, Sreg + i)); i += 1
    cnt += 1
    if P["PMAX"] and cnt % P["PMAX"] == 0:
        pump(1, DT)
e("s_mov_b32 exec_lo, 0x00030003\ns_mov_b32 exec_hi, 0x00030003")
e("ds_write_b32 v%d, v%d" % (vMwr, vM))
e("s_mov_b64 exec, -1")
pump(P["PB2"], DT)
e("s_waitcnt lgkmcnt(0)")
e("s_barrier")
for i in range(4):
    e("ds_read_b128 v[%d:%d], v%d offset:%d" % (vU + 4 * i, vU + 4 * i + 3, vMrd, 16 * i))
e("s_waitcnt lgkmcnt(0)")
e("v_max3_f32 v%d, v%d, v%d, v%d" % (vM, vU, vU + 1, vU + 2))
for i in range(3, 15, 2):
    e("v_max3_f32 v%d, v%d, v%d, v%d" % (vM, vM, vU + i, vU + i + 1))
e("v_max_f32 v%d, v%d, v%d" % (vM, vM, vU + 15))
e("s_mov_b32 s15, 0x%08x" % CEXP)
e("v_mul_f32 v%d, s15, v%d" % (vMc, vM))
e("v_mov_b32 v%d, 0\nv_mov_b32 v%d, 0" % (vL, vL + 1))
def fold(p0):
    e("v_add_f32 v%d, v%d, v%d\nv_add_f32 v%d, v%d, v%d" % (vL, vL, p0, vL + 1, vL + 1, p0 + 1))
    e("v_add_f32 v%d, v%d, v%d\nv_add_f32 v%d, v%d, v%d" % (vL, vL, p0 + 2, vL + 1, vL + 1, p0 + 3))
    e("v_cvt_pk_bf16_f32 v%d, v%d, v%d\nv_cvt_pk_bf16_f32 v%d, v%d, v%d" % (p0, p0, p0 + 1, p0 + 1, p0 + 2, p0 + 3))
for T in range(16):
    s0 = Sreg + 4 * T
    for r in range(4):
        e("v_fma_f32 v%d, v%d, s15, -v%d" % (s0 + r, s0 + r, vMc))
    for r in range(4):
        e("v_exp_f32 v%d, v%d" % (s0 + r, s0 + r))
    if T % P["PEVERY"] == P["PEVERY"] - 1:
        pump(1, DT)
    if T > 0:
        fold(Sreg + 4 * (T - 1))
e("s_nop 0")
fold(Sreg + 60)
e("v_add_f32 v%d, v%d, v%d" % (vL, vL, vL + 1))
e("s_mov_b32 exec_lo, 0x00030003\ns_mov_b32 exec_hi, 0x00030003")
for T in range(16):
    e("ds_write_b64 v%d, v[%d:%d] offset:%d" % (vPwr, Sreg + 4 * T, Sreg + 4 * T + 1, T * 128))
e("ds_write_b32 v%d, v%d offset:%d" % (vMwr, vL, LSUM - MAXX))
e("s_mov_b64 exec, -1")
for t in range(16):
    e("v_mov_b32 v%d, 0" % (acc + t))
if POOL:
    e("s_lshl_b32 s12, s8, 7\ns_add_u32 s12, s12, %d\nv_mov_b32 v%d, s12\nv_mov_b32 v%d, 1\nv_mov_b32 v%d, %d" % (WS_CNT, vCnt, vOne, vTk, TKB))
    e("v_add_u32 v%d, %d, v%d" % (vPP, PPB - PB, vPrd))
pump(P["PB2"], DT)
e("s_waitcnt lgkmcnt(0)")
e("s_barrier")
stamp(4)

def vunit_compute(paddr, poff, vaddrs, slot):
    e("ds_read_b128 v[%d:%d], v%d offset:%d" % (Pa, Pa + 3, paddr, poff))
    for t in range(4):
        e("ds_read_b64_tr_b16 v[%d:%d], v%d offset:%d" % (Vb + 4 * t, Vb + 4 * t + 1, vaddrs[t], slot))
        e("ds_read_b64_tr_b16 v[%d:%d], v%d offset:%d" % (Vb + 4 * t + 2, Vb + 4 * t + 3, vaddrs[t], slot + 1024))
    for t in range(4):
        e("s_waitcnt lgkmcnt(%d)" % (6 - 2 * t))
        mfma16(acc + 4 * t, Pa, Vb + 4 * t, acc + 4 * t)
def vunit(u):
    n = 32 + u
    e("; V unit %d" % u)
    if P["RANK"] and u == P["RK2"]:
        read_level(1)
    pump_until(n + 1 + LAV)
    need(n + 1)
    vunit_compute(vPrd, u * 64, vVrd, (n % 8) * 4096)
    st.freed = n + 1
    if u in (7, 15) or (u == 23 and not POOL):
        stamp(7 + (u - 7) // 8)

sI, sSo, sPo0, sPo1, sPo2, sV0, sV1, sTk = 60, 61, 62, 63, 88, 89, 90, 91
def decode(tk, po, valid):
    e("s_and_b32 s12, %s, 3\ns_lshr_b32 s13, %s, 2" % (tk, tk))
    e("s_lshl_b32 s%d, s12, 3\ns_add_u32 s%d, s%d, s13\ns_lshl_b32 s%d, s%d, 6" % (po, po, po, po, po))
    e("s_lshl_b32 s12, s12, 19\ns_lshl_b32 s13, s13, 14\ns_add_u32 s12, s12, s13\ns_add_u32 s12, s12, %d" % (NS * 16384))
    e("s_cmp_lt_u32 %s, %d\ns_cselect_b32 s%d, s12, 0x7fff0000" % (tk, 4 * NP, sSo))
    if valid is not None:
        e("s_cselect_b32 s%d, 1, 0" % valid)
def get_ticket_lds(dyn):
    lbl[0] += 1
    k = lbl[0]
    e("s_mov_b32 s15, 0\nL_tk%d:" % k)
    e("ds_read_b32 v%d, v%d%s\ns_waitcnt lgkmcnt(0)\nv_readfirstlane_b32 s%d, v%d" % (vAd + 5 - 5 + 0, vTk, "" if dyn is None else " offset:%d" % (4 * dyn), sTk, vAd))
    spin_guard("s15", "L_tkd%d" % k)
    e("s_cmp_eq_u32 s%d, -1\ns_cbranch_scc1 L_tk%d\nL_tkd%d:" % (sTk, k, k))
def dyn_compute(po):
    e("s_and_b32 s12, s%d, 7\ns_lshl_b32 s12, s12, 12" % sI)
    for t in range(4):
        e("v_add_u32 v%d, s12, v%d" % (vAd + t, vVrd[t]))
    e("v_add_u32 v%d, s%d, v%d" % (vAd + 4, po, vPP))
    vunit_compute(vAd + 4, 0, [vAd + t for t in range(4)], 0)
def dyn_loads():
    e("s_add_u32 s12, s%d, 2\ns_and_b32 s12, s12, 7\ns_lshl_b32 s12, s12, 12\ns_add_u32 m0, s10, s12\ns_mov_b32 s14, s%d" % (sI, sSo))
    for jj in range(4):
        if P.get("DPACE", 0):
            e("s_waitcnt vmcnt(%d)" % (P["DPACE"] - 1))
        e("buffer_load_dwordx4 v%d, s[36:39], s14 offen offset:%d %s lds" % (vVoff[jj], jj * 1024, vflags))
def rescale_acc():
    e("; switch from own scale to the pair's scale")
    e("v_mov_b32 v%d, %d\nds_read_b64 v[%d:%d], v%d\ns_waitcnt lgkmcnt(0)\ns_nop 4" % (vAd, FME, vU, vU + 1, vAd))
    for t in range(4):
        e("v_mul_f32 v%d, v%d, v%d\nv_mul_f32 v%d, v%d, v%d" % (acc + 4 * t, acc + 4 * t, vU, acc + 4 * t + 1, acc + 4 * t + 1, vU + 1))
    e("s_nop 1")

if not POOL:
    for u in range(32):
        if u == P["B3A"]:
            e("s_barrier")
        vunit(u)
else:
    UA = NS - 6
    assert P["B3B"] < UA or P["B3B"] >= NS
    for u in range(UA):
        if u == P["B3B"]:
            e("s_barrier")
        if u == P["B3A"]:
            e("s_barrier")
        vunit(u)
    e("s_cmp_lg_u32 s3, 0\ns_cbranch_scc1 L_vfollow")
    snap = copy.deepcopy(st)
    for lead in (True, False):
        if not lead:
            st = snap
            e("L_vfollow:")
        tag = "a" if lead else "b"
        aop = {}
        for u in range(UA, NS):
            n = 32 + u
            e("; V unit %d (%s)" % (u, "leader" if lead else "follower"))
            k = u - UA
            if lead and k < 4:
                e("s_mov_b64 exec, 1\nglobal_atomic_add v%d, v%d, v%d, s[%d:%d] sc0 sc1\ns_mov_b64 exec, -1" % (vA[k], vCnt, vOne, sWS, sWS + 1))
                aop[k] = st.ops; st.ops += 1
            pump_until(n + 1 + LAV)
            kk = u - (NS - 2)
            if kk >= 0:
                if lead:
                    wait_op(aop[kk])
                    e("v_readfirstlane_b32 s%d, v%d\ns_mov_b64 exec, 1\nds_write_b32 v%d, v%d offset:%d\ns_mov_b64 exec, -1" % (sTk, vA[kk], vTk, vA[kk], 4 * kk))
                else:
                    get_ticket_lds(kk)
                decode("s%d" % sTk, sPo0 if kk == 0 else sPo1, sV0 if kk == 0 else sV1)
                for jj in range(4):
                    issue_load(None, "s%d" % sSo)
            need(n + 1)
            vunit_compute(vPrd, u * 64, vVrd, (n % 8) * 4096)
            st.freed = n + 1
        stamp(9)
        if P["B3B"] >= NS:
            e("s_barrier")
        rescale_acc()
        e("s_mov_b32 s%d, 0\nv_add_u32 v%d, 8, v%d" % (sI, vTk, vTk))
        e("s_waitcnt vmcnt(4)")
        e("L_pool_%s:" % tag)
        for par in range(2 if lead else 1):
            if lead:
                e("s_waitcnt vmcnt(5)")
                va = vA[2 + par]
                e("v_readfirstlane_b32 s%d, v%d\ns_mov_b64 exec, 1\nds_write_b32 v%d, v%d\ns_mov_b64 exec, -1" % (sTk, va, vTk, va))
            else:
                e("s_waitcnt vmcnt(4)")
                get_ticket_lds(None)
            e("s_cmp_ge_u32 s%d, %d\ns_cbranch_scc1 L_drain_%s" % (sTk, 4 * NP, tag))
            if lead:
                e("s_mov_b64 exec, 1\nglobal_atomic_add v%d, v%d, v%d, s[%d:%d] sc0 sc1\ns_mov_b64 exec, -1" % (va, vCnt, vOne, sWS, sWS + 1))
            decode("s%d" % sTk, sPo2, None)
            dyn_loads()
            dyn_compute(sPo0)
            e("s_mov_b32 s%d, s%d\ns_mov_b32 s%d, s%d\ns_add_u32 s%d, s%d, 1\nv_add_u32 v%d, 4, v%d" % (sPo0, sPo1, sPo1, sPo2, sI, sI, vTk, vTk))
            e("s_mov_b32 s%d, 1\ns_mov_b32 s%d, 1" % (sV0, sV1))
        e("s_branch L_pool_%s" % tag)
        e("L_drain_%s:" % tag)
        e("s_cmp_eq_u32 s%d, 0\ns_cbranch_scc1 L_dr1_%s" % (sV0, tag))
        dyn_compute(sPo0)
        e("L_dr1_%s:" % tag)
        e("s_waitcnt vmcnt(0)")
        e("s_cmp_eq_u32 s%d, 0\ns_cbranch_scc1 L_dr2_%s" % (sV1, tag))
        e("s_add_u32 s%d, s%d, 1" % (sI, sI))
        dyn_compute(sPo1)
        e("L_dr2_%s:" % tag)
        if lead:
            e("s_branch L_vdone")
    e("L_vdone:")
stamp(5)
e("s_lshl_b32 s12, s8, 2\ns_add_u32 s12, s12, s3\ns_lshl_b32 s12, s12, 2\ns_add_u32 s12, s12, s7\ns_lshl_b32 s12, s12, 10\ns_add_u32 s12, s12, %d" % WS_OP)
e("v_lshlrev_b32 v%d, 4, v1\nv_add_u32 v%d, s12, v%d" % (vQrd, vQrd, vQrd))
e("s_mov_b32 s40, 0xffff0000\ns_mov_b32 s41, 0\ns_mov_b32 s42, 0\ns_mov_b32 s43, 0x0000ffff\ns_mov_b32 s44, 0\ns_mov_b32 s45, 0xffff0000")
e("v_mov_b32 v%d, s9\nv_mov_b32 v%d, s9" % (vU + 1, vU + 3))
e("s_nop 3")
for (m, a0) in (("s[40:41]", 4), ("s[42:43]", 8), ("s[44:45]", 12)):
    src0 = (acc + 0, acc + 1) if a0 == 4 else (vU, vU + 2)
    e("v_cndmask_b32 v%d, v%d, v%d, %s" % (vU, src0[0], acc + a0, m))
    e("v_cndmask_b32 v%d, v%d, v%d, %s" % (vU + 2, src0[1], acc + a0 + 1, m))
e("global_store_dwordx4 v%d, v[%d:%d], s[%d:%d] sc1" % (vQrd, vU, vU + 3, sWS, sWS + 1))
e("s_barrier")
if P.get("trace", 0):
    e("s_lshl_b32 s85, s2, 2\ns_add_u32 s85, s85, s3\ns_lshl_b32 s85, s85, 8\ns_add_u32 s85, s85, %d" % (WS_STAMP + 0x100000))
    e("v_lshlrev_b32 v2, 2, v1\nv_add_u32 v2, s85, v2\nglobal_store_dword v2, v0, s[%d:%d]\ns_waitcnt vmcnt(0)" % (sWS, sWS + 1))
stamp(6)
stamp_flush(10)
e("s_endpgm")

e("L_helper:")
e("s_sub_u32 s3, s3, 4              ; hw")
e("v_and_b32 v2, 15, v1             ; n\nv_lshrrev_b32 v3, 4, v1          ; g")
e("s_waitcnt lgkmcnt(0)")
e("s_cmp_lg_u32 s3, 0")
e("s_cbranch_scc0 L_w4")
if B0AT >= 0:
    e("s_barrier            ; B0")
e("s_branch L_h_b1")
e("L_w4:")
if P["prio"]:
    e("s_setprio 3")
e("s_load_dword s9, s[%d:%d], %d     ; epoch word" % (sWS, sWS + 1, WS_E))
e("s_mov_b32 s32, s%d\ns_mov_b32 s33, s%d\ns_mov_b32 s34, %d\ns_mov_b32 s35, 0x20000" % (sWQ, sWQ + 1, 448 * 8192))
e("s_mov_b32 s36, s%d\ns_mov_b32 s37, s%d\ns_mov_b32 s38, %d\ns_mov_b32 s39, 0x20000" % (sX, sX + 1, 8 * 896))
QMODE = P['QMODE']
if QMODE == 2:
    e("s_and_b32 s57, s4, 7              ; cl\ns_lshr_b32 s58, s4, 3             ; kq")
    e("s_lshl_b32 s10, s58, 7\ns_mul_i32 s11, s58, 96\ns_add_u32 s11, s11, 64\ns_cmp_lt_u32 s58, 2\ns_cselect_b32 s10, s10, s11")
    e("s_lshl_b32 s11, s10, 13\ns_lshl_b32 s12, s56, 10\ns_add_u32 s11, s11, s12\ns_lshl_b32 s12, s57, 7\ns_add_u32 s11, s11, s12")
    e("v_lshrrev_b32 v4, 3, v1\nv_lshlrev_b32 v4, 13, v4\nv_and_b32 v5, 7, v1\nv_lshl_add_u32 v4, v5, 4, v4")
    XB = 8
    e("v_and_b32 v5, 7, v2\nv_mul_u32_u24 v5, 896, v5\nv_lshl_add_u32 v5, v3, 4, v5")
    e("s_lshl_b32 s10, s10, 1")
    def wq_loads(a, b):
        for m in range(a, b):
            e("s_mov_b32 m0, %d\ns_add_u32 s12, s11, %d" % (WQS + m * 1024, m * 8 * 8192))
            e("buffer_load_dwordx4 v4, s[32:35], s12 offen %s lds" % wqflags)
    def x_load(ks):
        e("buffer_load_dwordx4 v[%d:%d], v5, s[36:39], s10 offen offset:%d %s" % (XB + 4 * ks, XB + 4 * ks + 3, ks * 64, xflags))
    wq_loads(0, 12)
    for ks in range(3):
        x_load(ks)
    e("s_cmp_lt_u32 s58, 2\ns_cbranch_scc0 L_q3")
    wq_loads(12, 16); x_load(3)
    e("L_q3:")
    if POOL:
        e("s_cmp_ge_u32 s4, 8\ns_cbranch_scc1 L_nocnt")
        e("s_lshl_b32 s12, s4, 3\ns_add_u32 s12, s12, s56\ns_lshl_b32 s12, s12, 7\ns_add_u32 s12, s12, %d\nv_mov_b32 v6, s12\nv_mov_b32 v7, 0" % WS_CNT)
        e("s_mov_b64 exec, 1\nglobal_store_dword v6, v7, s[%d:%d] sc1\ns_mov_b64 exec, -1" % (sWS, sWS + 1))
        e("L_nocnt:")
    e("v_lshlrev_b32 v6, 10, v3\nv_lshrrev_b32 v7, 2, v2\nv_lshl_add_u32 v6, v7, 7, v6\nv_and_b32 v7, 3, v2\nv_lshl_add_u32 v6, v7, 3, v6\nv_add_u32 v6, %d, v6" % WQS)
    e("v_and_b32 v7, 7, v2\nv_lshlrev_b32 v7, 17, v7\nv_lshl_add_u32 v7, v3, 5, v7\nv_lshrrev_b32 v24, 3, v2\nv_lshl_add_u32 v7, v24, 4, v7")
    e("s_lshl_b32 s11, s56, 2\ns_add_u32 s11, s11, s58\ns_lshl_b32 s11, s11, 12\ns_lshl_b32 s12, s57, 9\ns_add_u32 s11, s11, s12\ns_add_u32 s11, s11, %d\nv_add_u32 v7, s11, v7" % WS_Q)
    e("s_waitcnt vmcnt(0) lgkmcnt(0)")
    e("s_add_u32 s9, s9, 0x%08x        ; tag of this launch" % TAGC)
    WA = 32; QA = 64
    def q_reads(ks):
        b0 = WA + 16 * (ks & 1)
        for ct in range(4):
            e("ds_read_b64_tr_b16 v[%d:%d], v6 offset:%d" % (b0 + 4 * ct, b0 + 4 * ct + 1, ks * 4096 + ct * 32))
            e("ds_read_b64_tr_b16 v[%d:%d], v6 offset:%d" % (b0 + 4 * ct + 2, b0 + 4 * ct + 3, ks * 4096 + 512 + ct * 32))
    def q_mfma(ks):
        b0 = WA + 16 * (ks & 1)
        for ct in range(4):
            mfma16(QA + 4 * ct, b0 + 4 * ct, XB + 4 * ks, None if ks == 0 else QA + 4 * ct)
    q_reads(0); q_reads(1)
    e("s_waitcnt lgkmcnt(8)"); q_mfma(0)
    q_reads(2)
    e("s_waitcnt lgkmcnt(8)"); q_mfma(1)
    e("s_cmp_lt_u32 s58, 2\ns_cbranch_scc0 L_q3b")
    q_reads(3)
    e("s_waitcnt lgkmcnt(8)"); q_mfma(2)
    e("s_waitcnt lgkmcnt(0)"); q_mfma(3)
    e("s_branch L_q3c\nL_q3b:")
    e("s_waitcnt lgkmcnt(0)"); q_mfma(2)
    e("L_q3c:")
    QT = 96
    e("s_mov_b32 s40, 0xff00ff00\ns_mov_b32 s41, 0xff00ff00")
    for ct in range(4):
        e("v_mov_b32 v%d, s9\nv_mov_b32 v%d, s9" % (QT + 4 * ct + 1, QT + 4 * ct + 3))
    e("s_nop 1")
    for ct in range(4):
        e("v_cndmask_b32 v%d, v%d, v%d, s[40:41]" % (QT + 4 * ct, QA + 4 * ct, QA + 4 * ct + 2))
        e("v_cndmask_b32 v%d, v%d, v%d, s[40:41]" % (QT + 4 * ct + 2, QA + 4 * ct + 1, QA + 4 * ct + 3))
    for ct in range(4):
        e("global_store_dwordx4 v7, v[%d:%d], s[%d:%d] offset:%d sc1" % (QT + 4 * ct, QT + 4 * ct + 3, sWS, sWS + 1, ct * 128))
    stamp(1)
    if POOL:
        e("v_lshlrev_b32 v12, 2, v1\nv_add_u32 v12, %d, v12\nv_mov_b32 v13, -1\ns_mov_b32 exec_lo, -1\ns_mov_b32 exec_hi, 0x0000ffff" % TKB)
        e("ds_write_b32 v12, v13\ns_mov_b64 exec, -1")
    e("s_lshl_b32 s11, s8, 14\ns_add_u32 s11, s11, %d" % WS_Q)
    e("v_lshlrev_b32 v8, 4, v1\nv_add_u32 v8, s11, v8")
    for kq in range(1, 4):
        e("v_add_u32 v%d, %d, v8" % (8 + kq, kq * 4096))
    e("s_mov_b32 s13, 0")
    GQ = 128
    if B0AT >= 0:
        e("s_barrier            ; B0")
    e("L_pollq:")
    for kq in range(4):
        for i in range(4):
            r = GQ + 16 * kq + 4 * i
            e("global_load_dwordx4 v[%d:%d], v%d, s[%d:%d] offset:%d %s" % (r, r + 3, 8 + kq, sWS, sWS + 1, i * 1024, fl("gflags")))
    e("s_waitcnt vmcnt(0)")
    tags_ok([GQ + 4 * k + o for k in range(16) for o in (1, 3)], "L_pollq_done", 12, 13)
    spin_guard("s13", "L_pollq_done")
    e("s_branch L_pollq")
    e("L_pollq_done:")
    e("v_lshlrev_b32 v7, 2, v1\nv_add_u32 v7, %d, v7" % QB)
    for i in range(4):
        r = GQ + 4 * i
        e("v_add_f32 v%d, v%d, v%d\nv_add_f32 v%d, v%d, v%d" % (r, r, r + 16, r + 2, r + 2, r + 18))
        e("v_add_f32 v%d, v%d, v%d\nv_add_f32 v%d, v%d, v%d" % (r + 32, r + 32, r + 48, r + 34, r + 34, r + 50))
        e("v_add_f32 v%d, v%d, v%d\nv_add_f32 v%d, v%d, v%d" % (r, r, r + 32, r + 2, r + 2, r + 34))
        e("v_cvt_pk_bf16_f32 v%d, v%d, v%d" % (r, r, r + 2))
        e("ds_write_b32 v7, v%d offset:%d" % (r, i * 256))
else:
    assert not POOL
    e("s_lshl_b32 s10, s56, 5\ns_add_u32 s10, s10, s4           ; c")
    e("v_lshrrev_b32 v4, 1, v1\nv_lshlrev_b32 v4, 13, v4\nv_and_b32 v5, 1, v1\nv_lshl_add_u32 v4, v5, 4, v4")
    e("s_lshl_b32 s11, s10, 5\nv_add_u32 v4, s11, v4")
    for ks in range(14):
        e("s_mov_b32 m0, %d\ns_mov_b32 s12, %d" % (WQS + ks * 1024, ks * 262144))
        e("buffer_load_dwordx4 v4, s[32:35], s12 offen %s lds" % wqflags)
    XB = 8
    e("v_and_b32 v5, 7, v2\nv_mul_u32_u24 v5, 896, v5\nv_lshl_add_u32 v5, v3, 4, v5\nv_lshrrev_b32 v6, 3, v2\nv_lshl_add_u32 v5, v6, 6, v5")
    for k2 in range(7):
        e("buffer_load_dwordx4 v[%d:%d], v5, s[36:39], 0 offen offset:%d %s" % (XB + 4 * k2, XB + 4 * k2 + 3, k2 * 128, xflags))
    e("v_lshlrev_b32 v6, 8, v3\nv_lshl_add_u32 v6, v2, 3, v6\nv_add_u32 v6, %d, v6" % WQS)
    e("v_lshlrev_b32 v7, 14, v2\nv_lshl_add_u32 v7, v3, 4, v7")
    e("s_lshl_b32 s11, s10, 6\ns_add_u32 s11, s11, %d\nv_add_u32 v7, s11, v7" % WS_Q)
    e("s_waitcnt vmcnt(0) lgkmcnt(0)")
    e("s_add_u32 s9, s9, 0x%08x        ; tag of this launch" % TAGC)
    WA = 40
    for ks in range(14):
        r = WA + 4 * (ks & 3)
        e("ds_read_b64_tr_b16 v[%d:%d], v6 offset:%d" % (r, r + 1, ks * 1024))
        e("ds_read_b64_tr_b16 v[%d:%d], v6 offset:%d" % (r + 2, r + 3, ks * 1024 + 128))
        if ks >= 2:
            pk = ks - 2
            e("s_waitcnt lgkmcnt(4)")
            mfma16(72 + 4 * (pk & 1), WA + 4 * (pk & 3), XB + 4 * (pk >> 1), None if pk < 2 else 72 + 4 * (pk & 1))
    for pk in (12, 13):
        e("s_waitcnt lgkmcnt(%d)" % (2 if pk == 12 else 0))
        mfma16(72 + 4 * (pk & 1), WA + 4 * (pk & 3), XB + 4 * (pk >> 1), 72 + 4 * (pk & 1))
    e("v_mov_b32 v81, s9\nv_mov_b32 v83, s9\ns_nop 7")
    for r in range(4):
        e("v_add_f32_dpp v%d, v%d, v%d row_ror:8 row_mask:0xf bank_mask:0xf" % (72 + r, 76 + r, 72 + r))
    e("v_cvt_pk_bf16_f32 v80, v72, v73\nv_cvt_pk_bf16_f32 v82, v74, v75")
    e("s_mov_b32 exec_lo, 0x00ff00ff\ns_mov_b32 exec_hi, 0x00ff00ff")
    e("global_store_dwordx4 v7, v[80:83], s[%d:%d] sc1" % (sWS, sWS + 1))
    e("s_mov_b64 exec, -1")
    stamp(1)
    e("s_lshl_b32 s11, s6, 14\ns_lshl_b32 s12, s5, 11\ns_add_u32 s11, s11, s12\ns_add_u32 s11, s11, %d" % WS_Q)
    e("v_lshlrev_b32 v7, 4, v1\nv_add_u32 v7, s11, v7")
    e("s_mov_b32 s13, 0")
    if B0AT >= 0:
        e("s_barrier            ; B0")
    e("L_pollq:")
    e("global_load_dwordx4 v[84:87], v7, s[%d:%d] %s" % (sWS, sWS + 1, fl("gflags")))
    e("global_load_dwordx4 v[88:91], v7, s[%d:%d] offset:1024 %s" % (sWS, sWS + 1, fl("gflags")))
    e("s_waitcnt vmcnt(0)")
    tags_ok([85, 87, 89, 91], "L_pollq_done", 0, 0)
    spin_guard("s13", "L_pollq_done")
    e("s_branch L_pollq")
    e("L_pollq_done:")
    e("v_mov_b32 v85, v86\nv_mov_b32 v89, v90")
    e("v_lshlrev_b32 v7, 3, v1\nv_add_u32 v7, %d, v7" % QB)
    e("ds_write_b64 v7, v[84:85]\nds_write_b64 v7, v[88:89] offset:512")
e("v_mov_b32 v8, %d\nv_mov_b32 v9, s9\nds_write_b32 v8, v9" % TAGL)
if P["RANK"]:
    e("v_mov_b32 v8, %d\nv_mov_b32 v10, 1\nv_mov_b32 v11, 1\nds_write_b64 v8, v[10:11]" % LVL)
e("s_waitcnt lgkmcnt(0)")
if P["prio"]:
    e("s_setprio 0")
e("L_h_b1:")
if DSP == 8:
    e("s_memrealtime s[94:95]\ns_waitcnt lgkmcnt(0)")
stamp(2)
e("s_barrier            ; B1")
if DSP == 2:
    e("s_memrealtime s[94:95]\ns_waitcnt lgkmcnt(0)")

e("v_mov_b32 v8, %d\nds_read_b32 v8, v8\ns_waitcnt lgkmcnt(0)\nv_readfirstlane_b32 s9, v8" % TAGL)
def rank_checkpoint(k):
    lbl[0] += 1
    lab = "L_rk%d" % lbl[0]
    e("s_cmp_lg_u32 s3, 1\ns_cbranch_scc1 %s" % lab)
    e("s_mov_b64 exec, 1\nv_mov_b32 v10, %d\nv_mov_b32 v11, 1\nglobal_atomic_add v12, v10, v11, s[%d:%d] sc0 sc1\ns_waitcnt vmcnt(0)" % (4 * k, sDBG, sDBG + 1))
    e("v_readfirstlane_b32 s12, v12\ns_nop 3\ns_cmp_ge_u32 s12, %d\ns_cselect_b32 s13, 1, 0\ns_cmp_ge_u32 s12, %d\ns_cselect_b32 s13, 2, s13" % (P["TLO"], P["THI"]))
    e("v_mov_b32 v10, %d\nv_mov_b32 v11, s13\nds_write_b32 v10, v11\ns_waitcnt lgkmcnt(0)\ns_mov_b64 exec, -1" % (LVL + 4 * k))
    e("%s:" % lab)
if P["RANK"]:
    rank_checkpoint(0)
e("s_mov_b32 s32, s%d\ns_mov_b32 s33, s%d\ns_mov_b32 s34, %d\ns_mov_b32 s35, 0x20000" % (sWO, sWO + 1, 4096 * 896))
e("v_mul_u32_u24 v47, %d, v3\nv_lshl_add_u32 v47, v2, 4, v47\ns_lshl_b32 s10, s3, 8\nv_add_u32 v47, s10, v47" % (8 * 896))
e("s_cmp_eq_u32 s3, 3\ns_cselect_b32 s12, 0x7fffffff, 0")
e("v_mov_b32 v9, s12\nv_cmp_lt_u32 vcc, 7, v2\ns_nop 1\nv_cndmask_b32 v9, 0, v9, vcc\nv_or_b32 v47, v47, v9")
e("s_lshl_b32 s54, s5, 9\ns_lshl_b32 s11, s7, 6\ns_add_u32 s54, s54, s11\ns_mul_i32 s54, s54, 896")
e("s_mov_b32 s46, 0x05040100\ns_mov_b32 s47, 0x07060302")
RAW = 96; WOH = [128 + 32 * ks for ks in range(4)]
def wo_load(ks):
    rowoff = ((ks >> 1) * 256 + (ks & 1) * 32) * 896
    R = P["worr"]
    for j0 in range(0, 8, R):
        if P["woprio"]:
            e("s_setprio 3")
        for j in range(j0, j0 + R):
            e("s_add_u32 s12, s54, %d" % (rowoff + j * 896))
            e("buffer_load_dwordx4 v[%d:%d], v47, s[32:35], s12 offen %s" % (RAW + 4 * j, RAW + 4 * j + 3, woflags))
        if P["woprio"]:
            e("s_setprio 0")
        e("s_waitcnt vmcnt(0)")
    for t in range(8):
        for p in range(4):
            e("v_perm_b32 v%d, v%d, v%d, %s" % (WOH[ks] + t * 4 + p, RAW + 4 * (2 * p + 1) + (t >> 1), RAW + 4 * (2 * p) + (t >> 1), "s47" if (t & 1) else "s46"))
NPRE = P["wopre"]
for ks in range(NPRE):
    wo_load(ks)
stamp(3)
e("s_barrier            ; B2")
e("s_barrier            ; B3")
if DSP == 3:
    e("s_memrealtime s[94:95]\ns_waitcnt lgkmcnt(0)")

if P["RANK"]:
    rank_checkpoint(1)
e("s_cmp_lg_u32 s3, 0\ns_cbranch_scc1 L_h_wo2")
e("v_and_b32 v4, 1, v2\nv_lshlrev_b32 v4, 6, v4\nv_add_u32 v4, %d, v4" % MAXX)
for i in range(4):
    e("ds_read_b128 v[%d:%d], v4 offset:%d" % (8 + 4 * i, 8 + 4 * i + 3, 16 * i))
for i in range(4):
    e("ds_read_b128 v[%d:%d], v4 offset:%d" % (24 + 4 * i, 24 + 4 * i + 3, LSUM - MAXX + 16 * i))
if POOL:
    e("v_lshrrev_b32 v5, 5, v1\nv_mul_u32_u24 v5, %d, v5\nv_and_b32 v6, 31, v1\nv_lshl_add_u32 v5, v6, 4, v5\nv_add_u32 v5, %d, v5" % (HS, PB + NS * 64))
    e("ds_read_b128 v[56:59], v5")
e("s_waitcnt lgkmcnt(0)")
e("v_max3_f32 v40, v8, v9, v10")
for i in range(3, 15, 2):
    e("v_max3_f32 v40, v40, v%d, v%d" % (8 + i, 8 + i + 1))
e("v_max_f32 v40, v40, v23")
e("v_add_f32 v42, v24, v25")
for i in range(2, 16):
    e("v_add_f32 v42, v42, v%d" % (24 + i))
e("v_mov_b32 v41, s9\nv_mov_b32 v43, s9")
e("s_lshl_b32 s10, s8, 2\ns_add_u32 s10, s10, s7\ns_lshl_b32 s12, s10, 5\ns_add_u32 s12, s12, %d" % WS_ST)
e("v_lshlrev_b32 v5, 4, v1\nv_add_u32 v6, s12, v5")
e("s_mov_b64 exec, 3\nglobal_store_dwordx4 v6, v[40:43], s[%d:%d] sc1\ns_mov_b64 exec, -1" % (sWS, sWS + 1))
if POOL:
    e("v_mov_b32 v60, v56\nv_mov_b32 v61, s9\nv_mov_b32 v62, v57\nv_mov_b32 v63, s9")
    e("v_mov_b32 v64, v58\nv_mov_b32 v65, s9\nv_mov_b32 v66, v59\nv_mov_b32 v67, s9")
    e("s_lshl_b32 s12, s10, 11\ns_add_u32 s12, s12, %d\nv_add_u32 v6, s12, v5" % WS_PP)
    e("global_store_dwordx4 v6, v[60:63], s[%d:%d] sc1\nglobal_store_dwordx4 v6, v[64:67], s[%d:%d] offset:1024 sc1" % (sWS, sWS + 1, sWS, sWS + 1))
N4A = NPRE
if P["B3A"] >= 0:
    for ks in range(NPRE, min(4, NPRE + P["wo4a"])):
        wo_load(ks)
        N4A = ks + 1
    e("s_barrier            ; B3a")
e("s_lshl_b32 s10, s8, 7\ns_add_u32 s10, s10, %d" % WS_ST)
e("v_and_b32 v5, 1, v1\nv_lshlrev_b32 v5, 4, v5\nv_add_u32 v5, s10, v5")
e("s_mov_b32 s13, 0")
e("L_polls:")
for s_ in range(4):
    e("global_load_dwordx4 v[%d:%d], v5, s[%d:%d] offset:%d sc1" % (8 + 4 * s_, 8 + 4 * s_ + 3, sWS, sWS + 1, 32 * s_))
e("s_waitcnt vmcnt(0)")
tags_ok([8 + 4 * k + o for k in range(4) for o in (1, 3)], "L_polls_done", 0, 0)
spin_guard("s13", "L_polls_done")
e("s_sleep %d\ns_branch L_polls" % P["ssleep"])
e("L_polls_done:")
e("v_max3_f32 v24, v8, v12, v16\nv_max_f32 v24, v24, v20")
e("s_mov_b32 s15, 0x%08x" % CEXP)
for s_ in range(4):
    e("v_sub_f32 v%d, v%d, v24\nv_mul_f32 v%d, s15, v%d" % (26 + s_, 8 + 4 * s_, 26 + s_, 26 + s_))
for s_ in range(4):
    e("v_exp_f32 v%d, v%d" % (26 + s_, 26 + s_))
e("s_nop 0")
e("v_mul_f32 v30, v26, v10\nv_fmac_f32 v30, v27, v14\nv_fmac_f32 v30, v28, v18\nv_fmac_f32 v30, v29, v22")
e("v_rcp_f32 v31, v30\ns_nop 0\nv_fma_f32 v32, -v30, v31, 2.0\nv_mul_f32 v31, v31, v32")
if not POOL:
    for s_ in range(4):
        e("v_mul_f32 v%d, v%d, v31" % (26 + s_, 26 + s_))
    e("s_nop 1")
    for s_ in range(4):
        e("v_mov_b32_dpp v%d, v%d quad_perm:[0,0,0,0] row_mask:0xf bank_mask:0xf" % (48 + s_, 26 + s_))
        e("v_mov_b32_dpp v%d, v%d quad_perm:[1,1,1,1] row_mask:0xf bank_mask:0xf" % (52 + s_, 26 + s_))
else:
    e("s_nop 1")
    e("v_mov_b32_dpp v48, v31 quad_perm:[0,0,0,0] row_mask:0xf bank_mask:0xf\nv_mov_b32_dpp v52, v31 quad_perm:[1,1,1,1] row_mask:0xf bank_mask:0xf")
    e("v_mov_b32 v33, v26")
    for k in range(1, 4):
        e("s_cmp_eq_u32 s7, %d\ns_cselect_b64 s[40:41], -1, 0\nv_cndmask_b32 v33, v33, v%d, s[40:41]" % (k, 26 + k))
    e("v_lshlrev_b32 v34, 2, v1\nv_add_u32 v34, %d, v34\ns_mov_b64 exec, 3\nds_write_b32 v34, v33\ns_mov_b64 exec, -1" % FME)
    for o in range(4):
        e("v_mov_b32_dpp v%d, v%d quad_perm:[0,0,0,0] row_mask:0xf bank_mask:0xf" % (36 + o, 26 + o))
        e("v_mov_b32_dpp v%d, v%d quad_perm:[1,1,1,1] row_mask:0xf bank_mask:0xf" % (40 + o, 26 + o))
    e("s_mov_b32 s40, 0\ns_mov_b32 s41, -1")
    for o in range(4):
        e("v_cndmask_b32 v%d, v%d, v%d, s[40:41]" % (36 + o, 36 + o, 40 + o))
    e("s_lshl_b32 s10, s8, 13\ns_add_u32 s10, s10, %d\nv_lshlrev_b32 v5, 4, v1\nv_add_u32 v5, s10, v5\nv_add_u32 v6, 4096, v5" % WS_PP)
    e("s_mov_b32 s13, 0")
    GP = 56
    e("L_pollp:")
    for o in range(4):
        for i in range(2):
            r = GP + 8 * o + 4 * i
            e("global_load_dwordx4 v[%d:%d], v%d, s[%d:%d] offset:%d sc1" % (r, r + 3, 5 if o < 2 else 6, sWS, sWS + 1, (o & 1) * 2048 + i * 1024))
    e("s_waitcnt vmcnt(0)")
    tags_ok([GP + 4 * k + o for k in range(8) for o in (1, 3)], "L_pollp_done", 12, 13)
    spin_guard("s13", "L_pollp_done")
    e("s_sleep %d\ns_branch L_pollp" % P["ssleep"])
    e("L_pollp_done:")
    e("v_lshrrev_b32 v7, 5, v1\nv_mul_u32_u24 v7, %d, v7\nv_and_b32 v8, 31, v1\nv_lshl_add_u32 v7, v8, 4, v7\nv_add_u32 v7, %d, v7" % (HS, PPB))
    for o in range(4):
        for i in range(2):
            r = GP + 8 * o + 4 * i
            for d in (0, 2):
                e("v_lshlrev_b32 v8, 16, v%d\nv_and_b32 v9, 0xffff0000, v%d" % (r + d, r + d))
                e("v_mul_f32 v8, v8, v%d\nv_mul_f32 v9, v9, v%d" % (36 + o, 36 + o))
                e("v_cvt_pk_bf16_f32 v%d, v8, v9" % (r + d // 2))
            e("ds_write_b64 v7, v[%d:%d] offset:%d" % (r, r + 1, o * 512 + i * 8))
    e("s_waitcnt lgkmcnt(0)")
    e("s_barrier            ; B3b")
for ks in range(N4A, 4):
    wo_load(ks)
e("s_branch L_h_b4")
e("L_h_wo2:")
for ks in range(NPRE, 4):
    wo_load(ks)
if P["B3A"] >= 0:
    e("s_barrier            ; B3a")
if POOL:
    e("s_barrier            ; B3b")
e("L_h_b4:")
stamp(4)
e("s_lshl_b32 s10, s8, 2\ns_add_u32 s10, s10, s7\ns_lshl_b32 s10, s10, 12\ns_add_u32 s10, s10, %d" % WS_OP)
e("v_lshlrev_b32 v5, 4, v1\nv_add_u32 v5, s10, v5")
e("v_lshlrev_b32 v6, 1, v1\nv_add_u32 v6, %d, v6" % OST)
e("v_lshlrev_b32 v7, 4, v3\nv_add_u32 v7, %d, v7" % OST)
e("s_lshl_b32 s11, s5, 2\ns_add_u32 s11, s11, s7          ; p")
e("s_mul_i32 s12, s6, 28\ns_lshl_b32 s13, s3, 3\ns_add_u32 s12, s12, s13\ns_lshl_b32 s12, s12, 5\ns_add_u32 s12, s12, s11\ns_lshl_b32 s12, s12, 7\ns_add_u32 s12, s12, %d" % WS_OUT)
e("v_lshrrev_b32 v44, 1, v2\nv_lshlrev_b32 v44, 12, v44")
e("v_and_b32 v45, 1, v2\nv_lshl_add_u32 v45, v45, 2, v3\nv_lshl_add_u32 v44, v45, 4, v44\nv_add_u32 v44, s12, v44")
e("s_mul_i32 s12, s6, 28\ns_add_u32 s12, s12, s11\ns_lshl_b32 s12, s12, 12\ns_add_u32 s12, s12, %d" % WS_OUT)
e("v_lshlrev_b32 v46, 4, v1\nv_add_u32 v46, s12, v46")
e("s_mov_b32 s48, 0xffff0000\ns_mov_b32 s49, 0\ns_mov_b32 s50, 0\ns_mov_b32 s51, 0x0000ffff\ns_mov_b32 s52, 0\ns_mov_b32 s53, 0xffff0000")
e("s_barrier            ; B4")
if DSP == 4:
    e("s_memrealtime s[94:95]\ns_waitcnt lgkmcnt(0)")
stamp(5)
e("s_cmp_lg_u32 s3, 0\ns_cbranch_scc1 L_h_b5")
e("s_mov_b32 s13, 0")
e("L_polla:")
for s_ in range(4):
    e("global_load_dwordx4 v[%d:%d], v5, s[%d:%d] offset:%d sc1" % (8 + 4 * s_, 8 + 4 * s_ + 3, sWS, sWS + 1, 1024 * s_))
e("s_waitcnt vmcnt(0)")
tags_ok([8 + 4 * k + o for k in range(4) for o in (1, 3)], "L_polla_done", 0, 0)
spin_guard("s13", "L_polla_done")
if P["asleep"]:
    e("s_sleep %d" % P["asleep"])
e("s_branch L_polla")
e("L_polla_done:")
if POOL:
    e("v_add_f32 v24, v8, v12\nv_add_f32 v25, v10, v14\nv_add_f32 v26, v16, v20\nv_add_f32 v27, v18, v22")
    e("v_add_f32 v24, v24, v26\nv_add_f32 v25, v25, v27\nv_mul_f32 v24, v24, v48\nv_mul_f32 v25, v25, v52")
else:
    e("v_mul_f32 v24, v48, v8\nv_mul_f32 v25, v52, v10")
    for s_ in range(1, 4):
        e("v_fmac_f32 v24, v%d, v%d\nv_fmac_f32 v25, v%d, v%d" % (48 + s_, 8 + 4 * s_, 52 + s_, 10 + 4 * s_))
e("v_cvt_pk_bf16_f32 v24, v24, v25")
e("ds_write_b16 v6, v24\nds_write_b16_d16_hi v6, v24 offset:128")
e("s_waitcnt lgkmcnt(0)")
e("L_h_b5:")
if DSP == 5:
    e("s_memrealtime s[94:95]\ns_waitcnt lgkmcnt(0)")
stamp(6)
e("s_barrier")
for ks in range(4):
    e("ds_read_b128 v[%d:%d], v7 offset:%d" % (8 + 4 * ks, 8 + 4 * ks + 3, ks * 64))
OA = 56
for ks in range(4):
    e("s_waitcnt lgkmcnt(%d)" % (3 - ks))
    for t in range(8):
        mfma16(OA + 4 * t, 8 + 4 * ks, WOH[ks] + t * 4, None if ks == 0 else OA + 4 * t)
e("v_mov_b32 v25, s9\nv_mov_b32 v27, s9")
e("s_nop 7")
e("v_cndmask_b32 v24, v%d, v%d, s[48:49]\nv_cndmask_b32 v26, v%d, v%d, s[48:49]" % (OA, OA + 8, OA + 4, OA + 12))
e("v_cndmask_b32 v24, v24, v%d, s[50:51]\nv_cndmask_b32 v26, v26, v%d, s[50:51]" % (OA + 16, OA + 20))
e("v_cndmask_b32 v24, v24, v%d, s[52:53]\nv_cndmask_b32 v26, v26, v%d, s[52:53]" % (OA + 24, OA + 28))
e("s_cmp_eq_u32 s3, 3\ns_cselect_b32 s12, 0x00ff00ff, -1\ns_mov_b32 exec_lo, s12\ns_mov_b32 exec_hi, s12")
e("global_store_dwordx4 v44, v[24:27], s[%d:%d] sc1" % (sWS, sWS + 1))
e("s_mov_b64 exec, -1")
stamp(7)
e("s_cmp_lg_u32 s3, 0\ns_cbranch_scc1 L_h_done")
e("s_cmp_ge_u32 s11, 28\ns_cbranch_scc1 L_h_done")
e("s_mov_b32 s13, 0")
e("L_pollo:")
for i in range(4):
    e("global_load_dwordx4 v[%d:%d], v46, s[%d:%d] offset:%d sc1" % (8 + 4 * i, 8 + 4 * i + 3, sWS, sWS + 1, 1024 * i))
e("s_waitcnt vmcnt(0)")
tags_ok([8 + 4 * k + o for k in range(4) for o in (1, 3)], "L_pollo_done", 0, 0)
spin_guard("s13", "L_pollo_done")
if P["osleep"]:
    e("s_sleep %d" % P["osleep"])
e("s_branch L_pollo")
e("L_pollo_done:")
e("v_add_f32 v24, v8, v12\nv_add_f32 v25, v10, v14\nv_add_f32 v26, v16, v20\nv_add_f32 v27, v18, v22")
e("v_add_f32 v24, v24, v26\nv_add_f32 v25, v25, v27")
e("s_nop 1")
e("v_add_f32_dpp v24, v24, v24 row_ror:8 row_mask:0xf bank_mask:0xf\nv_add_f32_dpp v25, v25, v25 row_ror:8 row_mask:0xf bank_mask:0xf")
e("v_mov_b32 v26, v24\nv_mov_b32 v27, v25\ns_nop 1")
e("v_permlane16_swap_b32 v24, v26\nv_permlane16_swap_b32 v25, v27")
e("v_add_f32 v24, v24, v26\nv_add_f32 v25, v25, v27")
e("v_mov_b32 v26, v24\nv_mov_b32 v27, v25\ns_nop 1")
e("v_permlane32_swap_b32 v24, v26\nv_permlane32_swap_b32 v25, v27")
e("v_add_f32 v24, v24, v26\nv_add_f32 v25, v25, v27")
e("v_cvt_pk_bf16_f32 v24, v24, v25")
e("s_mul_i32 s12, s6, 896\ns_lshl_b32 s13, s11, 5\ns_add_u32 s12, s12, s13")
e("v_lshlrev_b32 v26, 2, v1\nv_add_u32 v26, s12, v26")
e("s_mov_b64 exec, 0xff")
e("global_store_dword v26, v24, s[%d:%d]" % (sOUT, sOUT + 1))
e("s_cmp_lg_u32 s2, 0\ns_cbranch_scc1 L_h_done")
e("s_mov_b64 exec, 1")
e("v_mov_b32 v26, %d\nv_mov_b32 v27, s9" % WS_E)
e("global_store_dword v26, v27, s[%d:%d] sc1      ; next launch's epoch" % (sWS, sWS + 1))
if DSP and not P.get("diagall", 0):
    e("s_cmp_lg_u32 s2, 0\ns_cbranch_scc1 L_h_done")
    if DSP == 1:
        e("s_memrealtime s[94:95]\ns_waitcnt lgkmcnt(0)")
    e("s_sub_u32 s12, s94, s92")
    e("s_min_u32 s12, s12, 20000")
    e("s_memrealtime s[94:95]\ns_waitcnt lgkmcnt(0)\ns_add_u32 s13, s94, s12")
    e("L_dspin:\ns_memrealtime s[94:95]\ns_waitcnt lgkmcnt(0)\ns_sub_u32 s14, s13, s94\ns_cmp_gt_i32 s14, 0\ns_cbranch_scc1 L_dspin")
e("L_h_done:")
if DSP and P.get("diagall", 0):
    e("s_cmp_lg_u32 s3, 0\ns_cbranch_scc1 L_dsp_done")
    e("s_sub_u32 s12, s94, s92\ns_min_u32 s12, s12, 20000\ns_add_u32 s13, s92, s12\ns_add_u32 s13, s13, s12\ns_add_u32 s13, s13, 6000")
    e("L_dspin:\ns_memrealtime s[94:95]\ns_waitcnt lgkmcnt(0)\ns_sub_u32 s14, s13, s94\ns_cmp_gt_i32 s14, 0\ns_cbranch_scc1 L_dspin")
    e("L_dsp_done:")
stamp(8)
if STAMPS:
    e("s_add_u32 s3, s3, 4")
stamp_flush(9)
e("L_end:")
e("s_endpgm")

e('.section .rodata,"a"\n.p2align 6\n.amdhsa_kernel %s' % KN)
e("  .amdhsa_next_free_vgpr 256\n  .amdhsa_next_free_sgpr 96\n  .amdhsa_accum_offset 256")
e("  .amdhsa_group_segment_fixed_size 0\n  .amdhsa_kernarg_size 64\n  .amdhsa_user_sgpr_count 2\n  .amdhsa_user_sgpr_kernarg_segment_ptr 1\n  .amdhsa_system_sgpr_workgroup_id_x 1")
e("  .amdhsa_float_denorm_mode_32 3")
e(".end_amdhsa_kernel")
open(out, "w").write("\n".join(L) + "\n")
```

```python
import sys, struct, copy

out = sys.argv[1]
P = dict(stamps=0, DI=6, DT=9, LAK=2, LAV=2, HOLD=4, B0AT=2, PBL=2, PEVERY=2, PMAX=0, PB2=2,
         NS=24, B3B=99, B3A=13, wo4a=1, wopre=2, worr=8, woprio=1, prio=1, spinmax=200000,
         kflags="nt", vflags="nt", wqflags="nt", woflags="nt", xflags="none", asleep=0, osleep=0, ssleep=8, MAP=1, RANK=0, QMODE=2, gflags="sc1", XLO=1, XHI=1, TLO=85, THI=170, RK1=9, RK2=3)
for a in sys.argv[2:]:
    k, v = a.split("=")
    P[k] = int(v) if v.lstrip("-").isdigit() else v
def fl(name):
    return P[name].replace("+", " ").replace("none", "")
kflags, vflags, wqflags, woflags, xflags = fl("kflags"), fl("vflags"), fl("wqflags"), fl("woflags"), fl("xflags")
STAMPS = P["stamps"]
NS = P["NS"]
NP = 32 - NS
POOL = NP > 0
assert NP in (0, 8)

L = []
def e(s=""):
    L.extend(s.split("\n"))

KN = "standalone__gqa_block_cached__decode_kernel"

WQS = 131072
PB = 131072
HS = 2112
PPB = PB + 4352
TKB = PPB + 4352
FME = TKB + 192
QB = 147456
MAXX = QB + 1024
LSUM = MAXX + 128
TAGL = LSUM + 128
OST = TAGL + 64
DBGL = OST + 256
LVL = DBGL + 64
LDS_TOTAL = LVL + 64
assert FME + 8 <= QB

WS_E = 0x0
WS_CNT = 0x10000
WS_ST = 0x30000
WS_OP = 0x40000
WS_OUT = 0x140000
WS_Q = 0x300000
WS_PP = 0x400000
WS_STAMP = 400 * 1024 * 1024
TAGC = 0x9E3779B9
CEXP = struct.unpack("<I", struct.pack("<f", 1.4426950408889634 / 16.0))[0]

e("; @launch grid=(256,1,1) block=(512,1,1) lds=%d" % LDS_TOTAL)
e('.amdgcn_target "amdgcn-amd-amdhsa--gfx950"')
e(".text")
e(".globl %s\n.p2align 8\n.type %s,@function\n%s:" % (KN, KN, KN))

sX, sK, sV, sWQ, sWO, sOUT, sDBG, sWS = 16, 18, 20, 22, 24, 26, 28, 30
stampregs = list(range(64, 84, 2))
def stamp(i):
    if STAMPS:
        e("s_memrealtime s[%d:%d]\ns_waitcnt lgkmcnt(0)" % (stampregs[i], stampregs[i] + 1))
def stamp_flush(n):
    if STAMPS != 1:
        return
    e("s_getreg_b32 s84, hwreg(HW_REG_XCC_ID)")
    e("s_lshl_b32 s85, s2, 3\ns_add_u32 s85, s85, s3\ns_lshl_b32 s85, s85, 7\ns_add_u32 s85, s85, %d" % WS_STAMP)
    e("s_add_u32 s86, s%d, s85\ns_addc_u32 s87, s%d, 0" % (sWS, sWS + 1))
    e("s_mov_b64 exec, 1\nv_mov_b32 v1, 0")
    for i in range(10):
        k = min(i, n - 1)
        e("v_mov_b32 v2, s%d\nv_mov_b32 v3, s%d" % (stampregs[k], stampregs[k] + 1))
        e("global_store_dwordx2 v1, v[2:3], s[86:87] offset:%d\ns_nop 1" % (i * 8))
    e("v_mov_b32 v2, s84\nv_mov_b32 v3, 0\nglobal_store_dwordx2 v1, v[2:3], s[86:87] offset:80\ns_waitcnt vmcnt(0)")

def spin_guard(cnt, label):
    e("s_add_u32 %s, %s, 1\ns_cmp_gt_u32 %s, %d\ns_cbranch_scc1 %s" % (cnt, cnt, cnt, P["spinmax"], label))

def tags_ok(regs, okl, tmp0, tmp1):
    if len(regs) <= 8:
        e("s_mov_b64 s[40:41], 0")
        for r in regs:
            e("v_cmp_ne_u32 vcc, s9, v%d\ns_or_b64 s[40:41], s[40:41], vcc" % r)
    else:
        e("v_min3_u32 v%d, v%d, v%d, v%d\nv_max3_u32 v%d, v%d, v%d, v%d" % (tmp0, regs[0], regs[1], regs[2], tmp1, regs[0], regs[1], regs[2]))
        k = 3
        while k < len(regs):
            if k + 1 < len(regs):
                e("v_min3_u32 v%d, v%d, v%d, v%d\nv_max3_u32 v%d, v%d, v%d, v%d" % (tmp0, tmp0, regs[k], regs[k + 1], tmp1, tmp1, regs[k], regs[k + 1])); k += 2
            else:
                e("v_min_u32 v%d, v%d, v%d\nv_max_u32 v%d, v%d, v%d" % (tmp0, tmp0, regs[k], tmp1, tmp1, regs[k])); k += 1
        e("v_cmp_ne_u32 s[40:41], s9, v%d\nv_cmp_ne_u32 vcc, s9, v%d\ns_or_b64 s[40:41], s[40:41], vcc" % (tmp0, tmp1))
    e("s_cmp_eq_u64 s[40:41], 0\ns_cbranch_scc1 %s" % okl)

e("s_cmp_ge_u32 s2, 256")
e("s_cbranch_scc1 L_end")
if STAMPS:
    e("s_memrealtime s[64:65]")
DSP = P.get("diagspin", 0)
if DSP:
    e("s_memrealtime s[92:93]")
if DSP == 9:
    e("s_waitcnt lgkmcnt(0)\ns_mov_b32 s94, s92")
e("s_load_dwordx16 s[16:31], s[0:1], 0")
e("v_lshrrev_b32 v1, 6, v0")
e("s_and_b32 s56, s2, 7             ; x")
e("v_readfirstlane_b32 s3, v1       ; wave")
e("s_lshr_b32 s4, s2, 3             ; y")
if P["MAP"] == 1:
    e("s_lshr_b32 s7, s56, 1            ; sp")
    e("s_xor_b32 s8, s56, s7\ns_and_b32 s8, s8, 1")
    e("s_lshl_b32 s5, s4, 1\ns_or_b32 s8, s8, s5              ; pair")
    e("s_and_b32 s5, s8, 7              ; hkv\ns_lshr_b32 s6, s8, 3             ; b")
else:
    e("s_mov_b32 s5, s56\ns_and_b32 s6, s4, 7\ns_lshr_b32 s7, s4, 3\ns_lshl_b32 s8, s6, 3\ns_add_u32 s8, s8, s5")
e("v_and_b32 v1, 63, v0             ; lane")
e("s_cmp_ge_u32 s3, 4")
e("s_cbranch_scc1 L_helper")

vKoff = list(range(2, 10)); vKrd = list(range(10, 18)); vVoff = list(range(18, 22)); vVrd = list(range(22, 26))
vPrd, vPwr, vQrd, vMrd, vMwr, vT3 = 26, 27, 28, 29, 30, 31
qB = 32; Sreg = 64; HOLDR = 128
Pa = 128; Vb = 132; acc = 148
vM, vMc, vL, vU = 164, 165, 166, 168
vA = [200, 201, 202, 203]
vOne, vCnt, vTk, vAd = 204, 205, 206, 208
vPP = 213

e("s_lshl_b32 s10, s3, 15")
e("s_lshl_b32 s11, s3, 12")
e("v_lshrrev_b32 v64, 5, v1\nv_and_b32 v65, 31, v1\nv_xor_b32 v65, v65, v64\nv_lshlrev_b32 v65, 4, v65")
e("v_lshl_add_u32 v%d, v64, 9, v65" % vKoff[0])
for n in range(1, 8):
    e("v_xor_b32 v%d, %d, v%d" % (vKoff[n], n << 5, vKoff[0]))
e("s_waitcnt lgkmcnt(0)")
e("s_lshl_b32 s12, s8, 21\ns_lshl_b32 s59, s7, 19\ns_add_u32 s13, s12, s59")
e("s_add_u32 s32, s%d, s13\ns_addc_u32 s33, s%d, 0\ns_mov_b32 s34, 0x80000\ns_mov_b32 s35, 0x20000" % (sK, sK + 1))
e("s_add_u32 s36, s%d, s12\ns_addc_u32 s37, s%d, 0\ns_mov_b32 s38, 0x200000\ns_mov_b32 s39, 0x20000" % (sV, sV + 1))

DI, LAK, LAV, DT = P["DI"], P["LAK"], P["LAV"], P["DT"]
class St:
    def __init__(self):
        self.ops = 0
        self.done = 0
        self.loads = 0
        self.opof = {}
        self.freed = 0
        self.use_level = False
        self.di0 = P.get('DI0', 0)
lbl = [0]
st = St()
NUNITS = 32 + NS + (2 if POOL else 0)
def wait_ops(x):
    if st.ops - st.done > x:
        e("s_waitcnt vmcnt(%d)" % x)
        st.done = st.ops - x
def wait_op(idx):
    if st.done <= idx:
        wait_ops(st.ops - 1 - idx)
def issue_load(di=None, dynsoff=None):
    n, jj = st.loads // 4, st.loads % 4
    if di is None:
        di = st.di0 if st.di0 else DI
        if n >= 32 + NS - P.get('NE', 0):
            di = P.get('DIE', di)
    assert n < st.freed + 8 and n < NUNITS
    if P["RANK"] and st.use_level and st.ops - st.done > di - 1 - P["XLO"]:
        lbl[0] += 1
        k = lbl[0]
        e("s_cmp_lg_u32 s55, 0\ns_cbranch_scc1 L_lv%da\ns_waitcnt vmcnt(%d)\nL_lv%da:" % (k, di - 1 - P["XLO"], k))
        e("s_cmp_eq_u32 s55, 2\ns_cbranch_scc1 L_lv%db\ns_waitcnt vmcnt(%d)\nL_lv%db:" % (k, di - 1, k))
        wait_ops(di - 1 + P["XHI"])
    else:
        wait_ops(di - 1)
    if jj == 0:
        e("s_add_u32 m0, s10, %d" % ((n % 8) * 4096))
        if n < 32:
            e("s_add_u32 s14, s11, %d" % (n * 16384))
        elif n < 32 + NS:
            e("s_add_u32 s14, s59, %d" % ((n - 32) * 16384))
        else:
            assert dynsoff is not None
            e("s_mov_b32 s14, %s" % dynsoff)
    if n < 32:
        e("buffer_load_dwordx4 v%d, s[32:35], s14 offen offset:%d %s lds" % (vKoff[(n & 1) * 4 + jj], jj * 1024, kflags))
    else:
        e("buffer_load_dwordx4 v%d, s[36:39], s14 offen offset:%d %s lds" % (vVoff[jj], jj * 1024, vflags))
    st.opof[st.loads] = st.ops
    st.ops += 1; st.loads += 1
    if P.get("trace", 0) and jj == 3 and n < 64:
        e("s_memrealtime s[84:85]\ns_waitcnt lgkmcnt(0)\nv_writelane_b32 v0, s84, %d" % n)
def pump_until(nunits, di=None):
    nunits = min(nunits, 32 + NS, st.freed + 8)
    while st.loads < 4 * nunits:
        issue_load(di)
def pump(k, di=None):
    for _ in range(k):
        if st.loads // 4 < min(32 + NS, st.freed + 8):
            issue_load(di)
def need(nunits):
    wait_op(st.opof[4 * nunits - 1])

pump(P.get('DI0', 0) or DI)
e("v_lshrrev_b32 v64, 3, v1\nv_lshrrev_b32 v65, 1, v64\nv_and_b32 v65, 3, v65\nv_lshlrev_b32 v65, 1, v65")
e("v_and_b32 v66, 7, v1\nv_xor_b32 v66, v66, v65\nv_lshlrev_b32 v66, 4, v66\nv_lshl_add_u32 v66, v64, 9, v66")
e("s_lshl_b32 s15, s3, 7\nv_add_u32 v%d, s15, v66" % vVoff[0])
for jj in range(1, 4):
    e("v_add_u32 v%d, %d, v%d" % (vVoff[jj], jj * 3072, vVoff[0]))
e("v_and_b32 v64, 15, v1             ; n\nv_lshrrev_b32 v65, 4, v1          ; g")
e("v_xor_b32 v66, v64, v65\nv_lshlrev_b32 v66, 4, v66\nv_lshl_add_u32 v66, v64, 9, v66\nv_add_u32 v%d, s10, v66" % vKrd[0])
for i in range(1, 8):
    e("v_xor_b32 v%d, %d, v%d" % (vKrd[i], i << 6, vKrd[0]))
e("v_and_b32 v66, 1, v65\nv_lshrrev_b32 v67, 3, v64\nv_lshl_or_b32 v67, v66, 1, v67")
e("v_lshrrev_b32 v68, 2, v64\nv_lshl_add_u32 v68, v66, 2, v68\nv_lshlrev_b32 v68, 7, v68")
e("v_lshrrev_b32 v69, 1, v65\nv_lshl_add_u32 v68, v69, 11, v68\nv_and_b32 v70, 3, v64\nv_lshl_add_u32 v68, v70, 3, v68\nv_add_u32 v68, s10, v68")
for t in range(4):
    e("v_xor_b32 v71, %d, v67\nv_lshl_add_u32 v%d, v71, 5, v68" % (t, vVrd[t]))
e("v_and_b32 v66, 1, v64             ; head\nv_mul_u32_u24 v72, %d, v66" % HS)
e("v_lshl_add_u32 v%d, v65, 4, v72\nv_add_u32 v%d, %d, v%d" % (vPrd, vPrd, PB, vPrd))
e("s_lshr_b32 s15, s3, 1\ns_lshl_b32 s15, s15, 5\ns_and_b32 s40, s3, 1\ns_lshl_b32 s40, s40, 3\ns_add_u32 s15, s15, s40\ns_add_u32 s15, s15, %d" % PB)
e("v_lshl_add_u32 v%d, v69, 6, v72\nv_and_b32 v73, 1, v65\nv_lshl_add_u32 v%d, v73, 4, v%d\nv_add_u32 v%d, s15, v%d" % (vPwr, vPwr, vPwr, vPwr, vPwr))
e("v_lshlrev_b32 v%d, 9, v66\nv_lshl_add_u32 v%d, v65, 4, v%d\nv_add_u32 v%d, %d, v%d" % (vQrd, vQrd, vQrd, vQrd, QB, vQrd))
e("v_lshlrev_b32 v%d, 6, v66\nv_add_u32 v%d, %d, v%d" % (vMrd, vMrd, MAXX, vMrd))
e("s_lshl_b32 s15, s3, 4\nv_lshl_add_u32 v%d, v65, 2, v%d\nv_add_u32 v%d, s15, v%d" % (vMwr, vMrd, vMwr, vMwr))

HOLDN = P["HOLD"]; B0AT = P["B0AT"]
pump_until(8)
if B0AT == 0:
    e("s_barrier")
for T in range(HOLDN):
    need(2 * T + 2)
    for i in range(8):
        r = HOLDR + 32 * T + 4 * i
        e("ds_read_b128 v[%d:%d], v%d offset:%d" % (r, r + 3, vKrd[i], (T % 4) * 8192))
    e("s_waitcnt lgkmcnt(0)")
    st.freed = 2 * T + 2
    pump_until(st.freed + 8)
    if B0AT == T + 1:
        e("s_barrier")
stamp(1)
st.di0 = P.get("DI1", 0)
e("s_barrier")
stamp(2)
for i in range(8):
    e("ds_read_b128 v[%d:%d], v%d offset:%d" % (qB + 4 * i, qB + 4 * i + 3, vQrd, i * 64))
e("v_mov_b32 v%d, %d\nds_read_b32 v%d, v%d\ns_waitcnt lgkmcnt(0)\nv_readfirstlane_b32 s9, v%d" % (vT3, TAGL, vT3, vT3, vT3))

def mfma16(d, a, b, c):
    e("v_mfma_f32_16x16x32_bf16 v[%d:%d], v[%d:%d], v[%d:%d], %s" % (d, d + 3, a, a + 3, b, b + 3, "0" if c is None else "v[%d:%d]" % (c, c + 3)))
def ktile(T, from_regs):
    e("; K tile %d" % T)
    S = Sreg + 4 * T
    if from_regs:
        for i in range(8):
            mfma16(S, HOLDR + 32 * T + 4 * i, qB + 4 * i, None if i == 0 else S)
        return
    nd = 2 * T + 2
    pump_until(nd + LAK)
    need(nd)
    for i in range(8):
        e("ds_read_b128 v[%d:%d], v%d offset:%d" % (AregK + 4 * i, AregK + 4 * i + 3, vKrd[i], (T % 4) * 8192))
    for i in range(8):
        e("s_waitcnt lgkmcnt(%d)" % (7 - i))
        mfma16(S, AregK + 4 * i, qB + 4 * i, None if i == 0 else S)
    st.freed = nd
    if T == HOLDN:
        pump(DI)
if HOLDN == 4:
    order = [(0, True)] + [(T, False) for T in range(4, 8)] + [(1, True), (2, True), (3, True)] + [(T, False) for T in range(8, 16)]
    AregK = HOLDR
else:
    order = [(T, False) for T in range(HOLDN, HOLDN + 4)] + [(T, True) for T in range(HOLDN)] + [(T, False) for T in range(HOLDN + 4, 16)]
    AregK = HOLDR + 32 * HOLDN
def read_level(k):
    e("v_mov_b32 v%d, %d\nds_read_b32 v%d, v%d\ns_waitcnt lgkmcnt(0)\nv_readfirstlane_b32 s55, v%d" % (vT3, LVL + 4 * k, vT3, vT3, vT3))
    st.use_level = True
for idx, (T, fr) in enumerate(order):
    if HOLDN and 2 <= idx < HOLDN + 4:
        pump(P["PBL"])
    if P["RANK"] and idx == P["RK1"]:
        read_level(0)
    ktile(T, fr)
stamp(3)
st.di0 = 0
e("; softmax")
pump(1, DT)
e("s_nop 7")
e("v_max3_f32 v%d, v%d, v%d, v%d" % (vM, Sreg, Sreg + 1, Sreg + 2))
i = 3; cnt = 0
while i < 64:
    if i + 1 < 64:
        e("v_max3_f32 v%d, v%d, v%d, v%d" % (vM, vM, Sreg + i, Sreg + i + 1)); i += 2
    else:
        e("v_max_f32 v%d, v%d, v%d" % (vM, vM, Sreg + i)); i += 1
    cnt += 1
    if P["PMAX"] and cnt % P["PMAX"] == 0:
        pump(1, DT)
e("s_mov_b32 exec_lo, 0x00030003\ns_mov_b32 exec_hi, 0x00030003")
e("ds_write_b32 v%d, v%d" % (vMwr, vM))
e("s_mov_b64 exec, -1")
pump(P["PB2"], DT)
e("s_waitcnt lgkmcnt(0)")
e("s_barrier")
for i in range(4):
    e("ds_read_b128 v[%d:%d], v%d offset:%d" % (vU + 4 * i, vU + 4 * i + 3, vMrd, 16 * i))
e("s_waitcnt lgkmcnt(0)")
e("v_max3_f32 v%d, v%d, v%d, v%d" % (vM, vU, vU + 1, vU + 2))
for i in range(3, 15, 2):
    e("v_max3_f32 v%d, v%d, v%d, v%d" % (vM, vM, vU + i, vU + i + 1))
e("v_max_f32 v%d, v%d, v%d" % (vM, vM, vU + 15))
e("s_mov_b32 s15, 0x%08x" % CEXP)
e("v_mul_f32 v%d, s15, v%d" % (vMc, vM))
e("v_mov_b32 v%d, 0\nv_mov_b32 v%d, 0" % (vL, vL + 1))
def fold(p0):
    e("v_add_f32 v%d, v%d, v%d\nv_add_f32 v%d, v%d, v%d" % (vL, vL, p0, vL + 1, vL + 1, p0 + 1))
    e("v_add_f32 v%d, v%d, v%d\nv_add_f32 v%d, v%d, v%d" % (vL, vL, p0 + 2, vL + 1, vL + 1, p0 + 3))
    e("v_cvt_pk_bf16_f32 v%d, v%d, v%d\nv_cvt_pk_bf16_f32 v%d, v%d, v%d" % (p0, p0, p0 + 1, p0 + 1, p0 + 2, p0 + 3))
for T in range(16):
    s0 = Sreg + 4 * T
    for r in range(4):
        e("v_fma_f32 v%d, v%d, s15, -v%d" % (s0 + r, s0 + r, vMc))
    for r in range(4):
        e("v_exp_f32 v%d, v%d" % (s0 + r, s0 + r))
    if T % P["PEVERY"] == P["PEVERY"] - 1:
        pump(1, DT)
    if T > 0:
        fold(Sreg + 4 * (T - 1))
e("s_nop 0")
fold(Sreg + 60)
e("v_add_f32 v%d, v%d, v%d" % (vL, vL, vL + 1))
e("s_mov_b32 exec_lo, 0x00030003\ns_mov_b32 exec_hi, 0x00030003")
for T in range(16):
    e("ds_write_b64 v%d, v[%d:%d] offset:%d" % (vPwr, Sreg + 4 * T, Sreg + 4 * T + 1, T * 128))
e("ds_write_b32 v%d, v%d offset:%d" % (vMwr, vL, LSUM - MAXX))
e("s_mov_b64 exec, -1")
for t in range(16):
    e("v_mov_b32 v%d, 0" % (acc + t))
if POOL:
    e("s_lshl_b32 s12, s8, 7\ns_add_u32 s12, s12, %d\nv_mov_b32 v%d, s12\nv_mov_b32 v%d, 1\nv_mov_b32 v%d, %d" % (WS_CNT, vCnt, vOne, vTk, TKB))
    e("v_add_u32 v%d, %d, v%d" % (vPP, PPB - PB, vPrd))
pump(P["PB2"], DT)
e("s_waitcnt lgkmcnt(0)")
e("s_barrier")
stamp(4)

def vunit_compute(paddr, poff, vaddrs, slot):
    e("ds_read_b128 v[%d:%d], v%d offset:%d" % (Pa, Pa + 3, paddr, poff))
    for t in range(4):
        e("ds_read_b64_tr_b16 v[%d:%d], v%d offset:%d" % (Vb + 4 * t, Vb + 4 * t + 1, vaddrs[t], slot))
        e("ds_read_b64_tr_b16 v[%d:%d], v%d offset:%d" % (Vb + 4 * t + 2, Vb + 4 * t + 3, vaddrs[t], slot + 1024))
    for t in range(4):
        e("s_waitcnt lgkmcnt(%d)" % (6 - 2 * t))
        mfma16(acc + 4 * t, Pa, Vb + 4 * t, acc + 4 * t)
def vunit(u):
    n = 32 + u
    e("; V unit %d" % u)
    if P["RANK"] and u == P["RK2"]:
        read_level(1)
    pump_until(n + 1 + LAV)
    need(n + 1)
    vunit_compute(vPrd, u * 64, vVrd, (n % 8) * 4096)
    st.freed = n + 1
    if u in (7, 15) or (u == 23 and not POOL):
        stamp(7 + (u - 7) // 8)

sI, sSo, sPo0, sPo1, sPo2, sV0, sV1, sTk = 60, 61, 62, 63, 88, 89, 90, 91
def decode(tk, po, valid):
    e("s_and_b32 s12, %s, 3\ns_lshr_b32 s13, %s, 2" % (tk, tk))
    e("s_lshl_b32 s%d, s12, 3\ns_add_u32 s%d, s%d, s13\ns_lshl_b32 s%d, s%d, 6" % (po, po, po, po, po))
    e("s_lshl_b32 s12, s12, 19\ns_lshl_b32 s13, s13, 14\ns_add_u32 s12, s12, s13\ns_add_u32 s12, s12, %d" % (NS * 16384))
    e("s_cmp_lt_u32 %s, %d\ns_cselect_b32 s%d, s12, 0x7fff0000" % (tk, 4 * NP, sSo))
    if valid is not None:
        e("s_cselect_b32 s%d, 1, 0" % valid)
def get_ticket_lds(dyn):
    lbl[0] += 1
    k = lbl[0]
    e("s_mov_b32 s15, 0\nL_tk%d:" % k)
    e("ds_read_b32 v%d, v%d%s\ns_waitcnt lgkmcnt(0)\nv_readfirstlane_b32 s%d, v%d" % (vAd + 5 - 5 + 0, vTk, "" if dyn is None else " offset:%d" % (4 * dyn), sTk, vAd))
    spin_guard("s15", "L_tkd%d" % k)
    e("s_cmp_eq_u32 s%d, -1\ns_cbranch_scc1 L_tk%d\nL_tkd%d:" % (sTk, k, k))
def dyn_compute(po):
    e("s_and_b32 s12, s%d, 7\ns_lshl_b32 s12, s12, 12" % sI)
    for t in range(4):
        e("v_add_u32 v%d, s12, v%d" % (vAd + t, vVrd[t]))
    e("v_add_u32 v%d, s%d, v%d" % (vAd + 4, po, vPP))
    vunit_compute(vAd + 4, 0, [vAd + t for t in range(4)], 0)
def dyn_loads():
    e("s_add_u32 s12, s%d, 2\ns_and_b32 s12, s12, 7\ns_lshl_b32 s12, s12, 12\ns_add_u32 m0, s10, s12\ns_mov_b32 s14, s%d" % (sI, sSo))
    for jj in range(4):
        if P.get("DPACE", 0):
            e("s_waitcnt vmcnt(%d)" % (P["DPACE"] - 1))
        e("buffer_load_dwordx4 v%d, s[36:39], s14 offen offset:%d %s lds" % (vVoff[jj], jj * 1024, vflags))
def rescale_acc():
    e("; switch from own scale to the pair's scale")
    e("v_mov_b32 v%d, %d\nds_read_b64 v[%d:%d], v%d\ns_waitcnt lgkmcnt(0)\ns_nop 4" % (vAd, FME, vU, vU + 1, vAd))
    for t in range(4):
        e("v_mul_f32 v%d, v%d, v%d\nv_mul_f32 v%d, v%d, v%d" % (acc + 4 * t, acc + 4 * t, vU, acc + 4 * t + 1, acc + 4 * t + 1, vU + 1))
    e("s_nop 1")

if not POOL:
    for u in range(32):
        if u == P["B3A"]:
            e("s_barrier")
        vunit(u)
else:
    UA = NS - 6
    assert P["B3B"] < UA or P["B3B"] >= NS
    for u in range(UA):
        if u == P["B3B"]:
            e("s_barrier")
        if u == P["B3A"]:
            e("s_barrier")
        vunit(u)
    e("s_cmp_lg_u32 s3, 0\ns_cbranch_scc1 L_vfollow")
    snap = copy.deepcopy(st)
    for lead in (True, False):
        if not lead:
            st = snap
            e("L_vfollow:")
        tag = "a" if lead else "b"
        aop = {}
        for u in range(UA, NS):
            n = 32 + u
            e("; V unit %d (%s)" % (u, "leader" if lead else "follower"))
            k = u - UA
            if lead and k < 4:
                e("s_mov_b64 exec, 1\nglobal_atomic_add v%d, v%d, v%d, s[%d:%d] sc0 sc1\ns_mov_b64 exec, -1" % (vA[k], vCnt, vOne, sWS, sWS + 1))
                aop[k] = st.ops; st.ops += 1
            pump_until(n + 1 + LAV)
            kk = u - (NS - 2)
            if kk >= 0:
                if lead:
                    wait_op(aop[kk])
                    e("v_readfirstlane_b32 s%d, v%d\ns_mov_b64 exec, 1\nds_write_b32 v%d, v%d offset:%d\ns_mov_b64 exec, -1" % (sTk, vA[kk], vTk, vA[kk], 4 * kk))
                else:
                    get_ticket_lds(kk)
                decode("s%d" % sTk, sPo0 if kk == 0 else sPo1, sV0 if kk == 0 else sV1)
                for jj in range(4):
                    issue_load(None, "s%d" % sSo)
            need(n + 1)
            vunit_compute(vPrd, u * 64, vVrd, (n % 8) * 4096)
            st.freed = n + 1
        stamp(9)
        if P["B3B"] >= NS:
            e("s_barrier")
        rescale_acc()
        e("s_mov_b32 s%d, 0\nv_add_u32 v%d, 8, v%d" % (sI, vTk, vTk))
        e("s_waitcnt vmcnt(4)")
        e("L_pool_%s:" % tag)
        for par in range(2 if lead else 1):
            if lead:
                e("s_waitcnt vmcnt(5)")
                va = vA[2 + par]
                e("v_readfirstlane_b32 s%d, v%d\ns_mov_b64 exec, 1\nds_write_b32 v%d, v%d\ns_mov_b64 exec, -1" % (sTk, va, vTk, va))
            else:
                e("s_waitcnt vmcnt(4)")
                get_ticket_lds(None)
            e("s_cmp_ge_u32 s%d, %d\ns_cbranch_scc1 L_drain_%s" % (sTk, 4 * NP, tag))
            if lead:
                e("s_mov_b64 exec, 1\nglobal_atomic_add v%d, v%d, v%d, s[%d:%d] sc0 sc1\ns_mov_b64 exec, -1" % (va, vCnt, vOne, sWS, sWS + 1))
            decode("s%d" % sTk, sPo2, None)
            dyn_loads()
            dyn_compute(sPo0)
            e("s_mov_b32 s%d, s%d\ns_mov_b32 s%d, s%d\ns_add_u32 s%d, s%d, 1\nv_add_u32 v%d, 4, v%d" % (sPo0, sPo1, sPo1, sPo2, sI, sI, vTk, vTk))
            e("s_mov_b32 s%d, 1\ns_mov_b32 s%d, 1" % (sV0, sV1))
        e("s_branch L_pool_%s" % tag)
        e("L_drain_%s:" % tag)
        e("s_cmp_eq_u32 s%d, 0\ns_cbranch_scc1 L_dr1_%s" % (sV0, tag))
        dyn_compute(sPo0)
        e("L_dr1_%s:" % tag)
        e("s_waitcnt vmcnt(0)")
        e("s_cmp_eq_u32 s%d, 0\ns_cbranch_scc1 L_dr2_%s" % (sV1, tag))
        e("s_add_u32 s%d, s%d, 1" % (sI, sI))
        dyn_compute(sPo1)
        e("L_dr2_%s:" % tag)
        if lead:
            e("s_branch L_vdone")
    e("L_vdone:")
stamp(5)
e("s_lshl_b32 s12, s8, 2\ns_add_u32 s12, s12, s3\ns_lshl_b32 s12, s12, 2\ns_add_u32 s12, s12, s7\ns_lshl_b32 s12, s12, 10\ns_add_u32 s12, s12, %d" % WS_OP)
e("v_lshlrev_b32 v%d, 4, v1\nv_add_u32 v%d, s12, v%d" % (vQrd, vQrd, vQrd))
e("s_mov_b32 s40, 0xffff0000\ns_mov_b32 s41, 0\ns_mov_b32 s42, 0\ns_mov_b32 s43, 0x0000ffff\ns_mov_b32 s44, 0\ns_mov_b32 s45, 0xffff0000")
e("v_mov_b32 v%d, s9\nv_mov_b32 v%d, s9" % (vU + 1, vU + 3))
e("s_nop 3")
for (m, a0) in (("s[40:41]", 4), ("s[42:43]", 8), ("s[44:45]", 12)):
    src0 = (acc + 0, acc + 1) if a0 == 4 else (vU, vU + 2)
    e("v_cndmask_b32 v%d, v%d, v%d, %s" % (vU, src0[0], acc + a0, m))
    e("v_cndmask_b32 v%d, v%d, v%d, %s" % (vU + 2, src0[1], acc + a0 + 1, m))
e("global_store_dwordx4 v%d, v[%d:%d], s[%d:%d] sc1" % (vQrd, vU, vU + 3, sWS, sWS + 1))
e("s_barrier")
if P.get("trace", 0):
    e("s_lshl_b32 s85, s2, 2\ns_add_u32 s85, s85, s3\ns_lshl_b32 s85, s85, 8\ns_add_u32 s85, s85, %d" % (WS_STAMP + 0x100000))
    e("v_lshlrev_b32 v2, 2, v1\nv_add_u32 v2, s85, v2\nglobal_store_dword v2, v0, s[%d:%d]\ns_waitcnt vmcnt(0)" % (sWS, sWS + 1))
stamp(6)
stamp_flush(10)
e("s_endpgm")

e("L_helper:")
e("s_sub_u32 s3, s3, 4              ; hw")
e("v_and_b32 v2, 15, v1             ; n\nv_lshrrev_b32 v3, 4, v1          ; g")
e("s_waitcnt lgkmcnt(0)")
e("s_cmp_lg_u32 s3, 0")
e("s_cbranch_scc0 L_w4")
if B0AT >= 0:
    e("s_barrier            ; B0")
e("s_branch L_h_b1")
e("L_w4:")
if P["prio"]:
    e("s_setprio 3")
e("s_load_dword s9, s[%d:%d], %d     ; epoch word" % (sWS, sWS + 1, WS_E))
if P.get("noq", 0):
    e("s_waitcnt lgkmcnt(0)\ns_add_u32 s9, s9, 0x%08x" % TAGC)
    if B0AT >= 0:
        e("s_barrier            ; B0")
    e("s_branch L_noq")
e("s_mov_b32 s32, s%d\ns_mov_b32 s33, s%d\ns_mov_b32 s34, %d\ns_mov_b32 s35, 0x20000" % (sWQ, sWQ + 1, 448 * 8192))
e("s_mov_b32 s36, s%d\ns_mov_b32 s37, s%d\ns_mov_b32 s38, %d\ns_mov_b32 s39, 0x20000" % (sX, sX + 1, 8 * 896))
QMODE = P['QMODE']
if QMODE == 2:
    e("s_and_b32 s57, s4, 7              ; cl\ns_lshr_b32 s58, s4, 3             ; kq")
    e("s_lshl_b32 s10, s58, 7\ns_mul_i32 s11, s58, 96\ns_add_u32 s11, s11, 64\ns_cmp_lt_u32 s58, 2\ns_cselect_b32 s10, s10, s11")
    e("s_lshl_b32 s11, s10, 13\ns_lshl_b32 s12, s56, 10\ns_add_u32 s11, s11, s12\ns_lshl_b32 s12, s57, 7\ns_add_u32 s11, s11, s12")
    e("v_lshrrev_b32 v4, 3, v1\nv_lshlrev_b32 v4, 13, v4\nv_and_b32 v5, 7, v1\nv_lshl_add_u32 v4, v5, 4, v4")
    XB = 8
    e("v_and_b32 v5, 7, v2\nv_mul_u32_u24 v5, 896, v5\nv_lshl_add_u32 v5, v3, 4, v5")
    e("s_lshl_b32 s10, s10, 1")
    def wq_loads(a, b):
        for m in range(a, b):
            e("s_mov_b32 m0, %d\ns_add_u32 s12, s11, %d" % (WQS + m * 1024, m * 8 * 8192))
            e("buffer_load_dwordx4 v4, s[32:35], s12 offen %s lds" % wqflags)
    def x_load(ks):
        e("buffer_load_dwordx4 v[%d:%d], v5, s[36:39], s10 offen offset:%d %s" % (XB + 4 * ks, XB + 4 * ks + 3, ks * 64, xflags))
    wq_loads(0, 12)
    for ks in range(3):
        x_load(ks)
    e("s_cmp_lt_u32 s58, 2\ns_cbranch_scc0 L_q3")
    wq_loads(12, 16); x_load(3)
    e("L_q3:")
    if POOL:
        e("s_cmp_ge_u32 s4, 8\ns_cbranch_scc1 L_nocnt")
        e("s_lshl_b32 s12, s4, 3\ns_add_u32 s12, s12, s56\ns_lshl_b32 s12, s12, 7\ns_add_u32 s12, s12, %d\nv_mov_b32 v6, s12\nv_mov_b32 v7, 0" % WS_CNT)
        e("s_mov_b64 exec, 1\nglobal_store_dword v6, v7, s[%d:%d] sc1\ns_mov_b64 exec, -1" % (sWS, sWS + 1))
        e("L_nocnt:")
    e("v_lshlrev_b32 v6, 10, v3\nv_lshrrev_b32 v7, 2, v2\nv_lshl_add_u32 v6, v7, 7, v6\nv_and_b32 v7, 3, v2\nv_lshl_add_u32 v6, v7, 3, v6\nv_add_u32 v6, %d, v6" % WQS)
    e("v_and_b32 v7, 7, v2\nv_lshlrev_b32 v7, 17, v7\nv_lshl_add_u32 v7, v3, 5, v7\nv_lshrrev_b32 v24, 3, v2\nv_lshl_add_u32 v7, v24, 4, v7")
    e("s_lshl_b32 s11, s56, 2\ns_add_u32 s11, s11, s58\ns_lshl_b32 s11, s11, 12\ns_lshl_b32 s12, s57, 9\ns_add_u32 s11, s11, s12\ns_add_u32 s11, s11, %d\nv_add_u32 v7, s11, v7" % WS_Q)
    e("s_waitcnt vmcnt(0) lgkmcnt(0)")
    e("s_add_u32 s9, s9, 0x%08x        ; tag of this launch" % TAGC)
    WA = 32; QA = 64
    def q_reads(ks):
        b0 = WA + 16 * (ks & 1)
        for ct in range(4):
            e("ds_read_b64_tr_b16 v[%d:%d], v6 offset:%d" % (b0 + 4 * ct, b0 + 4 * ct + 1, ks * 4096 + ct * 32))
            e("ds_read_b64_tr_b16 v[%d:%d], v6 offset:%d" % (b0 + 4 * ct + 2, b0 + 4 * ct + 3, ks * 4096 + 512 + ct * 32))
    def q_mfma(ks):
        b0 = WA + 16 * (ks & 1)
        for ct in range(4):
            mfma16(QA + 4 * ct, b0 + 4 * ct, XB + 4 * ks, None if ks == 0 else QA + 4 * ct)
    q_reads(0); q_reads(1)
    e("s_waitcnt lgkmcnt(8)"); q_mfma(0)
    q_reads(2)
    e("s_waitcnt lgkmcnt(8)"); q_mfma(1)
    e("s_cmp_lt_u32 s58, 2\ns_cbranch_scc0 L_q3b")
    q_reads(3)
    e("s_waitcnt lgkmcnt(8)"); q_mfma(2)
    e("s_waitcnt lgkmcnt(0)"); q_mfma(3)
    e("s_branch L_q3c\nL_q3b:")
    e("s_waitcnt lgkmcnt(0)"); q_mfma(2)
    e("L_q3c:")
    QT = 96
    e("s_mov_b32 s40, 0xff00ff00\ns_mov_b32 s41, 0xff00ff00")
    for ct in range(4):
        e("v_mov_b32 v%d, s9\nv_mov_b32 v%d, s9" % (QT + 4 * ct + 1, QT + 4 * ct + 3))
    e("s_nop 1")
    for ct in range(4):
        e("v_cndmask_b32 v%d, v%d, v%d, s[40:41]" % (QT + 4 * ct, QA + 4 * ct, QA + 4 * ct + 2))
        e("v_cndmask_b32 v%d, v%d, v%d, s[40:41]" % (QT + 4 * ct + 2, QA + 4 * ct + 1, QA + 4 * ct + 3))
    for ct in range(4):
        e("global_store_dwordx4 v7, v[%d:%d], s[%d:%d] offset:%d sc1" % (QT + 4 * ct, QT + 4 * ct + 3, sWS, sWS + 1, ct * 128))
    stamp(1)
    if POOL:
        e("v_lshlrev_b32 v12, 2, v1\nv_add_u32 v12, %d, v12\nv_mov_b32 v13, -1\ns_mov_b32 exec_lo, -1\ns_mov_b32 exec_hi, 0x0000ffff" % TKB)
        e("ds_write_b32 v12, v13\ns_mov_b64 exec, -1")
    e("s_lshl_b32 s11, s8, 14\ns_add_u32 s11, s11, %d" % WS_Q)
    e("v_lshlrev_b32 v8, 4, v1\nv_add_u32 v8, s11, v8")
    for kq in range(1, 4):
        e("v_add_u32 v%d, %d, v8" % (8 + kq, kq * 4096))
    e("s_mov_b32 s13, 0")
    GQ = 128
    if B0AT >= 0:
        e("s_barrier            ; B0")
    e("L_pollq:")
    for kq in range(4):
        for i in range(4):
            r = GQ + 16 * kq + 4 * i
            e("global_load_dwordx4 v[%d:%d], v%d, s[%d:%d] offset:%d %s" % (r, r + 3, 8 + kq, sWS, sWS + 1, i * 1024, fl("gflags")))
    e("s_waitcnt vmcnt(0)")
    tags_ok([GQ + 4 * k + o for k in range(16) for o in (1, 3)], "L_pollq_done", 12, 13)
    spin_guard("s13", "L_pollq_done")
    e("s_branch L_pollq")
    e("L_pollq_done:")
    e("v_lshlrev_b32 v7, 2, v1\nv_add_u32 v7, %d, v7" % QB)
    for i in range(4):
        r = GQ + 4 * i
        e("v_add_f32 v%d, v%d, v%d\nv_add_f32 v%d, v%d, v%d" % (r, r, r + 16, r + 2, r + 2, r + 18))
        e("v_add_f32 v%d, v%d, v%d\nv_add_f32 v%d, v%d, v%d" % (r + 32, r + 32, r + 48, r + 34, r + 34, r + 50))
        e("v_add_f32 v%d, v%d, v%d\nv_add_f32 v%d, v%d, v%d" % (r, r, r + 32, r + 2, r + 2, r + 34))
        e("v_cvt_pk_bf16_f32 v%d, v%d, v%d" % (r, r, r + 2))
        e("ds_write_b32 v7, v%d offset:%d" % (r, i * 256))
else:
    assert not POOL
    e("s_lshl_b32 s10, s56, 5\ns_add_u32 s10, s10, s4           ; c")
    e("v_lshrrev_b32 v4, 1, v1\nv_lshlrev_b32 v4, 13, v4\nv_and_b32 v5, 1, v1\nv_lshl_add_u32 v4, v5, 4, v4")
    e("s_lshl_b32 s11, s10, 5\nv_add_u32 v4, s11, v4")
    for ks in range(14):
        e("s_mov_b32 m0, %d\ns_mov_b32 s12, %d" % (WQS + ks * 1024, ks * 262144))
        if P.get("WQB", 0) and ks >= P["WQB"]:
            e("s_waitcnt vmcnt(%d)" % (P["WQB"] - 1))
        e("buffer_load_dwordx4 v4, s[32:35], s12 offen %s lds" % wqflags)
    XB = 8
    e("v_and_b32 v5, 7, v2\nv_mul_u32_u24 v5, 896, v5\nv_lshl_add_u32 v5, v3, 4, v5\nv_lshrrev_b32 v6, 3, v2\nv_lshl_add_u32 v5, v6, 6, v5")
    for k2 in range(7):
        e("buffer_load_dwordx4 v[%d:%d], v5, s[36:39], 0 offen offset:%d %s" % (XB + 4 * k2, XB + 4 * k2 + 3, k2 * 128, xflags))
    e("v_lshlrev_b32 v6, 8, v3\nv_lshl_add_u32 v6, v2, 3, v6\nv_add_u32 v6, %d, v6" % WQS)
    e("v_lshlrev_b32 v7, 14, v2\nv_lshl_add_u32 v7, v3, 4, v7")
    e("s_lshl_b32 s11, s10, 6\ns_add_u32 s11, s11, %d\nv_add_u32 v7, s11, v7" % WS_Q)
    e("s_waitcnt vmcnt(0) lgkmcnt(0)")
    e("s_add_u32 s9, s9, 0x%08x        ; tag of this launch" % TAGC)
    WA = 40
    for ks in range(14):
        r = WA + 4 * (ks & 3)
        e("ds_read_b64_tr_b16 v[%d:%d], v6 offset:%d" % (r, r + 1, ks * 1024))
        e("ds_read_b64_tr_b16 v[%d:%d], v6 offset:%d" % (r + 2, r + 3, ks * 1024 + 128))
        if ks >= 2:
            pk = ks - 2
            e("s_waitcnt lgkmcnt(4)")
            mfma16(72 + 4 * (pk & 1), WA + 4 * (pk & 3), XB + 4 * (pk >> 1), None if pk < 2 else 72 + 4 * (pk & 1))
    for pk in (12, 13):
        e("s_waitcnt lgkmcnt(%d)" % (2 if pk == 12 else 0))
        mfma16(72 + 4 * (pk & 1), WA + 4 * (pk & 3), XB + 4 * (pk >> 1), 72 + 4 * (pk & 1))
    e("v_mov_b32 v81, s9\nv_mov_b32 v83, s9\ns_nop 7")
    for r in range(4):
        e("v_add_f32_dpp v%d, v%d, v%d row_ror:8 row_mask:0xf bank_mask:0xf" % (72 + r, 76 + r, 72 + r))
    e("v_cvt_pk_bf16_f32 v80, v72, v73\nv_cvt_pk_bf16_f32 v82, v74, v75")
    e("s_mov_b32 exec_lo, 0x00ff00ff\ns_mov_b32 exec_hi, 0x00ff00ff")
    e("global_store_dwordx4 v7, v[80:83], s[%d:%d] sc1" % (sWS, sWS + 1))
    e("s_mov_b64 exec, -1")
    stamp(1)
    e("s_lshl_b32 s11, s6, 14\ns_lshl_b32 s12, s5, 11\ns_add_u32 s11, s11, s12\ns_add_u32 s11, s11, %d" % WS_Q)
    e("v_lshlrev_b32 v7, 4, v1\nv_add_u32 v7, s11, v7")
    e("s_mov_b32 s13, 0")
    if B0AT >= 0:
        e("s_barrier            ; B0")
    e("L_pollq:")
    e("global_load_dwordx4 v[84:87], v7, s[%d:%d] %s" % (sWS, sWS + 1, fl("gflags")))
    e("global_load_dwordx4 v[88:91], v7, s[%d:%d] offset:1024 %s" % (sWS, sWS + 1, fl("gflags")))
    e("s_waitcnt vmcnt(0)")
    tags_ok([85, 87, 89, 91], "L_pollq_done", 0, 0)
    spin_guard("s13", "L_pollq_done")
    e("s_branch L_pollq")
    e("L_pollq_done:")
    e("v_mov_b32 v85, v86\nv_mov_b32 v89, v90")
    e("v_lshlrev_b32 v7, 3, v1\nv_add_u32 v7, %d, v7" % QB)
    e("ds_write_b64 v7, v[84:85]\nds_write_b64 v7, v[88:89] offset:512")
e("L_noq:")
e("v_mov_b32 v8, %d\nv_mov_b32 v9, s9\nds_write_b32 v8, v9" % TAGL)
if P["RANK"]:
    e("v_mov_b32 v8, %d\nv_mov_b32 v10, 1\nv_mov_b32 v11, 1\nds_write_b64 v8, v[10:11]" % LVL)
e("s_waitcnt lgkmcnt(0)")
if P["prio"]:
    e("s_setprio 0")
e("L_h_b1:")
if DSP == 8:
    e("s_memrealtime s[94:95]\ns_waitcnt lgkmcnt(0)")
stamp(2)
e("s_barrier            ; B1")
if DSP == 2:
    e("s_memrealtime s[94:95]\ns_waitcnt lgkmcnt(0)")

e("v_mov_b32 v8, %d\nds_read_b32 v8, v8\ns_waitcnt lgkmcnt(0)\nv_readfirstlane_b32 s9, v8" % TAGL)
def rank_checkpoint(k):
    lbl[0] += 1
    lab = "L_rk%d" % lbl[0]
    e("s_cmp_lg_u32 s3, 1\ns_cbranch_scc1 %s" % lab)
    e("s_mov_b64 exec, 1\nv_mov_b32 v10, %d\nv_mov_b32 v11, 1\nglobal_atomic_add v12, v10, v11, s[%d:%d] sc0 sc1\ns_waitcnt vmcnt(0)" % (4 * k, sDBG, sDBG + 1))
    e("v_readfirstlane_b32 s12, v12\ns_nop 3\ns_cmp_ge_u32 s12, %d\ns_cselect_b32 s13, 1, 0\ns_cmp_ge_u32 s12, %d\ns_cselect_b32 s13, 2, s13" % (P["TLO"], P["THI"]))
    e("v_mov_b32 v10, %d\nv_mov_b32 v11, s13\nds_write_b32 v10, v11\ns_waitcnt lgkmcnt(0)\ns_mov_b64 exec, -1" % (LVL + 4 * k))
    e("%s:" % lab)
if P["RANK"]:
    rank_checkpoint(0)
e("s_mov_b32 s32, s%d\ns_mov_b32 s33, s%d\ns_mov_b32 s34, %d\ns_mov_b32 s35, 0x20000" % (sWO, sWO + 1, 4096 * 896))
e("v_mul_u32_u24 v47, %d, v3\nv_lshl_add_u32 v47, v2, 4, v47\ns_lshl_b32 s10, s3, 8\nv_add_u32 v47, s10, v47" % (8 * 896))
e("s_cmp_eq_u32 s3, 3\ns_cselect_b32 s12, 0x7fffffff, 0")
e("v_mov_b32 v9, s12\nv_cmp_lt_u32 vcc, 7, v2\ns_nop 1\nv_cndmask_b32 v9, 0, v9, vcc\nv_or_b32 v47, v47, v9")
e("s_lshl_b32 s54, s5, 9\ns_lshl_b32 s11, s7, 6\ns_add_u32 s54, s54, s11\ns_mul_i32 s54, s54, 896")
e("s_mov_b32 s46, 0x05040100\ns_mov_b32 s47, 0x07060302")
RAW = 96; WOH = [128 + 32 * ks for ks in range(4)]
def wo_load(ks):
    rowoff = ((ks >> 1) * 256 + (ks & 1) * 32) * 896
    R = P["worr"]
    for j0 in range(0, 8, R):
        if P["woprio"]:
            e("s_setprio 3")
        for j in range(j0, j0 + R):
            e("s_add_u32 s12, s54, %d" % (rowoff + j * 896))
            e("buffer_load_dwordx4 v[%d:%d], v47, s[32:35], s12 offen %s" % (RAW + 4 * j, RAW + 4 * j + 3, woflags))
        if P["woprio"]:
            e("s_setprio 0")
        e("s_waitcnt vmcnt(0)")
    for t in range(8):
        for p in range(4):
            e("v_perm_b32 v%d, v%d, v%d, %s" % (WOH[ks] + t * 4 + p, RAW + 4 * (2 * p + 1) + (t >> 1), RAW + 4 * (2 * p) + (t >> 1), "s47" if (t & 1) else "s46"))
NPRE = P["wopre"]
for ks in range(NPRE):
    wo_load(ks)
stamp(3)
e("s_barrier            ; B2")
e("s_barrier            ; B3")
if DSP == 3:
    e("s_memrealtime s[94:95]\ns_waitcnt lgkmcnt(0)")

if P["RANK"]:
    rank_checkpoint(1)
e("s_cmp_lg_u32 s3, 0\ns_cbranch_scc1 L_h_wo2")
e("v_and_b32 v4, 1, v2\nv_lshlrev_b32 v4, 6, v4\nv_add_u32 v4, %d, v4" % MAXX)
for i in range(4):
    e("ds_read_b128 v[%d:%d], v4 offset:%d" % (8 + 4 * i, 8 + 4 * i + 3, 16 * i))
for i in range(4):
    e("ds_read_b128 v[%d:%d], v4 offset:%d" % (24 + 4 * i, 24 + 4 * i + 3, LSUM - MAXX + 16 * i))
if POOL:
    e("v_lshrrev_b32 v5, 5, v1\nv_mul_u32_u24 v5, %d, v5\nv_and_b32 v6, 31, v1\nv_lshl_add_u32 v5, v6, 4, v5\nv_add_u32 v5, %d, v5" % (HS, PB + NS * 64))
    e("ds_read_b128 v[56:59], v5")
e("s_waitcnt lgkmcnt(0)")
e("v_max3_f32 v40, v8, v9, v10")
for i in range(3, 15, 2):
    e("v_max3_f32 v40, v40, v%d, v%d" % (8 + i, 8 + i + 1))
e("v_max_f32 v40, v40, v23")
e("v_add_f32 v42, v24, v25")
for i in range(2, 16):
    e("v_add_f32 v42, v42, v%d" % (24 + i))
e("v_mov_b32 v41, s9\nv_mov_b32 v43, s9")
e("s_lshl_b32 s10, s8, 2\ns_add_u32 s10, s10, s7\ns_lshl_b32 s12, s10, 5\ns_add_u32 s12, s12, %d" % WS_ST)
e("v_lshlrev_b32 v5, 4, v1\nv_add_u32 v6, s12, v5")
e("s_mov_b64 exec, 3\nglobal_store_dwordx4 v6, v[40:43], s[%d:%d] sc1\ns_mov_b64 exec, -1" % (sWS, sWS + 1))
if POOL:
    e("v_mov_b32 v60, v56\nv_mov_b32 v61, s9\nv_mov_b32 v62, v57\nv_mov_b32 v63, s9")
    e("v_mov_b32 v64, v58\nv_mov_b32 v65, s9\nv_mov_b32 v66, v59\nv_mov_b32 v67, s9")
    e("s_lshl_b32 s12, s10, 11\ns_add_u32 s12, s12, %d\nv_add_u32 v6, s12, v5" % WS_PP)
    e("global_store_dwordx4 v6, v[60:63], s[%d:%d] sc1\nglobal_store_dwordx4 v6, v[64:67], s[%d:%d] offset:1024 sc1" % (sWS, sWS + 1, sWS, sWS + 1))
N4A = NPRE
if P["B3A"] >= 0:
    for ks in range(NPRE, min(4, NPRE + P["wo4a"])):
        wo_load(ks)
        N4A = ks + 1
    e("s_barrier            ; B3a")
e("s_lshl_b32 s10, s8, 7\ns_add_u32 s10, s10, %d" % WS_ST)
e("v_and_b32 v5, 1, v1\nv_lshlrev_b32 v5, 4, v5\nv_add_u32 v5, s10, v5")
e("s_mov_b32 s13, 0")
e("L_polls:")
for s_ in range(4):
    e("global_load_dwordx4 v[%d:%d], v5, s[%d:%d] offset:%d sc1" % (8 + 4 * s_, 8 + 4 * s_ + 3, sWS, sWS + 1, 32 * s_))
e("s_waitcnt vmcnt(0)")
tags_ok([8 + 4 * k + o for k in range(4) for o in (1, 3)], "L_polls_done", 0, 0)
spin_guard("s13", "L_polls_done")
e("s_sleep %d\ns_branch L_polls" % P["ssleep"])
e("L_polls_done:")
e("v_max3_f32 v24, v8, v12, v16\nv_max_f32 v24, v24, v20")
e("s_mov_b32 s15, 0x%08x" % CEXP)
for s_ in range(4):
    e("v_sub_f32 v%d, v%d, v24\nv_mul_f32 v%d, s15, v%d" % (26 + s_, 8 + 4 * s_, 26 + s_, 26 + s_))
for s_ in range(4):
    e("v_exp_f32 v%d, v%d" % (26 + s_, 26 + s_))
e("s_nop 0")
e("v_mul_f32 v30, v26, v10\nv_fmac_f32 v30, v27, v14\nv_fmac_f32 v30, v28, v18\nv_fmac_f32 v30, v29, v22")
e("v_rcp_f32 v31, v30\ns_nop 0\nv_fma_f32 v32, -v30, v31, 2.0\nv_mul_f32 v31, v31, v32")
if not POOL:
    for s_ in range(4):
        e("v_mul_f32 v%d, v%d, v31" % (26 + s_, 26 + s_))
    e("s_nop 1")
    for s_ in range(4):
        e("v_mov_b32_dpp v%d, v%d quad_perm:[0,0,0,0] row_mask:0xf bank_mask:0xf" % (48 + s_, 26 + s_))
        e("v_mov_b32_dpp v%d, v%d quad_perm:[1,1,1,1] row_mask:0xf bank_mask:0xf" % (52 + s_, 26 + s_))
else:
    e("s_nop 1")
    e("v_mov_b32_dpp v48, v31 quad_perm:[0,0,0,0] row_mask:0xf bank_mask:0xf\nv_mov_b32_dpp v52, v31 quad_perm:[1,1,1,1] row_mask:0xf bank_mask:0xf")
    e("v_mov_b32 v33, v26")
    for k in range(1, 4):
        e("s_cmp_eq_u32 s7, %d\ns_cselect_b64 s[40:41], -1, 0\nv_cndmask_b32 v33, v33, v%d, s[40:41]" % (k, 26 + k))
    e("v_lshlrev_b32 v34, 2, v1\nv_add_u32 v34, %d, v34\ns_mov_b64 exec, 3\nds_write_b32 v34, v33\ns_mov_b64 exec, -1" % FME)
    for o in range(4):
        e("v_mov_b32_dpp v%d, v%d quad_perm:[0,0,0,0] row_mask:0xf bank_mask:0xf" % (36 + o, 26 + o))
        e("v_mov_b32_dpp v%d, v%d quad_perm:[1,1,1,1] row_mask:0xf bank_mask:0xf" % (40 + o, 26 + o))
    e("s_mov_b32 s40, 0\ns_mov_b32 s41, -1")
    for o in range(4):
        e("v_cndmask_b32 v%d, v%d, v%d, s[40:41]" % (36 + o, 36 + o, 40 + o))
    e("s_lshl_b32 s10, s8, 13\ns_add_u32 s10, s10, %d\nv_lshlrev_b32 v5, 4, v1\nv_add_u32 v5, s10, v5\nv_add_u32 v6, 4096, v5" % WS_PP)
    e("s_mov_b32 s13, 0")
    GP = 56
    e("L_pollp:")
    for o in range(4):
        for i in range(2):
            r = GP + 8 * o + 4 * i
            e("global_load_dwordx4 v[%d:%d], v%d, s[%d:%d] offset:%d sc1" % (r, r + 3, 5 if o < 2 else 6, sWS, sWS + 1, (o & 1) * 2048 + i * 1024))
    e("s_waitcnt vmcnt(0)")
    tags_ok([GP + 4 * k + o for k in range(8) for o in (1, 3)], "L_pollp_done", 12, 13)
    spin_guard("s13", "L_pollp_done")
    e("s_sleep %d\ns_branch L_pollp" % P["ssleep"])
    e("L_pollp_done:")
    e("v_lshrrev_b32 v7, 5, v1\nv_mul_u32_u24 v7, %d, v7\nv_and_b32 v8, 31, v1\nv_lshl_add_u32 v7, v8, 4, v7\nv_add_u32 v7, %d, v7" % (HS, PPB))
    for o in range(4):
        for i in range(2):
            r = GP + 8 * o + 4 * i
            for d in (0, 2):
                e("v_lshlrev_b32 v8, 16, v%d\nv_and_b32 v9, 0xffff0000, v%d" % (r + d, r + d))
                e("v_mul_f32 v8, v8, v%d\nv_mul_f32 v9, v9, v%d" % (36 + o, 36 + o))
                e("v_cvt_pk_bf16_f32 v%d, v8, v9" % (r + d // 2))
            e("ds_write_b64 v7, v[%d:%d] offset:%d" % (r, r + 1, o * 512 + i * 8))
    e("s_waitcnt lgkmcnt(0)")
    e("s_barrier            ; B3b")
for ks in range(N4A, 4):
    wo_load(ks)
e("s_branch L_h_b4")
e("L_h_wo2:")
for ks in range(NPRE, 4):
    wo_load(ks)
if P["B3A"] >= 0:
    e("s_barrier            ; B3a")
if POOL:
    e("s_barrier            ; B3b")
e("L_h_b4:")
stamp(4)
e("s_lshl_b32 s10, s8, 2\ns_add_u32 s10, s10, s7\ns_lshl_b32 s10, s10, 12\ns_add_u32 s10, s10, %d" % WS_OP)
e("v_lshlrev_b32 v5, 4, v1\nv_add_u32 v5, s10, v5")
e("v_lshlrev_b32 v6, 1, v1\nv_add_u32 v6, %d, v6" % OST)
e("v_lshlrev_b32 v7, 4, v3\nv_add_u32 v7, %d, v7" % OST)
e("s_lshl_b32 s11, s5, 2\ns_add_u32 s11, s11, s7          ; p")
e("s_mul_i32 s12, s6, 28\ns_lshl_b32 s13, s3, 3\ns_add_u32 s12, s12, s13\ns_lshl_b32 s12, s12, 5\ns_add_u32 s12, s12, s11\ns_lshl_b32 s12, s12, 7\ns_add_u32 s12, s12, %d" % WS_OUT)
e("v_lshrrev_b32 v44, 1, v2\nv_lshlrev_b32 v44, 12, v44")
e("v_and_b32 v45, 1, v2\nv_lshl_add_u32 v45, v45, 2, v3\nv_lshl_add_u32 v44, v45, 4, v44\nv_add_u32 v44, s12, v44")
e("s_mul_i32 s12, s6, 28\ns_add_u32 s12, s12, s11\ns_lshl_b32 s12, s12, 12\ns_add_u32 s12, s12, %d" % WS_OUT)
e("v_lshlrev_b32 v46, 4, v1\nv_add_u32 v46, s12, v46")
e("s_mov_b32 s48, 0xffff0000\ns_mov_b32 s49, 0\ns_mov_b32 s50, 0\ns_mov_b32 s51, 0x0000ffff\ns_mov_b32 s52, 0\ns_mov_b32 s53, 0xffff0000")
e("s_barrier            ; B4")
if DSP == 4:
    e("s_memrealtime s[94:95]\ns_waitcnt lgkmcnt(0)")
stamp(5)
e("s_cmp_lg_u32 s3, 0\ns_cbranch_scc1 L_h_b5")
e("s_mov_b32 s13, 0")
e("L_polla:")
for s_ in range(4):
    e("global_load_dwordx4 v[%d:%d], v5, s[%d:%d] offset:%d sc1" % (8 + 4 * s_, 8 + 4 * s_ + 3, sWS, sWS + 1, 1024 * s_))
e("s_waitcnt vmcnt(0)")
tags_ok([8 + 4 * k + o for k in range(4) for o in (1, 3)], "L_polla_done", 0, 0)
spin_guard("s13", "L_polla_done")
if P["asleep"]:
    e("s_sleep %d" % P["asleep"])
e("s_branch L_polla")
e("L_polla_done:")
if POOL:
    e("v_add_f32 v24, v8, v12\nv_add_f32 v25, v10, v14\nv_add_f32 v26, v16, v20\nv_add_f32 v27, v18, v22")
    e("v_add_f32 v24, v24, v26\nv_add_f32 v25, v25, v27\nv_mul_f32 v24, v24, v48\nv_mul_f32 v25, v25, v52")
else:
    e("v_mul_f32 v24, v48, v8\nv_mul_f32 v25, v52, v10")
    for s_ in range(1, 4):
        e("v_fmac_f32 v24, v%d, v%d\nv_fmac_f32 v25, v%d, v%d" % (48 + s_, 8 + 4 * s_, 52 + s_, 10 + 4 * s_))
e("v_cvt_pk_bf16_f32 v24, v24, v25")
e("ds_write_b16 v6, v24\nds_write_b16_d16_hi v6, v24 offset:128")
e("s_waitcnt lgkmcnt(0)")
e("L_h_b5:")
if DSP == 5:
    e("s_memrealtime s[94:95]\ns_waitcnt lgkmcnt(0)")
stamp(6)
e("s_barrier")
for ks in range(4):
    e("ds_read_b128 v[%d:%d], v7 offset:%d" % (8 + 4 * ks, 8 + 4 * ks + 3, ks * 64))
OA = 56
for ks in range(4):
    e("s_waitcnt lgkmcnt(%d)" % (3 - ks))
    for t in range(8):
        mfma16(OA + 4 * t, 8 + 4 * ks, WOH[ks] + t * 4, None if ks == 0 else OA + 4 * t)
e("v_mov_b32 v25, s9\nv_mov_b32 v27, s9")
e("s_nop 7")
e("v_cndmask_b32 v24, v%d, v%d, s[48:49]\nv_cndmask_b32 v26, v%d, v%d, s[48:49]" % (OA, OA + 8, OA + 4, OA + 12))
e("v_cndmask_b32 v24, v24, v%d, s[50:51]\nv_cndmask_b32 v26, v26, v%d, s[50:51]" % (OA + 16, OA + 20))
e("v_cndmask_b32 v24, v24, v%d, s[52:53]\nv_cndmask_b32 v26, v26, v%d, s[52:53]" % (OA + 24, OA + 28))
e("s_cmp_eq_u32 s3, 3\ns_cselect_b32 s12, 0x00ff00ff, -1\ns_mov_b32 exec_lo, s12\ns_mov_b32 exec_hi, s12")
e("global_store_dwordx4 v44, v[24:27], s[%d:%d] sc1" % (sWS, sWS + 1))
e("s_mov_b64 exec, -1")
stamp(7)
e("s_cmp_lg_u32 s3, 0\ns_cbranch_scc1 L_h_done")
e("s_cmp_ge_u32 s11, 28\ns_cbranch_scc1 L_h_done")
e("s_mov_b32 s13, 0")
e("L_pollo:")
for i in range(4):
    e("global_load_dwordx4 v[%d:%d], v46, s[%d:%d] offset:%d sc1" % (8 + 4 * i, 8 + 4 * i + 3, sWS, sWS + 1, 1024 * i))
e("s_waitcnt vmcnt(0)")
tags_ok([8 + 4 * k + o for k in range(4) for o in (1, 3)], "L_pollo_done", 0, 0)
spin_guard("s13", "L_pollo_done")
if P["osleep"]:
    e("s_sleep %d" % P["osleep"])
e("s_branch L_pollo")
e("L_pollo_done:")
e("v_add_f32 v24, v8, v12\nv_add_f32 v25, v10, v14\nv_add_f32 v26, v16, v20\nv_add_f32 v27, v18, v22")
e("v_add_f32 v24, v24, v26\nv_add_f32 v25, v25, v27")
e("s_nop 1")
e("v_add_f32_dpp v24, v24, v24 row_ror:8 row_mask:0xf bank_mask:0xf\nv_add_f32_dpp v25, v25, v25 row_ror:8 row_mask:0xf bank_mask:0xf")
e("v_mov_b32 v26, v24\nv_mov_b32 v27, v25\ns_nop 1")
e("v_permlane16_swap_b32 v24, v26\nv_permlane16_swap_b32 v25, v27")
e("v_add_f32 v24, v24, v26\nv_add_f32 v25, v25, v27")
e("v_mov_b32 v26, v24\nv_mov_b32 v27, v25\ns_nop 1")
e("v_permlane32_swap_b32 v24, v26\nv_permlane32_swap_b32 v25, v27")
e("v_add_f32 v24, v24, v26\nv_add_f32 v25, v25, v27")
e("v_cvt_pk_bf16_f32 v24, v24, v25")
e("s_mul_i32 s12, s6, 896\ns_lshl_b32 s13, s11, 5\ns_add_u32 s12, s12, s13")
e("v_lshlrev_b32 v26, 2, v1\nv_add_u32 v26, s12, v26")
e("s_mov_b64 exec, 0xff")
e("global_store_dword v26, v24, s[%d:%d]" % (sOUT, sOUT + 1))
e("s_cmp_lg_u32 s2, 0\ns_cbranch_scc1 L_h_done")
e("s_mov_b64 exec, 1")
e("v_mov_b32 v26, %d\nv_mov_b32 v27, s9" % WS_E)
e("global_store_dword v26, v27, s[%d:%d] sc1      ; next launch's epoch" % (sWS, sWS + 1))
if DSP and not P.get("diagall", 0):
    e("s_cmp_lg_u32 s2, 0\ns_cbranch_scc1 L_h_done")
    if DSP == 1:
        e("s_memrealtime s[94:95]\ns_waitcnt lgkmcnt(0)")
    e("s_sub_u32 s12, s94, s92")
    e("s_min_u32 s12, s12, 20000")
    e("s_memrealtime s[94:95]\ns_waitcnt lgkmcnt(0)\ns_add_u32 s13, s94, s12")
    e("L_dspin:\ns_memrealtime s[94:95]\ns_waitcnt lgkmcnt(0)\ns_sub_u32 s14, s13, s94\ns_cmp_gt_i32 s14, 0\ns_cbranch_scc1 L_dspin")
e("L_h_done:")
if DSP and P.get("diagall", 0):
    e("s_cmp_lg_u32 s3, 0\ns_cbranch_scc1 L_dsp_done")
    e("s_sub_u32 s12, s94, s92\ns_min_u32 s12, s12, 20000\ns_add_u32 s13, s92, s12\ns_add_u32 s13, s13, s12\ns_add_u32 s13, s13, 6000")
    e("L_dspin:\ns_memrealtime s[94:95]\ns_waitcnt lgkmcnt(0)\ns_sub_u32 s14, s13, s94\ns_cmp_gt_i32 s14, 0\ns_cbranch_scc1 L_dspin")
    e("L_dsp_done:")
stamp(8)
if STAMPS:
    e("s_add_u32 s3, s3, 4")
stamp_flush(9)
e("L_end:")
e("s_endpgm")

e('.section .rodata,"a"\n.p2align 6\n.amdhsa_kernel %s' % KN)
e("  .amdhsa_next_free_vgpr 256\n  .amdhsa_next_free_sgpr 96\n  .amdhsa_accum_offset 256")
e("  .amdhsa_group_segment_fixed_size 0\n  .amdhsa_kernarg_size 64\n  .amdhsa_user_sgpr_count 2\n  .amdhsa_user_sgpr_kernarg_segment_ptr 1\n  .amdhsa_system_sgpr_workgroup_id_x 1")
e("  .amdhsa_float_denorm_mode_32 3")
e(".end_amdhsa_kernel")
open(out, "w").write("\n".join(L) + "\n")
```

```python
import sys, struct, copy

out = sys.argv[1]
P = dict(stamps=0, DI=6, DT=9, LAK=2, LAV=2, HOLD=4, B0AT=2, PBL=2, PEVERY=2, PMAX=0, PB2=2,
         NS=24, B3B=99, B3A=13, wo4a=1, wopre=2, worr=8, woprio=1, prio=1, spinmax=200000,
         kflags="nt", vflags="nt", wqflags="nt", woflags="nt", xflags="none", asleep=0, osleep=0, ssleep=8, MAP=1, RANK=0, QMODE=2, gflags="sc1", XLO=1, XHI=1, TLO=85, THI=170, RK1=9, RK2=3)
for a in sys.argv[2:]:
    k, v = a.split("=")
    P[k] = int(v) if v.lstrip("-").isdigit() else v
def fl(name):
    return P[name].replace("+", " ").replace("none", "")
kflags, vflags, wqflags, woflags, xflags = fl("kflags"), fl("vflags"), fl("wqflags"), fl("woflags"), fl("xflags")
STAMPS = P["stamps"]
NS = P["NS"]
NP = 32 - NS
POOL = NP > 0
assert NP in (0, 8)

L = []
def e(s=""):
    L.extend(s.split("\n"))

KN = "standalone__gqa_block_cached__decode_kernel"

WQS = 131072
PB = 131072
HS = 2112
PPB = PB + 4352
TKB = PPB + 4352
FME = TKB + 192
QB = 147456
MAXX = QB + 1024
LSUM = MAXX + 128
TAGL = LSUM + 128
OST = TAGL + 64
DBGL = OST + 256
LVL = DBGL + 64
LDS_TOTAL = LVL + 64
assert FME + 8 <= QB

WS_E = 0x0
WS_CNT = 0x10000
WS_ST = 0x30000
WS_OP = 0x40000
WS_OUT = 0x140000
WS_Q = 0x300000
WS_PP = 0x400000
WS_STAMP = 400 * 1024 * 1024
TAGC = 0x9E3779B9
CEXP = struct.unpack("<I", struct.pack("<f", 1.4426950408889634 / 16.0))[0]

e("; @launch grid=(256,1,1) block=(512,1,1) lds=%d" % LDS_TOTAL)
e('.amdgcn_target "amdgcn-amd-amdhsa--gfx950"')
e(".text")
e(".globl %s\n.p2align 8\n.type %s,@function\n%s:" % (KN, KN, KN))

sX, sK, sV, sWQ, sWO, sOUT, sDBG, sWS = 16, 18, 20, 22, 24, 26, 28, 30
stampregs = list(range(64, 84, 2))
def stamp(i):
    if STAMPS:
        e("s_memrealtime s[%d:%d]\ns_waitcnt lgkmcnt(0)" % (stampregs[i], stampregs[i] + 1))
def stamp_flush(n):
    if STAMPS != 1:
        return
    e("s_getreg_b32 s84, hwreg(HW_REG_XCC_ID)")
    e("s_lshl_b32 s85, s2, 3\ns_add_u32 s85, s85, s3\ns_lshl_b32 s85, s85, 7\ns_add_u32 s85, s85, %d" % WS_STAMP)
    e("s_add_u32 s86, s%d, s85\ns_addc_u32 s87, s%d, 0" % (sWS, sWS + 1))
    e("s_mov_b64 exec, 1\nv_mov_b32 v1, 0")
    for i in range(10):
        k = min(i, n - 1)
        e("v_mov_b32 v2, s%d\nv_mov_b32 v3, s%d" % (stampregs[k], stampregs[k] + 1))
        e("global_store_dwordx2 v1, v[2:3], s[86:87] offset:%d\ns_nop 1" % (i * 8))
    e("v_mov_b32 v2, s84\nv_mov_b32 v3, 0\nglobal_store_dwordx2 v1, v[2:3], s[86:87] offset:80\ns_waitcnt vmcnt(0)")

def spin_guard(cnt, label):
    e("s_add_u32 %s, %s, 1\ns_cmp_gt_u32 %s, %d\ns_cbranch_scc1 %s" % (cnt, cnt, cnt, P["spinmax"], label))

def tags_ok(regs, okl, tmp0, tmp1):
    if len(regs) <= 8:
        e("s_mov_b64 s[40:41], 0")
        for r in regs:
            e("v_cmp_ne_u32 vcc, s9, v%d\ns_or_b64 s[40:41], s[40:41], vcc" % r)
    else:
        e("v_min3_u32 v%d, v%d, v%d, v%d\nv_max3_u32 v%d, v%d, v%d, v%d" % (tmp0, regs[0], regs[1], regs[2], tmp1, regs[0], regs[1], regs[2]))
        k = 3
        while k < len(regs):
            if k + 1 < len(regs):
                e("v_min3_u32 v%d, v%d, v%d, v%d\nv_max3_u32 v%d, v%d, v%d, v%d" % (tmp0, tmp0, regs[k], regs[k + 1], tmp1, tmp1, regs[k], regs[k + 1])); k += 2
            else:
                e("v_min_u32 v%d, v%d, v%d\nv_max_u32 v%d, v%d, v%d" % (tmp0, tmp0, regs[k], tmp1, tmp1, regs[k])); k += 1
        e("v_cmp_ne_u32 s[40:41], s9, v%d\nv_cmp_ne_u32 vcc, s9, v%d\ns_or_b64 s[40:41], s[40:41], vcc" % (tmp0, tmp1))
    e("s_cmp_eq_u64 s[40:41], 0\ns_cbranch_scc1 %s" % okl)

e("s_cmp_ge_u32 s2, 256")
e("s_cbranch_scc1 L_end")
if STAMPS:
    e("s_memrealtime s[64:65]")
DSP = P.get("diagspin", 0)
if DSP:
    e("s_memrealtime s[92:93]")
if DSP == 9:
    e("s_waitcnt lgkmcnt(0)\ns_mov_b32 s94, s92")
e("s_load_dwordx16 s[16:31], s[0:1], 0")
e("v_lshrrev_b32 v1, 6, v0")
e("s_and_b32 s56, s2, 7             ; x")
e("v_readfirstlane_b32 s3, v1       ; wave")
e("s_lshr_b32 s4, s2, 3             ; y")
if P["MAP"] == 1:
    e("s_lshr_b32 s7, s56, 1            ; sp")
    e("s_xor_b32 s8, s56, s7\ns_and_b32 s8, s8, 1")
    e("s_lshl_b32 s5, s4, 1\ns_or_b32 s8, s8, s5              ; pair")
    e("s_and_b32 s5, s8, 7              ; hkv\ns_lshr_b32 s6, s8, 3             ; b")
else:
    e("s_mov_b32 s5, s56\ns_and_b32 s6, s4, 7\ns_lshr_b32 s7, s4, 3\ns_lshl_b32 s8, s6, 3\ns_add_u32 s8, s8, s5")
e("v_and_b32 v1, 63, v0             ; lane")
e("s_cmp_ge_u32 s3, 4")
e("s_cbranch_scc1 L_helper")

vKoff = list(range(2, 10)); vKrd = list(range(10, 18)); vVoff = list(range(18, 22)); vVrd = list(range(22, 26))
vPrd, vPwr, vQrd, vMrd, vMwr, vT3 = 26, 27, 28, 29, 30, 31
qB = 32; Sreg = 64; HOLDR = 128
Pa = 128; Vb = 132; acc = 148
vM, vMc, vL, vU = 164, 165, 166, 168
vA = [200, 201, 202, 203]
vOne, vCnt, vTk, vAd = 204, 205, 206, 208
vPP = 213

e("s_lshl_b32 s10, s3, 15")
e("s_lshl_b32 s11, s3, 12")
e("v_lshrrev_b32 v64, 5, v1\nv_and_b32 v65, 31, v1\nv_xor_b32 v65, v65, v64\nv_lshlrev_b32 v65, 4, v65")
e("v_lshl_add_u32 v%d, v64, 9, v65" % vKoff[0])
for n in range(1, 8):
    e("v_xor_b32 v%d, %d, v%d" % (vKoff[n], n << 5, vKoff[0]))
e("s_waitcnt lgkmcnt(0)")
e("s_lshl_b32 s12, s8, 21\ns_lshl_b32 s59, s7, 19\ns_add_u32 s13, s12, s59")
e("s_add_u32 s32, s%d, s13\ns_addc_u32 s33, s%d, 0\ns_mov_b32 s34, 0x80000\ns_mov_b32 s35, 0x20000" % (sK, sK + 1))
e("s_add_u32 s36, s%d, s12\ns_addc_u32 s37, s%d, 0\ns_mov_b32 s38, 0x200000\ns_mov_b32 s39, 0x20000" % (sV, sV + 1))

DI, LAK, LAV, DT = P["DI"], P["LAK"], P["LAV"], P["DT"]
class St:
    def __init__(self):
        self.ops = 0
        self.done = 0
        self.loads = 0
        self.opof = {}
        self.freed = 0
        self.use_level = False
        self.di0 = P.get('DI0', 0)
lbl = [0]
st = St()
NUNITS = 32 + NS + (2 if POOL else 0)
def wait_ops(x):
    if st.ops - st.done > x:
        e("s_waitcnt vmcnt(%d)" % x)
        st.done = st.ops - x
def wait_op(idx):
    if st.done <= idx:
        wait_ops(st.ops - 1 - idx)
def issue_load(di=None, dynsoff=None):
    n, jj = st.loads // 4, st.loads % 4
    if di is None:
        di = st.di0 if st.di0 else DI
        if n >= 32 + NS - P.get('NE', 0):
            di = P.get('DIE', di)
    assert n < st.freed + 8 and n < NUNITS
    if P.get("SLOWB", 0) and st.use_level and st.ops - st.done > di - 1:
        lbl[0] += 1
        k = lbl[0]
        e("s_cmp_eq_u32 s55, 2\ns_cbranch_scc1 L_lv%db\ns_waitcnt vmcnt(%d)\nL_lv%db:" % (k, di - 1, k))
        wait_ops(di - 1 + P["SLOWB"])
    elif P["RANK"] and st.use_level and st.ops - st.done > di - 1 - P["XLO"]:
        lbl[0] += 1
        k = lbl[0]
        e("s_cmp_lg_u32 s55, 0\ns_cbranch_scc1 L_lv%da\ns_waitcnt vmcnt(%d)\nL_lv%da:" % (k, di - 1 - P["XLO"], k))
        e("s_cmp_eq_u32 s55, 2\ns_cbranch_scc1 L_lv%db\ns_waitcnt vmcnt(%d)\nL_lv%db:" % (k, di - 1, k))
        wait_ops(di - 1 + P["XHI"])
    else:
        wait_ops(di - 1)
    if jj == 0:
        e("s_add_u32 m0, s10, %d" % ((n % 8) * 4096))
        if n < 32:
            e("s_add_u32 s14, s11, %d" % (n * 16384))
        elif n < 32 + NS:
            e("s_add_u32 s14, s59, %d" % ((n - 32) * 16384))
        else:
            assert dynsoff is not None
            e("s_mov_b32 s14, %s" % dynsoff)
    if n < 32:
        e("buffer_load_dwordx4 v%d, s[32:35], s14 offen offset:%d %s lds" % (vKoff[(n & 1) * 4 + jj], jj * 1024, kflags))
    else:
        e("buffer_load_dwordx4 v%d, s[36:39], s14 offen offset:%d %s lds" % (vVoff[jj], jj * 1024, vflags))
    st.opof[st.loads] = st.ops
    st.ops += 1; st.loads += 1
    if P.get("trace", 0) and jj == 3 and n < 64:
        e("s_memrealtime s[84:85]\ns_waitcnt lgkmcnt(0)\nv_writelane_b32 v0, s84, %d" % n)
def pump_until(nunits, di=None):
    nunits = min(nunits, 32 + NS, st.freed + 8)
    while st.loads < 4 * nunits:
        issue_load(di)
def pump(k, di=None):
    for _ in range(k):
        if st.loads // 4 < min(32 + NS, st.freed + 8):
            issue_load(di)
def need(nunits):
    wait_op(st.opof[4 * nunits - 1])

if P.get("SLOWB", 0):
    e("s_lshr_b32 s55, s4, 2\ns_cmp_eq_u32 s55, 3\ns_cselect_b32 s55, 2, 1")
    st.use_level = P.get("SLOWFROM", 0) == 0
pump(P.get('DI0', 0) or DI)
e("v_lshrrev_b32 v64, 3, v1\nv_lshrrev_b32 v65, 1, v64\nv_and_b32 v65, 3, v65\nv_lshlrev_b32 v65, 1, v65")
e("v_and_b32 v66, 7, v1\nv_xor_b32 v66, v66, v65\nv_lshlrev_b32 v66, 4, v66\nv_lshl_add_u32 v66, v64, 9, v66")
e("s_lshl_b32 s15, s3, 7\nv_add_u32 v%d, s15, v66" % vVoff[0])
for jj in range(1, 4):
    e("v_add_u32 v%d, %d, v%d" % (vVoff[jj], jj * 3072, vVoff[0]))
e("v_and_b32 v64, 15, v1             ; n\nv_lshrrev_b32 v65, 4, v1          ; g")
e("v_xor_b32 v66, v64, v65\nv_lshlrev_b32 v66, 4, v66\nv_lshl_add_u32 v66, v64, 9, v66\nv_add_u32 v%d, s10, v66" % vKrd[0])
for i in range(1, 8):
    e("v_xor_b32 v%d, %d, v%d" % (vKrd[i], i << 6, vKrd[0]))
e("v_and_b32 v66, 1, v65\nv_lshrrev_b32 v67, 3, v64\nv_lshl_or_b32 v67, v66, 1, v67")
e("v_lshrrev_b32 v68, 2, v64\nv_lshl_add_u32 v68, v66, 2, v68\nv_lshlrev_b32 v68, 7, v68")
e("v_lshrrev_b32 v69, 1, v65\nv_lshl_add_u32 v68, v69, 11, v68\nv_and_b32 v70, 3, v64\nv_lshl_add_u32 v68, v70, 3, v68\nv_add_u32 v68, s10, v68")
for t in range(4):
    e("v_xor_b32 v71, %d, v67\nv_lshl_add_u32 v%d, v71, 5, v68" % (t, vVrd[t]))
e("v_and_b32 v66, 1, v64             ; head\nv_mul_u32_u24 v72, %d, v66" % HS)
e("v_lshl_add_u32 v%d, v65, 4, v72\nv_add_u32 v%d, %d, v%d" % (vPrd, vPrd, PB, vPrd))
e("s_lshr_b32 s15, s3, 1\ns_lshl_b32 s15, s15, 5\ns_and_b32 s40, s3, 1\ns_lshl_b32 s40, s40, 3\ns_add_u32 s15, s15, s40\ns_add_u32 s15, s15, %d" % PB)
e("v_lshl_add_u32 v%d, v69, 6, v72\nv_and_b32 v73, 1, v65\nv_lshl_add_u32 v%d, v73, 4, v%d\nv_add_u32 v%d, s15, v%d" % (vPwr, vPwr, vPwr, vPwr, vPwr))
e("v_lshlrev_b32 v%d, 9, v66\nv_lshl_add_u32 v%d, v65, 4, v%d\nv_add_u32 v%d, %d, v%d" % (vQrd, vQrd, vQrd, vQrd, QB, vQrd))
e("v_lshlrev_b32 v%d, 6, v66\nv_add_u32 v%d, %d, v%d" % (vMrd, vMrd, MAXX, vMrd))
e("s_lshl_b32 s15, s3, 4\nv_lshl_add_u32 v%d, v65, 2, v%d\nv_add_u32 v%d, s15, v%d" % (vMwr, vMrd, vMwr, vMwr))

HOLDN = P["HOLD"]; B0AT = P["B0AT"]
pump_until(8)
if B0AT == 0:
    e("s_barrier")
for T in range(HOLDN):
    need(2 * T + 2)
    for i in range(8):
        r = HOLDR + 32 * T + 4 * i
        e("ds_read_b128 v[%d:%d], v%d offset:%d" % (r, r + 3, vKrd[i], (T % 4) * 8192))
    e("s_waitcnt lgkmcnt(0)")
    st.freed = 2 * T + 2
    pump_until(st.freed + 8)
    if B0AT == T + 1:
        e("s_barrier")
stamp(1)
st.di0 = P.get("DI1", 0)
if P.get("SLOWB", 0):
    st.use_level = True
e("s_barrier")
stamp(2)
for i in range(8):
    e("ds_read_b128 v[%d:%d], v%d offset:%d" % (qB + 4 * i, qB + 4 * i + 3, vQrd, i * 64))
e("v_mov_b32 v%d, %d\nds_read_b32 v%d, v%d\ns_waitcnt lgkmcnt(0)\nv_readfirstlane_b32 s9, v%d" % (vT3, TAGL, vT3, vT3, vT3))

def mfma16(d, a, b, c):
    e("v_mfma_f32_16x16x32_bf16 v[%d:%d], v[%d:%d], v[%d:%d], %s" % (d, d + 3, a, a + 3, b, b + 3, "0" if c is None else "v[%d:%d]" % (c, c + 3)))
def ktile(T, from_regs):
    e("; K tile %d" % T)
    S = Sreg + 4 * T
    if from_regs:
        for i in range(8):
            mfma16(S, HOLDR + 32 * T + 4 * i, qB + 4 * i, None if i == 0 else S)
        return
    nd = 2 * T + 2
    pump_until(nd + LAK)
    need(nd)
    for i in range(8):
        e("ds_read_b128 v[%d:%d], v%d offset:%d" % (AregK + 4 * i, AregK + 4 * i + 3, vKrd[i], (T % 4) * 8192))
    for i in range(8):
        e("s_waitcnt lgkmcnt(%d)" % (7 - i))
        mfma16(S, AregK + 4 * i, qB + 4 * i, None if i == 0 else S)
    st.freed = nd
    if T == HOLDN:
        pump(DI)
if HOLDN == 4:
    order = [(0, True)] + [(T, False) for T in range(4, 8)] + [(1, True), (2, True), (3, True)] + [(T, False) for T in range(8, 16)]
    AregK = HOLDR
else:
    order = [(T, False) for T in range(HOLDN, HOLDN + 4)] + [(T, True) for T in range(HOLDN)] + [(T, False) for T in range(HOLDN + 4, 16)]
    AregK = HOLDR + 32 * HOLDN
def read_level(k):
    e("v_mov_b32 v%d, %d\nds_read_b32 v%d, v%d\ns_waitcnt lgkmcnt(0)\nv_readfirstlane_b32 s55, v%d" % (vT3, LVL + 4 * k, vT3, vT3, vT3))
    st.use_level = True
def round_scores(T):
    S = Sreg + 4 * T
    for h in (0, 2):
        e("v_cvt_pk_bf16_f32 v%d, v%d, v%d" % (vT3, S + h, S + h + 1))
        e("v_lshlrev_b32 v%d, 16, v%d\nv_and_b32 v%d, 0xffff0000, v%d" % (S + h, vT3, S + h + 1, vT3))
prevT = None
for idx, (T, fr) in enumerate(order):
    if HOLDN and 2 <= idx < HOLDN + 4:
        pump(P["PBL"])
    if P["RANK"] and idx == P["RK1"]:
        read_level(0)
    if idx == P.get("B1B", -1):
        e("s_barrier")
    ktile(T, fr)
    if P.get("SROUND", 1):
        if prevT is not None:
            round_scores(prevT)
        prevT = T
stamp(3)
st.di0 = 0
e("; softmax")
pump(1, DT)
e("s_nop 7")
if P.get("SROUND", 1):
    round_scores(prevT)
e("v_max3_f32 v%d, v%d, v%d, v%d" % (vM, Sreg, Sreg + 1, Sreg + 2))
i = 3; cnt = 0
while i < 64:
    if i + 1 < 64:
        e("v_max3_f32 v%d, v%d, v%d, v%d" % (vM, vM, Sreg + i, Sreg + i + 1)); i += 2
    else:
        e("v_max_f32 v%d, v%d, v%d" % (vM, vM, Sreg + i)); i += 1
    cnt += 1
    if P["PMAX"] and cnt % P["PMAX"] == 0:
        pump(1, DT)
e("s_mov_b32 exec_lo, 0x00030003\ns_mov_b32 exec_hi, 0x00030003")
e("ds_write_b32 v%d, v%d" % (vMwr, vM))
e("s_mov_b64 exec, -1")
pump(P["PB2"], DT)
e("s_waitcnt lgkmcnt(0)")
e("s_barrier")
for i in range(4):
    e("ds_read_b128 v[%d:%d], v%d offset:%d" % (vU + 4 * i, vU + 4 * i + 3, vMrd, 16 * i))
e("s_waitcnt lgkmcnt(0)")
e("v_max3_f32 v%d, v%d, v%d, v%d" % (vM, vU, vU + 1, vU + 2))
for i in range(3, 15, 2):
    e("v_max3_f32 v%d, v%d, v%d, v%d" % (vM, vM, vU + i, vU + i + 1))
e("v_max_f32 v%d, v%d, v%d" % (vM, vM, vU + 15))
e("s_mov_b32 s15, 0x%08x" % CEXP)
e("v_mul_f32 v%d, s15, v%d" % (vMc, vM))
e("v_mov_b32 v%d, 0\nv_mov_b32 v%d, 0" % (vL, vL + 1))
def fold(p0):
    e("v_add_f32 v%d, v%d, v%d\nv_add_f32 v%d, v%d, v%d" % (vL, vL, p0, vL + 1, vL + 1, p0 + 1))
    e("v_add_f32 v%d, v%d, v%d\nv_add_f32 v%d, v%d, v%d" % (vL, vL, p0 + 2, vL + 1, vL + 1, p0 + 3))
    e("v_cvt_pk_bf16_f32 v%d, v%d, v%d\nv_cvt_pk_bf16_f32 v%d, v%d, v%d" % (p0, p0, p0 + 1, p0 + 1, p0 + 2, p0 + 3))
for T in range(16):
    s0 = Sreg + 4 * T
    for r in range(4):
        e("v_fma_f32 v%d, v%d, s15, -v%d" % (s0 + r, s0 + r, vMc))
    for r in range(4):
        e("v_exp_f32 v%d, v%d" % (s0 + r, s0 + r))
    if T % P["PEVERY"] == P["PEVERY"] - 1:
        pump(1, DT)
    if T > 0:
        fold(Sreg + 4 * (T - 1))
e("s_nop 0")
fold(Sreg + 60)
e("v_add_f32 v%d, v%d, v%d" % (vL, vL, vL + 1))
e("s_mov_b32 exec_lo, 0x00030003\ns_mov_b32 exec_hi, 0x00030003")
for T in range(16):
    e("ds_write_b64 v%d, v[%d:%d] offset:%d" % (vPwr, Sreg + 4 * T, Sreg + 4 * T + 1, T * 128))
e("ds_write_b32 v%d, v%d offset:%d" % (vMwr, vL, LSUM - MAXX))
e("s_mov_b64 exec, -1")
for t in range(16):
    e("v_mov_b32 v%d, 0" % (acc + t))
if POOL:
    e("s_lshl_b32 s12, s8, 7\ns_add_u32 s12, s12, %d\nv_mov_b32 v%d, s12\nv_mov_b32 v%d, 1\nv_mov_b32 v%d, %d" % (WS_CNT, vCnt, vOne, vTk, TKB))
    e("v_add_u32 v%d, %d, v%d" % (vPP, PPB - PB, vPrd))
pump(P["PB2"], DT)
e("s_waitcnt lgkmcnt(0)")
e("s_barrier")
stamp(4)
if P.get("SLOWB", 0) and not P.get("SLOWV", 0):
    st.use_level = False

def vunit_compute(paddr, poff, vaddrs, slot):
    e("ds_read_b128 v[%d:%d], v%d offset:%d" % (Pa, Pa + 3, paddr, poff))
    for t in range(4):
        e("ds_read_b64_tr_b16 v[%d:%d], v%d offset:%d" % (Vb + 4 * t, Vb + 4 * t + 1, vaddrs[t], slot))
        e("ds_read_b64_tr_b16 v[%d:%d], v%d offset:%d" % (Vb + 4 * t + 2, Vb + 4 * t + 3, vaddrs[t], slot + 1024))
    for t in range(4):
        e("s_waitcnt lgkmcnt(%d)" % (6 - 2 * t))
        mfma16(acc + 4 * t, Pa, Vb + 4 * t, acc + 4 * t)
def vunit(u):
    n = 32 + u
    e("; V unit %d" % u)
    if P["RANK"] and u == P["RK2"]:
        read_level(1)
    pump_until(n + 1 + LAV)
    need(n + 1)
    vunit_compute(vPrd, u * 64, vVrd, (n % 8) * 4096)
    st.freed = n + 1
    if u in (7, 15) or (u == 23 and not POOL):
        stamp(7 + (u - 7) // 8)

sI, sSo, sPo0, sPo1, sPo2, sV0, sV1, sTk = 60, 61, 62, 63, 88, 89, 90, 91
def decode(tk, po, valid):
    e("s_and_b32 s12, %s, 3\ns_lshr_b32 s13, %s, 2" % (tk, tk))
    e("s_lshl_b32 s%d, s12, 3\ns_add_u32 s%d, s%d, s13\ns_lshl_b32 s%d, s%d, 6" % (po, po, po, po, po))
    e("s_lshl_b32 s12, s12, 19\ns_lshl_b32 s13, s13, 14\ns_add_u32 s12, s12, s13\ns_add_u32 s12, s12, %d" % (NS * 16384))
    e("s_cmp_lt_u32 %s, %d\ns_cselect_b32 s%d, s12, 0x7fff0000" % (tk, 4 * NP, sSo))
    if valid is not None:
        e("s_cselect_b32 s%d, 1, 0" % valid)
def get_ticket_lds(dyn):
    lbl[0] += 1
    k = lbl[0]
    e("s_mov_b32 s15, 0\nL_tk%d:" % k)
    e("ds_read_b32 v%d, v%d%s\ns_waitcnt lgkmcnt(0)\nv_readfirstlane_b32 s%d, v%d" % (vAd + 5 - 5 + 0, vTk, "" if dyn is None else " offset:%d" % (4 * dyn), sTk, vAd))
    spin_guard("s15", "L_tkd%d" % k)
    e("s_cmp_eq_u32 s%d, -1\ns_cbranch_scc1 L_tk%d\nL_tkd%d:" % (sTk, k, k))
def dyn_compute(po):
    e("s_and_b32 s12, s%d, 7\ns_lshl_b32 s12, s12, 12" % sI)
    for t in range(4):
        e("v_add_u32 v%d, s12, v%d" % (vAd + t, vVrd[t]))
    e("v_add_u32 v%d, s%d, v%d" % (vAd + 4, po, vPP))
    vunit_compute(vAd + 4, 0, [vAd + t for t in range(4)], 0)
def dyn_loads():
    e("s_add_u32 s12, s%d, 2\ns_and_b32 s12, s12, 7\ns_lshl_b32 s12, s12, 12\ns_add_u32 m0, s10, s12\ns_mov_b32 s14, s%d" % (sI, sSo))
    for jj in range(4):
        if P.get("DPACE", 0):
            e("s_waitcnt vmcnt(%d)" % (P["DPACE"] - 1))
        e("buffer_load_dwordx4 v%d, s[36:39], s14 offen offset:%d %s lds" % (vVoff[jj], jj * 1024, vflags))
def rescale_acc():
    e("; switch from own scale to the pair's scale")
    e("v_mov_b32 v%d, %d\nds_read_b64 v[%d:%d], v%d\ns_waitcnt lgkmcnt(0)\ns_nop 4" % (vAd, FME, vU, vU + 1, vAd))
    for t in range(4):
        e("v_mul_f32 v%d, v%d, v%d\nv_mul_f32 v%d, v%d, v%d" % (acc + 4 * t, acc + 4 * t, vU, acc + 4 * t + 1, acc + 4 * t + 1, vU + 1))
    e("s_nop 1")

if not POOL:
    for u in range(32):
        if u == P["B3A"]:
            e("s_barrier")
        if u == P.get("B3C", -1):
            e("s_barrier")
        vunit(u)
else:
    UA = NS - 6
    assert P["B3B"] < UA or P["B3B"] >= NS
    for u in range(UA):
        if u == P["B3B"]:
            e("s_barrier")
        if u == P["B3A"]:
            e("s_barrier")
        if u == P.get("B3C", -1):
            e("s_barrier")
        vunit(u)
    e("s_cmp_lg_u32 s3, 0\ns_cbranch_scc1 L_vfollow")
    snap = copy.deepcopy(st)
    for lead in (True, False):
        if not lead:
            st = snap
            e("L_vfollow:")
        tag = "a" if lead else "b"
        aop = {}
        for u in range(UA, NS):
            n = 32 + u
            e("; V unit %d (%s)" % (u, "leader" if lead else "follower"))
            k = u - UA
            if lead and k < 4:
                e("s_mov_b64 exec, 1\nglobal_atomic_add v%d, v%d, v%d, s[%d:%d] sc0 sc1\ns_mov_b64 exec, -1" % (vA[k], vCnt, vOne, sWS, sWS + 1))
                aop[k] = st.ops; st.ops += 1
            pump_until(n + 1 + LAV)
            kk = u - (NS - 2)
            if kk >= 0:
                if lead:
                    wait_op(aop[kk])
                    e("v_readfirstlane_b32 s%d, v%d\ns_mov_b64 exec, 1\nds_write_b32 v%d, v%d offset:%d\ns_mov_b64 exec, -1" % (sTk, vA[kk], vTk, vA[kk], 4 * kk))
                else:
                    get_ticket_lds(kk)
                decode("s%d" % sTk, sPo0 if kk == 0 else sPo1, sV0 if kk == 0 else sV1)
                for jj in range(4):
                    issue_load(None, "s%d" % sSo)
            need(n + 1)
            vunit_compute(vPrd, u * 64, vVrd, (n % 8) * 4096)
            st.freed = n + 1
        stamp(9)
        if P["B3B"] >= NS:
            e("s_barrier")
        rescale_acc()
        e("s_mov_b32 s%d, 0\nv_add_u32 v%d, 8, v%d" % (sI, vTk, vTk))
        e("s_waitcnt vmcnt(4)")
        e("L_pool_%s:" % tag)
        for par in range(2 if lead else 1):
            if lead:
                e("s_waitcnt vmcnt(5)")
                va = vA[2 + par]
                e("v_readfirstlane_b32 s%d, v%d\ns_mov_b64 exec, 1\nds_write_b32 v%d, v%d\ns_mov_b64 exec, -1" % (sTk, va, vTk, va))
            else:
                e("s_waitcnt vmcnt(4)")
                get_ticket_lds(None)
            e("s_cmp_ge_u32 s%d, %d\ns_cbranch_scc1 L_drain_%s" % (sTk, 4 * NP, tag))
            if lead:
                e("s_mov_b64 exec, 1\nglobal_atomic_add v%d, v%d, v%d, s[%d:%d] sc0 sc1\ns_mov_b64 exec, -1" % (va, vCnt, vOne, sWS, sWS + 1))
            decode("s%d" % sTk, sPo2, None)
            dyn_loads()
            dyn_compute(sPo0)
            e("s_mov_b32 s%d, s%d\ns_mov_b32 s%d, s%d\ns_add_u32 s%d, s%d, 1\nv_add_u32 v%d, 4, v%d" % (sPo0, sPo1, sPo1, sPo2, sI, sI, vTk, vTk))
            e("s_mov_b32 s%d, 1\ns_mov_b32 s%d, 1" % (sV0, sV1))
        e("s_branch L_pool_%s" % tag)
        e("L_drain_%s:" % tag)
        e("s_cmp_eq_u32 s%d, 0\ns_cbranch_scc1 L_dr1_%s" % (sV0, tag))
        dyn_compute(sPo0)
        e("L_dr1_%s:" % tag)
        e("s_waitcnt vmcnt(0)")
        e("s_cmp_eq_u32 s%d, 0\ns_cbranch_scc1 L_dr2_%s" % (sV1, tag))
        e("s_add_u32 s%d, s%d, 1" % (sI, sI))
        dyn_compute(sPo1)
        e("L_dr2_%s:" % tag)
        if lead:
            e("s_branch L_vdone")
    e("L_vdone:")
stamp(5)
e("s_lshl_b32 s12, s8, 2\ns_add_u32 s12, s12, s3\ns_lshl_b32 s12, s12, 2\ns_add_u32 s12, s12, s7\ns_lshl_b32 s12, s12, 10\ns_add_u32 s12, s12, %d" % WS_OP)
e("v_lshlrev_b32 v%d, 4, v1\nv_add_u32 v%d, s12, v%d" % (vQrd, vQrd, vQrd))
e("s_mov_b32 s40, 0xffff0000\ns_mov_b32 s41, 0\ns_mov_b32 s42, 0\ns_mov_b32 s43, 0x0000ffff\ns_mov_b32 s44, 0\ns_mov_b32 s45, 0xffff0000")
e("v_mov_b32 v%d, s9\nv_mov_b32 v%d, s9" % (vU + 1, vU + 3))
e("s_nop 3")
for (m, a0) in (("s[40:41]", 4), ("s[42:43]", 8), ("s[44:45]", 12)):
    src0 = (acc + 0, acc + 1) if a0 == 4 else (vU, vU + 2)
    e("v_cndmask_b32 v%d, v%d, v%d, %s" % (vU, src0[0], acc + a0, m))
    e("v_cndmask_b32 v%d, v%d, v%d, %s" % (vU + 2, src0[1], acc + a0 + 1, m))
e("global_store_dwordx4 v%d, v[%d:%d], s[%d:%d] sc1" % (vQrd, vU, vU + 3, sWS, sWS + 1))
e("s_barrier")
if P.get("trace", 0):
    e("s_lshl_b32 s85, s2, 2\ns_add_u32 s85, s85, s3\ns_lshl_b32 s85, s85, 8\ns_add_u32 s85, s85, %d" % (WS_STAMP + 0x100000))
    e("v_lshlrev_b32 v2, 2, v1\nv_add_u32 v2, s85, v2\nglobal_store_dword v2, v0, s[%d:%d]\ns_waitcnt vmcnt(0)" % (sWS, sWS + 1))
stamp(6)
stamp_flush(10)
e("s_endpgm")


def poll2(name, addr, stride, sleep, finish):
    A, B = 96, 112
    def issue(base):
        for i in range(4):
            e("global_load_dwordx4 v[%d:%d], v%d, s[%d:%d] offset:%d sc1" % (base + 4 * i, base + 4 * i + 3, addr, sWS, sWS + 1, stride * i))
    e("s_mov_b32 s13, 0")
    issue(A)
    if P.get("PSTAG", 0):
        e("s_sleep %d          ; offset the second polling round by half a round trip" % P["PSTAG"])
    e("L_%s:" % name)
    issue(B)
    e("s_waitcnt vmcnt(4)")
    tags_ok([A + 4 * k + o for k in range(4) for o in (1, 3)], "L_%s_a" % name, 0, 0)
    issue(A)
    e("s_waitcnt vmcnt(4)")
    tags_ok([B + 4 * k + o for k in range(4) for o in (1, 3)], "L_%s_b" % name, 0, 0)
    spin_guard("s13", "L_%s_b" % name)
    e("s_branch L_%s" % name)
    e("L_%s_a:" % name)
    finish(A)
    e("s_branch L_%s_done" % name)
    e("L_%s_b:" % name)
    finish(B)
    e("L_%s_done:" % name)
e("L_helper:")
e("s_sub_u32 s3, s3, 4              ; hw")
e("v_and_b32 v2, 15, v1             ; n\nv_lshrrev_b32 v3, 4, v1          ; g")
e("s_waitcnt lgkmcnt(0)")
e("s_cmp_lg_u32 s3, 0")
e("s_cbranch_scc0 L_w4")
if B0AT >= 0:
    e("s_barrier            ; B0")
e("s_branch L_h_b1")
e("L_w4:")
if P["prio"]:
    e("s_setprio 3")
e("s_load_dword s9, s[%d:%d], %d     ; epoch word" % (sWS, sWS + 1, WS_E))
if P.get("noq", 0):
    e("s_waitcnt lgkmcnt(0)\ns_add_u32 s9, s9, 0x%08x" % TAGC)
    if B0AT >= 0:
        e("s_barrier            ; B0")
    e("s_branch L_noq")
e("s_mov_b32 s32, s%d\ns_mov_b32 s33, s%d\ns_mov_b32 s34, %d\ns_mov_b32 s35, 0x20000" % (sWQ, sWQ + 1, 448 * 8192))
e("s_mov_b32 s36, s%d\ns_mov_b32 s37, s%d\ns_mov_b32 s38, %d\ns_mov_b32 s39, 0x20000" % (sX, sX + 1, 8 * 896))
QMODE = P['QMODE']
if QMODE == 2:
    e("s_and_b32 s57, s4, 7              ; cl\ns_lshr_b32 s58, s4, 3             ; kq")
    e("s_lshl_b32 s10, s58, 7\ns_mul_i32 s11, s58, 96\ns_add_u32 s11, s11, 64\ns_cmp_lt_u32 s58, 2\ns_cselect_b32 s10, s10, s11")
    e("s_lshl_b32 s11, s10, 13\ns_lshl_b32 s12, s56, 10\ns_add_u32 s11, s11, s12\ns_lshl_b32 s12, s57, 7\ns_add_u32 s11, s11, s12")
    e("v_lshrrev_b32 v4, 3, v1\nv_lshlrev_b32 v4, 13, v4\nv_and_b32 v5, 7, v1\nv_lshl_add_u32 v4, v5, 4, v4")
    XB = 8
    e("v_and_b32 v5, 7, v2\nv_mul_u32_u24 v5, 896, v5\nv_lshl_add_u32 v5, v3, 4, v5")
    e("s_lshl_b32 s10, s10, 1")
    def wq_loads(a, b):
        for m in range(a, b):
            e("s_mov_b32 m0, %d\ns_add_u32 s12, s11, %d" % (WQS + m * 1024, m * 8 * 8192))
            e("buffer_load_dwordx4 v4, s[32:35], s12 offen %s lds" % wqflags)
    def x_load(ks):
        e("buffer_load_dwordx4 v[%d:%d], v5, s[36:39], s10 offen offset:%d %s" % (XB + 4 * ks, XB + 4 * ks + 3, ks * 64, xflags))
    wq_loads(0, 12)
    for ks in range(3):
        x_load(ks)
    e("s_cmp_lt_u32 s58, 2\ns_cbranch_scc0 L_q3")
    wq_loads(12, 16); x_load(3)
    e("L_q3:")
    if POOL:
        e("s_cmp_ge_u32 s4, 8\ns_cbranch_scc1 L_nocnt")
        e("s_lshl_b32 s12, s4, 3\ns_add_u32 s12, s12, s56\ns_lshl_b32 s12, s12, 7\ns_add_u32 s12, s12, %d\nv_mov_b32 v6, s12\nv_mov_b32 v7, 0" % WS_CNT)
        e("s_mov_b64 exec, 1\nglobal_store_dword v6, v7, s[%d:%d] sc1\ns_mov_b64 exec, -1" % (sWS, sWS + 1))
        e("L_nocnt:")
    e("v_lshlrev_b32 v6, 10, v3\nv_lshrrev_b32 v7, 2, v2\nv_lshl_add_u32 v6, v7, 7, v6\nv_and_b32 v7, 3, v2\nv_lshl_add_u32 v6, v7, 3, v6\nv_add_u32 v6, %d, v6" % WQS)
    e("v_and_b32 v7, 7, v2\nv_lshlrev_b32 v7, 17, v7\nv_lshl_add_u32 v7, v3, 5, v7\nv_lshrrev_b32 v24, 3, v2\nv_lshl_add_u32 v7, v24, 4, v7")
    e("s_lshl_b32 s11, s56, 2\ns_add_u32 s11, s11, s58\ns_lshl_b32 s11, s11, 12\ns_lshl_b32 s12, s57, 9\ns_add_u32 s11, s11, s12\ns_add_u32 s11, s11, %d\nv_add_u32 v7, s11, v7" % WS_Q)
    e("s_waitcnt vmcnt(0) lgkmcnt(0)")
    e("s_add_u32 s9, s9, 0x%08x        ; tag of this launch" % TAGC)
    WA = 32; QA = 64
    def q_reads(ks):
        b0 = WA + 16 * (ks & 1)
        for ct in range(4):
            e("ds_read_b64_tr_b16 v[%d:%d], v6 offset:%d" % (b0 + 4 * ct, b0 + 4 * ct + 1, ks * 4096 + ct * 32))
            e("ds_read_b64_tr_b16 v[%d:%d], v6 offset:%d" % (b0 + 4 * ct + 2, b0 + 4 * ct + 3, ks * 4096 + 512 + ct * 32))
    def q_mfma(ks):
        b0 = WA + 16 * (ks & 1)
        for ct in range(4):
            mfma16(QA + 4 * ct, b0 + 4 * ct, XB + 4 * ks, None if ks == 0 else QA + 4 * ct)
    q_reads(0); q_reads(1)
    e("s_waitcnt lgkmcnt(8)"); q_mfma(0)
    q_reads(2)
    e("s_waitcnt lgkmcnt(8)"); q_mfma(1)
    e("s_cmp_lt_u32 s58, 2\ns_cbranch_scc0 L_q3b")
    q_reads(3)
    e("s_waitcnt lgkmcnt(8)"); q_mfma(2)
    e("s_waitcnt lgkmcnt(0)"); q_mfma(3)
    e("s_branch L_q3c\nL_q3b:")
    e("s_waitcnt lgkmcnt(0)"); q_mfma(2)
    e("L_q3c:")
    QT = 96
    e("s_mov_b32 s40, 0xff00ff00\ns_mov_b32 s41, 0xff00ff00")
    for ct in range(4):
        e("v_mov_b32 v%d, s9\nv_mov_b32 v%d, s9" % (QT + 4 * ct + 1, QT + 4 * ct + 3))
    e("s_nop 1")
    for ct in range(4):
        e("v_cndmask_b32 v%d, v%d, v%d, s[40:41]" % (QT + 4 * ct, QA + 4 * ct, QA + 4 * ct + 2))
        e("v_cndmask_b32 v%d, v%d, v%d, s[40:41]" % (QT + 4 * ct + 2, QA + 4 * ct + 1, QA + 4 * ct + 3))
    for ct in range(4):
        e("global_store_dwordx4 v7, v[%d:%d], s[%d:%d] offset:%d sc1" % (QT + 4 * ct, QT + 4 * ct + 3, sWS, sWS + 1, ct * 128))
    stamp(1)
    if POOL:
        e("v_lshlrev_b32 v12, 2, v1\nv_add_u32 v12, %d, v12\nv_mov_b32 v13, -1\ns_mov_b32 exec_lo, -1\ns_mov_b32 exec_hi, 0x0000ffff" % TKB)
        e("ds_write_b32 v12, v13\ns_mov_b64 exec, -1")
    e("s_lshl_b32 s11, s8, 14\ns_add_u32 s11, s11, %d" % WS_Q)
    e("v_lshlrev_b32 v8, 4, v1\nv_add_u32 v8, s11, v8")
    for kq in range(1, 4):
        e("v_add_u32 v%d, %d, v8" % (8 + kq, kq * 4096))
    e("s_mov_b32 s13, 0")
    GQ = 128
    if B0AT >= 0:
        e("s_barrier            ; B0")
    e("L_pollq:")
    for kq in range(4):
        for i in range(4):
            r = GQ + 16 * kq + 4 * i
            e("global_load_dwordx4 v[%d:%d], v%d, s[%d:%d] offset:%d %s" % (r, r + 3, 8 + kq, sWS, sWS + 1, i * 1024, fl("gflags")))
    e("s_waitcnt vmcnt(0)")
    tags_ok([GQ + 4 * k + o for k in range(16) for o in (1, 3)], "L_pollq_done", 12, 13)
    spin_guard("s13", "L_pollq_done")
    e("s_branch L_pollq")
    e("L_pollq_done:")
    e("v_lshlrev_b32 v7, 2, v1\nv_add_u32 v7, %d, v7" % QB)
    for i in range(4):
        r = GQ + 4 * i
        e("v_add_f32 v%d, v%d, v%d\nv_add_f32 v%d, v%d, v%d" % (r, r, r + 16, r + 2, r + 2, r + 18))
        e("v_add_f32 v%d, v%d, v%d\nv_add_f32 v%d, v%d, v%d" % (r + 32, r + 32, r + 48, r + 34, r + 34, r + 50))
        e("v_add_f32 v%d, v%d, v%d\nv_add_f32 v%d, v%d, v%d" % (r, r, r + 32, r + 2, r + 2, r + 34))
        e("v_cvt_pk_bf16_f32 v%d, v%d, v%d" % (r, r, r + 2))
        e("ds_write_b32 v7, v%d offset:%d" % (r, i * 256))
else:
    assert not POOL
    e("s_lshl_b32 s10, s56, 5\ns_add_u32 s10, s10, s4           ; c")
    e("v_lshrrev_b32 v4, 1, v1\nv_lshlrev_b32 v4, 13, v4\nv_and_b32 v5, 1, v1\nv_lshl_add_u32 v4, v5, 4, v4")
    e("s_lshl_b32 s11, s10, 5\nv_add_u32 v4, s11, v4")
    for ks in range(14):
        e("s_mov_b32 m0, %d\ns_mov_b32 s12, %d" % (WQS + ks * 1024, ks * 262144))
        if P.get("WQB", 0) and ks >= P["WQB"]:
            e("s_waitcnt vmcnt(%d)" % (P["WQB"] - 1))
        e("buffer_load_dwordx4 v4, s[32:35], s12 offen %s lds" % wqflags)
    XB = 8
    e("v_and_b32 v5, 7, v2\nv_mul_u32_u24 v5, 896, v5\nv_lshl_add_u32 v5, v3, 4, v5\nv_lshrrev_b32 v6, 3, v2\nv_lshl_add_u32 v5, v6, 6, v5")
    for k2 in range(7):
        e("buffer_load_dwordx4 v[%d:%d], v5, s[36:39], 0 offen offset:%d %s" % (XB + 4 * k2, XB + 4 * k2 + 3, k2 * 128, xflags))
    e("v_lshlrev_b32 v6, 8, v3\nv_lshl_add_u32 v6, v2, 3, v6\nv_add_u32 v6, %d, v6" % WQS)
    e("v_lshlrev_b32 v7, 14, v2\nv_lshl_add_u32 v7, v3, 4, v7")
    e("s_lshl_b32 s11, s10, 6\ns_add_u32 s11, s11, %d\nv_add_u32 v7, s11, v7" % WS_Q)
    e("s_waitcnt vmcnt(0) lgkmcnt(0)")
    e("s_add_u32 s9, s9, 0x%08x        ; tag of this launch" % TAGC)
    WA = 40
    for ks in range(14):
        r = WA + 4 * (ks & 3)
        e("ds_read_b64_tr_b16 v[%d:%d], v6 offset:%d" % (r, r + 1, ks * 1024))
        e("ds_read_b64_tr_b16 v[%d:%d], v6 offset:%d" % (r + 2, r + 3, ks * 1024 + 128))
        if ks >= 2:
            pk = ks - 2
            e("s_waitcnt lgkmcnt(4)")
            mfma16(72 + 4 * (pk & 1), WA + 4 * (pk & 3), XB + 4 * (pk >> 1), None if pk < 2 else 72 + 4 * (pk & 1))
    for pk in (12, 13):
        e("s_waitcnt lgkmcnt(%d)" % (2 if pk == 12 else 0))
        mfma16(72 + 4 * (pk & 1), WA + 4 * (pk & 3), XB + 4 * (pk >> 1), 72 + 4 * (pk & 1))
    e("v_mov_b32 v81, s9\nv_mov_b32 v83, s9\ns_nop 7")
    for r in range(4):
        e("v_add_f32_dpp v%d, v%d, v%d row_ror:8 row_mask:0xf bank_mask:0xf" % (72 + r, 76 + r, 72 + r))
    e("v_cvt_pk_bf16_f32 v80, v72, v73\nv_cvt_pk_bf16_f32 v82, v74, v75")
    e("s_mov_b32 exec_lo, 0x00ff00ff\ns_mov_b32 exec_hi, 0x00ff00ff")
    e("global_store_dwordx4 v7, v[80:83], s[%d:%d] sc1" % (sWS, sWS + 1))
    e("s_mov_b64 exec, -1")
    stamp(1)
    e("s_lshl_b32 s11, s6, 14\ns_lshl_b32 s12, s5, 11\ns_add_u32 s11, s11, s12\ns_add_u32 s11, s11, %d" % WS_Q)
    e("v_lshlrev_b32 v7, 4, v1\nv_add_u32 v7, s11, v7")
    e("s_mov_b32 s13, 0")
    if B0AT >= 0:
        e("s_barrier            ; B0")
    e("L_pollq:")
    e("global_load_dwordx4 v[84:87], v7, s[%d:%d] %s" % (sWS, sWS + 1, fl("gflags")))
    e("global_load_dwordx4 v[88:91], v7, s[%d:%d] offset:1024 %s" % (sWS, sWS + 1, fl("gflags")))
    e("s_waitcnt vmcnt(0)")
    tags_ok([85, 87, 89, 91], "L_pollq_done", 0, 0)
    spin_guard("s13", "L_pollq_done")
    e("s_branch L_pollq")
    e("L_pollq_done:")
    e("v_mov_b32 v85, v86\nv_mov_b32 v89, v90")
    e("v_lshlrev_b32 v7, 3, v1\nv_add_u32 v7, %d, v7" % QB)
    e("ds_write_b64 v7, v[84:85]\nds_write_b64 v7, v[88:89] offset:512")
e("L_noq:")
e("v_mov_b32 v8, %d\nv_mov_b32 v9, s9\nds_write_b32 v8, v9" % TAGL)
if P["RANK"]:
    e("v_mov_b32 v8, %d\nv_mov_b32 v10, 1\nv_mov_b32 v11, 1\nds_write_b64 v8, v[10:11]" % LVL)
e("s_waitcnt lgkmcnt(0)")
if P["prio"]:
    e("s_setprio 0")
e("L_h_b1:")
if DSP == 8:
    e("s_memrealtime s[94:95]\ns_waitcnt lgkmcnt(0)")
stamp(2)
e("s_barrier            ; B1")
if DSP == 2:
    e("s_memrealtime s[94:95]\ns_waitcnt lgkmcnt(0)")

e("v_mov_b32 v8, %d\nds_read_b32 v8, v8\ns_waitcnt lgkmcnt(0)\nv_readfirstlane_b32 s9, v8" % TAGL)
def rank_checkpoint(k):
    lbl[0] += 1
    lab = "L_rk%d" % lbl[0]
    e("s_cmp_lg_u32 s3, 1\ns_cbranch_scc1 %s" % lab)
    e("s_mov_b64 exec, 1\nv_mov_b32 v10, %d\nv_mov_b32 v11, 1\nglobal_atomic_add v12, v10, v11, s[%d:%d] sc0 sc1\ns_waitcnt vmcnt(0)" % (4 * k, sDBG, sDBG + 1))
    e("v_readfirstlane_b32 s12, v12\ns_nop 3\ns_cmp_ge_u32 s12, %d\ns_cselect_b32 s13, 1, 0\ns_cmp_ge_u32 s12, %d\ns_cselect_b32 s13, 2, s13" % (P["TLO"], P["THI"]))
    e("v_mov_b32 v10, %d\nv_mov_b32 v11, s13\nds_write_b32 v10, v11\ns_waitcnt lgkmcnt(0)\ns_mov_b64 exec, -1" % (LVL + 4 * k))
    e("%s:" % lab)
if P["RANK"]:
    rank_checkpoint(0)
e("s_mov_b32 s32, s%d\ns_mov_b32 s33, s%d\ns_mov_b32 s34, %d\ns_mov_b32 s35, 0x20000" % (sWO, sWO + 1, 4096 * 896))
e("v_mul_u32_u24 v47, %d, v3\nv_lshl_add_u32 v47, v2, 4, v47\ns_lshl_b32 s10, s3, 8\nv_add_u32 v47, s10, v47" % (8 * 896))
e("s_cmp_eq_u32 s3, 3\ns_cselect_b32 s12, 0x7fffffff, 0")
e("v_mov_b32 v9, s12\nv_cmp_lt_u32 vcc, 7, v2\ns_nop 1\nv_cndmask_b32 v9, 0, v9, vcc\nv_or_b32 v47, v47, v9")
e("s_lshl_b32 s54, s5, 9\ns_lshl_b32 s11, s7, 6\ns_add_u32 s54, s54, s11\ns_mul_i32 s54, s54, 896")
e("s_mov_b32 s46, 0x05040100\ns_mov_b32 s47, 0x07060302")
RAW = 96; WOH = [128 + 32 * ks for ks in range(4)]
def wo_load(ks):
    rowoff = ((ks >> 1) * 256 + (ks & 1) * 32) * 896
    R = P["worr"]
    for j0 in range(0, 8, R):
        if P["woprio"]:
            e("s_setprio 3")
        for j in range(j0, j0 + R):
            e("s_add_u32 s12, s54, %d" % (rowoff + j * 896))
            e("buffer_load_dwordx4 v[%d:%d], v47, s[32:35], s12 offen %s" % (RAW + 4 * j, RAW + 4 * j + 3, woflags))
        if P["woprio"]:
            e("s_setprio 0")
        e("s_waitcnt vmcnt(0)")
    for t in range(8):
        for p in range(4):
            e("v_perm_b32 v%d, v%d, v%d, %s" % (WOH[ks] + t * 4 + p, RAW + 4 * (2 * p + 1) + (t >> 1), RAW + 4 * (2 * p) + (t >> 1), "s47" if (t & 1) else "s46"))
NPRE = P["wopre"]
if P.get("B1B", -1) >= 0:
    e("s_barrier            ; B1b")
for ks in range(NPRE):
    wo_load(ks)
stamp(3)
e("s_barrier            ; B2")
e("s_barrier            ; B3")
if DSP == 3:
    e("s_memrealtime s[94:95]\ns_waitcnt lgkmcnt(0)")

if P["RANK"]:
    rank_checkpoint(1)
e("s_cmp_lg_u32 s3, 0\ns_cbranch_scc1 L_h_wo2")
e("v_and_b32 v4, 1, v2\nv_lshlrev_b32 v4, 6, v4\nv_add_u32 v4, %d, v4" % MAXX)
for i in range(4):
    e("ds_read_b128 v[%d:%d], v4 offset:%d" % (8 + 4 * i, 8 + 4 * i + 3, 16 * i))
for i in range(4):
    e("ds_read_b128 v[%d:%d], v4 offset:%d" % (24 + 4 * i, 24 + 4 * i + 3, LSUM - MAXX + 16 * i))
if POOL:
    e("v_lshrrev_b32 v5, 5, v1\nv_mul_u32_u24 v5, %d, v5\nv_and_b32 v6, 31, v1\nv_lshl_add_u32 v5, v6, 4, v5\nv_add_u32 v5, %d, v5" % (HS, PB + NS * 64))
    e("ds_read_b128 v[56:59], v5")
e("s_waitcnt lgkmcnt(0)")
e("v_max3_f32 v40, v8, v9, v10")
for i in range(3, 15, 2):
    e("v_max3_f32 v40, v40, v%d, v%d" % (8 + i, 8 + i + 1))
e("v_max_f32 v40, v40, v23")
e("v_add_f32 v42, v24, v25")
for i in range(2, 16):
    e("v_add_f32 v42, v42, v%d" % (24 + i))
e("v_mov_b32 v41, s9\nv_mov_b32 v43, s9")
e("s_lshl_b32 s10, s8, 2\ns_add_u32 s10, s10, s7\ns_lshl_b32 s12, s10, 5\ns_add_u32 s12, s12, %d" % WS_ST)
e("v_lshlrev_b32 v5, 4, v1\nv_add_u32 v6, s12, v5")
e("s_mov_b64 exec, 3\nglobal_store_dwordx4 v6, v[40:43], s[%d:%d] sc1\ns_mov_b64 exec, -1" % (sWS, sWS + 1))
if POOL:
    e("v_mov_b32 v60, v56\nv_mov_b32 v61, s9\nv_mov_b32 v62, v57\nv_mov_b32 v63, s9")
    e("v_mov_b32 v64, v58\nv_mov_b32 v65, s9\nv_mov_b32 v66, v59\nv_mov_b32 v67, s9")
    e("s_lshl_b32 s12, s10, 11\ns_add_u32 s12, s12, %d\nv_add_u32 v6, s12, v5" % WS_PP)
    e("global_store_dwordx4 v6, v[60:63], s[%d:%d] sc1\nglobal_store_dwordx4 v6, v[64:67], s[%d:%d] offset:1024 sc1" % (sWS, sWS + 1, sWS, sWS + 1))
N4A = NPRE
if P["B3A"] >= 0:
    for ks in range(NPRE, min(4, NPRE + P["wo4a"])):
        wo_load(ks)
        N4A = ks + 1
    e("s_barrier            ; B3a")
e("s_lshl_b32 s10, s8, 7\ns_add_u32 s10, s10, %d" % WS_ST)
e("v_and_b32 v5, 1, v1\nv_lshlrev_b32 v5, 4, v5\nv_add_u32 v5, s10, v5")
e("s_mov_b32 s13, 0")
e("L_polls:")
for s_ in range(4):
    e("global_load_dwordx4 v[%d:%d], v5, s[%d:%d] offset:%d sc1" % (8 + 4 * s_, 8 + 4 * s_ + 3, sWS, sWS + 1, 32 * s_))
e("s_waitcnt vmcnt(0)")
tags_ok([8 + 4 * k + o for k in range(4) for o in (1, 3)], "L_polls_done", 0, 0)
spin_guard("s13", "L_polls_done")
e("s_sleep %d\ns_branch L_polls" % P["ssleep"])
e("L_polls_done:")
e("v_max3_f32 v24, v8, v12, v16\nv_max_f32 v24, v24, v20")
e("s_mov_b32 s15, 0x%08x" % CEXP)
for s_ in range(4):
    e("v_sub_f32 v%d, v%d, v24\nv_mul_f32 v%d, s15, v%d" % (26 + s_, 8 + 4 * s_, 26 + s_, 26 + s_))
for s_ in range(4):
    e("v_exp_f32 v%d, v%d" % (26 + s_, 26 + s_))
e("s_nop 0")
e("v_mul_f32 v30, v26, v10\nv_fmac_f32 v30, v27, v14\nv_fmac_f32 v30, v28, v18\nv_fmac_f32 v30, v29, v22")
e("v_rcp_f32 v31, v30\ns_nop 0\nv_fma_f32 v32, -v30, v31, 2.0\nv_mul_f32 v31, v31, v32")
if not POOL:
    for s_ in range(4):
        e("v_mul_f32 v%d, v%d, v31" % (26 + s_, 26 + s_))
    e("s_nop 1")
    for s_ in range(4):
        e("v_mov_b32_dpp v%d, v%d quad_perm:[0,0,0,0] row_mask:0xf bank_mask:0xf" % (48 + s_, 26 + s_))
        e("v_mov_b32_dpp v%d, v%d quad_perm:[1,1,1,1] row_mask:0xf bank_mask:0xf" % (52 + s_, 26 + s_))
else:
    e("s_nop 1")
    e("v_mov_b32_dpp v48, v31 quad_perm:[0,0,0,0] row_mask:0xf bank_mask:0xf\nv_mov_b32_dpp v52, v31 quad_perm:[1,1,1,1] row_mask:0xf bank_mask:0xf")
    e("v_mov_b32 v33, v26")
    for k in range(1, 4):
        e("s_cmp_eq_u32 s7, %d\ns_cselect_b64 s[40:41], -1, 0\nv_cndmask_b32 v33, v33, v%d, s[40:41]" % (k, 26 + k))
    e("v_lshlrev_b32 v34, 2, v1\nv_add_u32 v34, %d, v34\ns_mov_b64 exec, 3\nds_write_b32 v34, v33\ns_mov_b64 exec, -1" % FME)
    for o in range(4):
        e("v_mov_b32_dpp v%d, v%d quad_perm:[0,0,0,0] row_mask:0xf bank_mask:0xf" % (36 + o, 26 + o))
        e("v_mov_b32_dpp v%d, v%d quad_perm:[1,1,1,1] row_mask:0xf bank_mask:0xf" % (40 + o, 26 + o))
    e("s_mov_b32 s40, 0\ns_mov_b32 s41, -1")
    for o in range(4):
        e("v_cndmask_b32 v%d, v%d, v%d, s[40:41]" % (36 + o, 36 + o, 40 + o))
    e("s_lshl_b32 s10, s8, 13\ns_add_u32 s10, s10, %d\nv_lshlrev_b32 v5, 4, v1\nv_add_u32 v5, s10, v5\nv_add_u32 v6, 4096, v5" % WS_PP)
    e("s_mov_b32 s13, 0")
    GP = 56
    e("L_pollp:")
    for o in range(4):
        for i in range(2):
            r = GP + 8 * o + 4 * i
            e("global_load_dwordx4 v[%d:%d], v%d, s[%d:%d] offset:%d sc1" % (r, r + 3, 5 if o < 2 else 6, sWS, sWS + 1, (o & 1) * 2048 + i * 1024))
    e("s_waitcnt vmcnt(0)")
    tags_ok([GP + 4 * k + o for k in range(8) for o in (1, 3)], "L_pollp_done", 12, 13)
    spin_guard("s13", "L_pollp_done")
    e("s_sleep %d\ns_branch L_pollp" % P["ssleep"])
    e("L_pollp_done:")
    e("v_lshrrev_b32 v7, 5, v1\nv_mul_u32_u24 v7, %d, v7\nv_and_b32 v8, 31, v1\nv_lshl_add_u32 v7, v8, 4, v7\nv_add_u32 v7, %d, v7" % (HS, PPB))
    for o in range(4):
        for i in range(2):
            r = GP + 8 * o + 4 * i
            for d in (0, 2):
                e("v_lshlrev_b32 v8, 16, v%d\nv_and_b32 v9, 0xffff0000, v%d" % (r + d, r + d))
                e("v_mul_f32 v8, v8, v%d\nv_mul_f32 v9, v9, v%d" % (36 + o, 36 + o))
                e("v_cvt_pk_bf16_f32 v%d, v8, v9" % (r + d // 2))
            e("ds_write_b64 v7, v[%d:%d] offset:%d" % (r, r + 1, o * 512 + i * 8))
    e("s_waitcnt lgkmcnt(0)")
    e("s_barrier            ; B3b")
if P.get("B3C", -1) >= 0:
    e("s_barrier            ; B3c")
for ks in range(N4A, 4):
    wo_load(ks)
e("s_branch L_h_b4")
e("L_h_wo2:")
WL = P.get("WOLATE", 0)
for ks in range(NPRE, 4 - WL):
    wo_load(ks)
if P["B3A"] >= 0:
    e("s_barrier            ; B3a")
assert not (POOL and WL)
if P.get("B3C", -1) >= 0:
    e("s_barrier            ; B3c")
for ks in range(max(NPRE, 4 - WL), 4):
    wo_load(ks)
if POOL:
    e("s_barrier            ; B3b")
e("L_h_b4:")
stamp(4)
e("s_lshl_b32 s10, s8, 2\ns_add_u32 s10, s10, s7\ns_lshl_b32 s10, s10, 12\ns_add_u32 s10, s10, %d" % WS_OP)
e("v_lshlrev_b32 v5, 4, v1\nv_add_u32 v5, s10, v5")
e("v_lshlrev_b32 v6, 1, v1\nv_add_u32 v6, %d, v6" % OST)
e("v_lshlrev_b32 v7, 4, v3\nv_add_u32 v7, %d, v7" % OST)
e("s_lshl_b32 s11, s5, 2\ns_add_u32 s11, s11, s7          ; p")
e("s_mul_i32 s12, s6, 28\ns_lshl_b32 s13, s3, 3\ns_add_u32 s12, s12, s13\ns_lshl_b32 s12, s12, 5\ns_add_u32 s12, s12, s11\ns_lshl_b32 s12, s12, 7\ns_add_u32 s12, s12, %d" % WS_OUT)
e("v_lshrrev_b32 v44, 1, v2\nv_lshlrev_b32 v44, 12, v44")
e("v_and_b32 v45, 1, v2\nv_lshl_add_u32 v45, v45, 2, v3\nv_lshl_add_u32 v44, v45, 4, v44\nv_add_u32 v44, s12, v44")
e("s_mul_i32 s12, s6, 28\ns_add_u32 s12, s12, s11\ns_lshl_b32 s12, s12, 12\ns_add_u32 s12, s12, %d" % WS_OUT)
e("v_lshlrev_b32 v46, 4, v1\nv_add_u32 v46, s12, v46")
e("s_mov_b32 s48, 0xffff0000\ns_mov_b32 s49, 0\ns_mov_b32 s50, 0\ns_mov_b32 s51, 0x0000ffff\ns_mov_b32 s52, 0\ns_mov_b32 s53, 0xffff0000")
e("s_barrier            ; B4")
if DSP == 4:
    e("s_memrealtime s[94:95]\ns_waitcnt lgkmcnt(0)")
stamp(5)
e("s_cmp_lg_u32 s3, 0\ns_cbranch_scc1 L_h_b5")
def fin_a(r):
    if POOL:
        e("v_add_f32 v24, v%d, v%d\nv_add_f32 v25, v%d, v%d\nv_add_f32 v26, v%d, v%d\nv_add_f32 v27, v%d, v%d" % (r, r + 4, r + 2, r + 6, r + 8, r + 12, r + 10, r + 14))
        e("v_add_f32 v24, v24, v26\nv_add_f32 v25, v25, v27\nv_mul_f32 v24, v24, v48\nv_mul_f32 v25, v25, v52")
    else:
        e("v_mul_f32 v24, v48, v%d\nv_mul_f32 v25, v52, v%d" % (r, r + 2))
        for s_ in range(1, 4):
            e("v_fmac_f32 v24, v%d, v%d\nv_fmac_f32 v25, v%d, v%d" % (48 + s_, r + 4 * s_, 52 + s_, r + 2 + 4 * s_))
if P.get("PP2", 0):
    poll2("polla", 5, 1024, P["asleep"], fin_a)
else:
    e("s_mov_b32 s13, 0")
    e("L_polla:")
    for s_ in range(4):
        e("global_load_dwordx4 v[%d:%d], v5, s[%d:%d] offset:%d sc1" % (8 + 4 * s_, 8 + 4 * s_ + 3, sWS, sWS + 1, 1024 * s_))
    e("s_waitcnt vmcnt(0)")
    tags_ok([8 + 4 * k + o for k in range(4) for o in (1, 3)], "L_polla_done", 0, 0)
    spin_guard("s13", "L_polla_done")
    if P["asleep"]:
        e("s_sleep %d" % P["asleep"])
    e("s_branch L_polla")
    e("L_polla_done:")
    fin_a(8)
e("v_cvt_pk_bf16_f32 v24, v24, v25")
e("ds_write_b16 v6, v24\nds_write_b16_d16_hi v6, v24 offset:128")
e("s_waitcnt lgkmcnt(0)")
e("L_h_b5:")
if DSP == 5:
    e("s_memrealtime s[94:95]\ns_waitcnt lgkmcnt(0)")
stamp(6)
e("s_barrier")
for ks in range(4):
    e("ds_read_b128 v[%d:%d], v7 offset:%d" % (8 + 4 * ks, 8 + 4 * ks + 3, ks * 64))
OA = 56
for ks in range(4):
    e("s_waitcnt lgkmcnt(%d)" % (3 - ks))
    for t in range(8):
        mfma16(OA + 4 * t, 8 + 4 * ks, WOH[ks] + t * 4, None if ks == 0 else OA + 4 * t)
e("v_mov_b32 v25, s9\nv_mov_b32 v27, s9")
e("s_nop 7")
e("v_cndmask_b32 v24, v%d, v%d, s[48:49]\nv_cndmask_b32 v26, v%d, v%d, s[48:49]" % (OA, OA + 8, OA + 4, OA + 12))
e("v_cndmask_b32 v24, v24, v%d, s[50:51]\nv_cndmask_b32 v26, v26, v%d, s[50:51]" % (OA + 16, OA + 20))
e("v_cndmask_b32 v24, v24, v%d, s[52:53]\nv_cndmask_b32 v26, v26, v%d, s[52:53]" % (OA + 24, OA + 28))
e("s_cmp_eq_u32 s3, 3\ns_cselect_b32 s12, 0x00ff00ff, -1\ns_mov_b32 exec_lo, s12\ns_mov_b32 exec_hi, s12")
e("global_store_dwordx4 v44, v[24:27], s[%d:%d] sc1" % (sWS, sWS + 1))
e("s_mov_b64 exec, -1")
stamp(7)
e("s_cmp_lg_u32 s3, 0\ns_cbranch_scc1 L_h_done")
e("s_cmp_ge_u32 s11, 28\ns_cbranch_scc1 L_h_done")
def fin_o(r):
    e("v_add_f32 v24, v%d, v%d\nv_add_f32 v25, v%d, v%d\nv_add_f32 v26, v%d, v%d\nv_add_f32 v27, v%d, v%d" % (r, r + 4, r + 2, r + 6, r + 8, r + 12, r + 10, r + 14))
    e("v_add_f32 v24, v24, v26\nv_add_f32 v25, v25, v27")
if P.get("PP2", 0):
    poll2("pollo", 46, 1024, P["osleep"], fin_o)
else:
    e("s_mov_b32 s13, 0")
    e("L_pollo:")
    for i in range(4):
        e("global_load_dwordx4 v[%d:%d], v46, s[%d:%d] offset:%d sc1" % (8 + 4 * i, 8 + 4 * i + 3, sWS, sWS + 1, 1024 * i))
    e("s_waitcnt vmcnt(0)")
    tags_ok([8 + 4 * k + o for k in range(4) for o in (1, 3)], "L_pollo_done", 0, 0)
    spin_guard("s13", "L_pollo_done")
    if P["osleep"]:
        e("s_sleep %d" % P["osleep"])
    e("s_branch L_pollo")
    e("L_pollo_done:")
    fin_o(8)
e("s_nop 1")
e("v_add_f32_dpp v24, v24, v24 row_ror:8 row_mask:0xf bank_mask:0xf\nv_add_f32_dpp v25, v25, v25 row_ror:8 row_mask:0xf bank_mask:0xf")
e("v_mov_b32 v26, v24\nv_mov_b32 v27, v25\ns_nop 1")
e("v_permlane16_swap_b32 v24, v26\nv_permlane16_swap_b32 v25, v27")
e("v_add_f32 v24, v24, v26\nv_add_f32 v25, v25, v27")
e("v_mov_b32 v26, v24\nv_mov_b32 v27, v25\ns_nop 1")
e("v_permlane32_swap_b32 v24, v26\nv_permlane32_swap_b32 v25, v27")
e("v_add_f32 v24, v24, v26\nv_add_f32 v25, v25, v27")
e("v_cvt_pk_bf16_f32 v24, v24, v25")
e("s_mul_i32 s12, s6, 896\ns_lshl_b32 s13, s11, 5\ns_add_u32 s12, s12, s13")
e("v_lshlrev_b32 v26, 2, v1\nv_add_u32 v26, s12, v26")
e("s_mov_b64 exec, 0xff")
e("global_store_dword v26, v24, s[%d:%d]" % (sOUT, sOUT + 1))
e("s_cmp_lg_u32 s2, 0\ns_cbranch_scc1 L_h_done")
e("s_mov_b64 exec, 1")
e("v_mov_b32 v26, %d\nv_mov_b32 v27, s9" % WS_E)
e("global_store_dword v26, v27, s[%d:%d] sc1      ; next launch's epoch" % (sWS, sWS + 1))
if DSP and not P.get("diagall", 0):
    e("s_cmp_lg_u32 s2, 0\ns_cbranch_scc1 L_h_done")
    if DSP == 1:
        e("s_memrealtime s[94:95]\ns_waitcnt lgkmcnt(0)")
    e("s_sub_u32 s12, s94, s92")
    e("s_min_u32 s12, s12, 20000")
    e("s_memrealtime s[94:95]\ns_waitcnt lgkmcnt(0)\ns_add_u32 s13, s94, s12")
    e("L_dspin:\ns_memrealtime s[94:95]\ns_waitcnt lgkmcnt(0)\ns_sub_u32 s14, s13, s94\ns_cmp_gt_i32 s14, 0\ns_cbranch_scc1 L_dspin")
e("L_h_done:")
if DSP and P.get("diagall", 0):
    e("s_cmp_lg_u32 s3, 0\ns_cbranch_scc1 L_dsp_done")
    e("s_sub_u32 s12, s94, s92\ns_min_u32 s12, s12, 20000\ns_add_u32 s13, s92, s12\ns_add_u32 s13, s13, s12\ns_add_u32 s13, s13, 6000")
    e("L_dspin:\ns_memrealtime s[94:95]\ns_waitcnt lgkmcnt(0)\ns_sub_u32 s14, s13, s94\ns_cmp_gt_i32 s14, 0\ns_cbranch_scc1 L_dspin")
    e("L_dsp_done:")
stamp(8)
if STAMPS:
    e("s_add_u32 s3, s3, 4")
stamp_flush(9)
e("L_end:")
e("s_endpgm")

e('.section .rodata,"a"\n.p2align 6\n.amdhsa_kernel %s' % KN)
e("  .amdhsa_next_free_vgpr 256\n  .amdhsa_next_free_sgpr 96\n  .amdhsa_accum_offset 256")
e("  .amdhsa_group_segment_fixed_size 0\n  .amdhsa_kernarg_size 64\n  .amdhsa_user_sgpr_count 2\n  .amdhsa_user_sgpr_kernarg_segment_ptr 1\n  .amdhsa_system_sgpr_workgroup_id_x 1")
e("  .amdhsa_float_denorm_mode_32 3")
e(".end_amdhsa_kernel")
open(out, "w").write("\n".join(L) + "\n")
```

```python
import sys, struct, copy

out = sys.argv[1]
P = dict(stamps=0, DI=6, DT=9, LAK=2, LAV=2, HOLD=4, B0AT=2, PBL=2, PEVERY=2, PMAX=0, PB2=2,
         NS=24, B3B=99, B3A=13, wo4a=1, wopre=2, worr=8, woprio=1, prio=1, spinmax=200000,
         kflags="nt", vflags="nt", wqflags="nt", woflags="nt", xflags="none", asleep=0, osleep=0, ssleep=8, MAP=1, RANK=0, QMODE=2, gflags="sc1", tst="sc1", tstA="sc1", tldA="sc1", tld="sc1", XLO=1, XHI=1, TLO=85, THI=170, RK1=9, RK2=3)
for a in sys.argv[2:]:
    k, v = a.split("=")
    P[k] = int(v) if v.lstrip("-").isdigit() else v
def fl(name):
    return P[name].replace("+", " ").replace("none", "")
kflags, vflags, wqflags, woflags, xflags = fl("kflags"), fl("vflags"), fl("wqflags"), fl("woflags"), fl("xflags")
STAMPS = P["stamps"]
NS = P["NS"]
NP = 32 - NS
POOL = NP > 0
assert NP in (0, 8)

L = []
def e(s=""):
    L.extend(s.split("\n"))

KN = "standalone__gqa_block_cached__decode_kernel"

WQS = 131072
PB = 131072
HS = 2112
PPB = PB + 4352
TKB = PPB + 4352
FME = TKB + 192
QB = 147456
MAXX = QB + 1024
LSUM = MAXX + 128
TAGL = LSUM + 128
OST = TAGL + 64
DBGL = OST + 256
LVL = DBGL + 64
LOC = LVL + 16
LDS_TOTAL = LVL + 64
assert FME + 8 <= QB

WS_E = 0x0
WS_CNT = 0x10000
WS_ST = 0x30000
WS_OP = 0x40000
WS_OUT = 0x140000
WS_Q = 0x300000
WS_PP = 0x400000
WS_STAMP = 400 * 1024 * 1024
TAGC = 0x9E3779B9
CEXP = struct.unpack("<I", struct.pack("<f", 1.4426950408889634 / 16.0))[0]

e("; @launch grid=(256,1,1) block=(512,1,1) lds=%d" % LDS_TOTAL)
e('.amdgcn_target "amdgcn-amd-amdhsa--gfx950"')
e(".text")
e(".globl %s\n.p2align 8\n.type %s,@function\n%s:" % (KN, KN, KN))

sX, sK, sV, sWQ, sWO, sOUT, sDBG, sWS = 16, 18, 20, 22, 24, 26, 28, 30
stampregs = list(range(64, 84, 2))
def stamp(i):
    if STAMPS:
        e("s_memrealtime s[%d:%d]\ns_waitcnt lgkmcnt(0)" % (stampregs[i], stampregs[i] + 1))
def stamp_flush(n):
    if STAMPS != 1:
        return
    e("s_getreg_b32 s84, hwreg(HW_REG_XCC_ID)")
    e("s_lshl_b32 s85, s2, 3\ns_add_u32 s85, s85, s3\ns_lshl_b32 s85, s85, 7\ns_add_u32 s85, s85, %d" % WS_STAMP)
    e("s_add_u32 s86, s%d, s85\ns_addc_u32 s87, s%d, 0" % (sWS, sWS + 1))
    e("s_mov_b64 exec, 1\nv_mov_b32 v1, 0")
    for i in range(10):
        k = min(i, n - 1)
        e("v_mov_b32 v2, s%d\nv_mov_b32 v3, s%d" % (stampregs[k], stampregs[k] + 1))
        e("global_store_dwordx2 v1, v[2:3], s[86:87] offset:%d\ns_nop 1" % (i * 8))
    e("v_mov_b32 v2, s84\nv_mov_b32 v3, 0\nglobal_store_dwordx2 v1, v[2:3], s[86:87] offset:80\ns_waitcnt vmcnt(0)")

def spin_guard(cnt, label):
    e("s_add_u32 %s, %s, 1\ns_cmp_gt_u32 %s, %d\ns_cbranch_scc1 %s" % (cnt, cnt, cnt, P["spinmax"], label))

def tags_ok(regs, okl, tmp0, tmp1):
    if len(regs) <= 8:
        e("s_mov_b64 s[40:41], 0")
        for r in regs:
            e("v_cmp_ne_u32 vcc, s9, v%d\ns_or_b64 s[40:41], s[40:41], vcc" % r)
    else:
        e("v_min3_u32 v%d, v%d, v%d, v%d\nv_max3_u32 v%d, v%d, v%d, v%d" % (tmp0, regs[0], regs[1], regs[2], tmp1, regs[0], regs[1], regs[2]))
        k = 3
        while k < len(regs):
            if k + 1 < len(regs):
                e("v_min3_u32 v%d, v%d, v%d, v%d\nv_max3_u32 v%d, v%d, v%d, v%d" % (tmp0, tmp0, regs[k], regs[k + 1], tmp1, tmp1, regs[k], regs[k + 1])); k += 2
            else:
                e("v_min_u32 v%d, v%d, v%d\nv_max_u32 v%d, v%d, v%d" % (tmp0, tmp0, regs[k], tmp1, tmp1, regs[k])); k += 1
        e("v_cmp_ne_u32 s[40:41], s9, v%d\nv_cmp_ne_u32 vcc, s9, v%d\ns_or_b64 s[40:41], s[40:41], vcc" % (tmp0, tmp1))
    e("s_cmp_eq_u64 s[40:41], 0\ns_cbranch_scc1 %s" % okl)

e("s_cmp_ge_u32 s2, 256")
e("s_cbranch_scc1 L_end")
if STAMPS:
    e("s_memrealtime s[64:65]")
DSP = P.get("diagspin", 0)
if DSP:
    e("s_memrealtime s[92:93]")
if DSP == 9:
    e("s_waitcnt lgkmcnt(0)\ns_mov_b32 s94, s92")
e("s_load_dwordx16 s[16:31], s[0:1], 0")
e("v_lshrrev_b32 v1, 6, v0")
e("s_and_b32 s56, s2, 7             ; x")
e("v_readfirstlane_b32 s3, v1       ; wave")
e("s_lshr_b32 s4, s2, 3             ; y")
if P["MAP"] == 1:
    e("s_lshr_b32 s7, s56, 1            ; sp")
    e("s_xor_b32 s8, s56, s7\ns_and_b32 s8, s8, 1")
    e("s_lshl_b32 s5, s4, 1\ns_or_b32 s8, s8, s5              ; pair")
    e("s_and_b32 s5, s8, 7              ; hkv\ns_lshr_b32 s6, s8, 3             ; b")
else:
    e("s_mov_b32 s5, s56\ns_and_b32 s6, s4, 7\ns_lshr_b32 s7, s4, 3\ns_lshl_b32 s8, s6, 3\ns_add_u32 s8, s8, s5")
e("v_and_b32 v1, 63, v0             ; lane")
e("s_cmp_ge_u32 s3, 4")
e("s_cbranch_scc1 L_helper")

vKoff = list(range(2, 10)); vKrd = list(range(10, 18)); vVoff = list(range(18, 22)); vVrd = list(range(22, 26))
vPrd, vPwr, vQrd, vMrd, vMwr, vT3 = 26, 27, 28, 29, 30, 31
qB = 32; Sreg = 64; HOLDR = 128
Pa = 128; Vb = 132; acc = 148
vM, vMc, vL, vU = 164, 165, 166, 168
vA = [200, 201, 202, 203]
vOne, vCnt, vTk, vAd = 204, 205, 206, 208
vPP = 213

e("s_lshl_b32 s10, s3, 15")
e("s_lshl_b32 s11, s3, 12")
e("v_lshrrev_b32 v64, 5, v1\nv_and_b32 v65, 31, v1\nv_xor_b32 v65, v65, v64\nv_lshlrev_b32 v65, 4, v65")
e("v_lshl_add_u32 v%d, v64, 9, v65" % vKoff[0])
for n in range(1, 8):
    e("v_xor_b32 v%d, %d, v%d" % (vKoff[n], n << 5, vKoff[0]))
e("s_waitcnt lgkmcnt(0)")
e("s_lshl_b32 s12, s8, 21\ns_lshl_b32 s59, s7, 19\ns_add_u32 s13, s12, s59")
e("s_add_u32 s32, s%d, s13\ns_addc_u32 s33, s%d, 0\ns_mov_b32 s34, 0x80000\ns_mov_b32 s35, 0x20000" % (sK, sK + 1))
e("s_add_u32 s36, s%d, s12\ns_addc_u32 s37, s%d, 0\ns_mov_b32 s38, 0x200000\ns_mov_b32 s39, 0x20000" % (sV, sV + 1))

DI, LAK, LAV, DT = P["DI"], P["LAK"], P["LAV"], P["DT"]
class St:
    def __init__(self):
        self.ops = 0
        self.done = 0
        self.loads = 0
        self.opof = {}
        self.freed = 0
        self.use_level = False
        self.di0 = P.get('DI0', 0)
lbl = [0]
st = St()
NUNITS = 32 + NS + (2 if POOL else 0)
def wait_ops(x):
    if st.ops - st.done > x:
        e("s_waitcnt vmcnt(%d)" % x)
        st.done = st.ops - x
def wait_op(idx):
    if st.done <= idx:
        wait_ops(st.ops - 1 - idx)
def issue_load(di=None, dynsoff=None):
    n, jj = st.loads // 4, st.loads % 4
    if di is None:
        di = st.di0 if st.di0 else DI
        if n >= 32 + NS - P.get('NE', 0):
            di = P.get('DIE', di)
    assert n < st.freed + 8 and n < NUNITS
    if P.get("SLOWB", 0) and st.use_level and st.ops - st.done > di - 1:
        lbl[0] += 1
        k = lbl[0]
        e("s_cmp_eq_u32 s55, 2\ns_cbranch_scc1 L_lv%db\ns_waitcnt vmcnt(%d)\nL_lv%db:" % (k, di - 1, k))
        wait_ops(di - 1 + P["SLOWB"])
    elif P["RANK"] and st.use_level and st.ops - st.done > di - 1 - P["XLO"]:
        lbl[0] += 1
        k = lbl[0]
        e("s_cmp_lg_u32 s55, 0\ns_cbranch_scc1 L_lv%da\ns_waitcnt vmcnt(%d)\nL_lv%da:" % (k, di - 1 - P["XLO"], k))
        e("s_cmp_eq_u32 s55, 2\ns_cbranch_scc1 L_lv%db\ns_waitcnt vmcnt(%d)\nL_lv%db:" % (k, di - 1, k))
        wait_ops(di - 1 + P["XHI"])
    else:
        wait_ops(di - 1)
    if jj == 0:
        e("s_add_u32 m0, s10, %d" % ((n % 8) * 4096))
        if n < 32:
            e("s_add_u32 s14, s11, %d" % (n * 16384))
        elif n < 32 + NS:
            e("s_add_u32 s14, s59, %d" % ((n - 32) * 16384))
        else:
            assert dynsoff is not None
            e("s_mov_b32 s14, %s" % dynsoff)
    if n < 32:
        e("buffer_load_dwordx4 v%d, s[32:35], s14 offen offset:%d %s lds" % (vKoff[(n & 1) * 4 + jj], jj * 1024, kflags))
    else:
        e("buffer_load_dwordx4 v%d, s[36:39], s14 offen offset:%d %s lds" % (vVoff[jj], jj * 1024, vflags))
    st.opof[st.loads] = st.ops
    st.ops += 1; st.loads += 1
    if P.get("trace", 0) and jj == 3 and n < 64:
        e("s_memrealtime s[84:85]\ns_waitcnt lgkmcnt(0)\nv_writelane_b32 v0, s84, %d" % n)
def pump_until(nunits, di=None):
    nunits = min(nunits, 32 + NS, st.freed + 8)
    while st.loads < 4 * nunits:
        issue_load(di)
def pump(k, di=None):
    for _ in range(k):
        if st.loads // 4 < min(32 + NS, st.freed + 8):
            issue_load(di)
def need(nunits):
    wait_op(st.opof[4 * nunits - 1])

if P.get("SLOWB", 0):
    e("s_lshr_b32 s55, s4, 2\ns_cmp_eq_u32 s55, 3\ns_cselect_b32 s55, 2, 1")
    st.use_level = P.get("SLOWFROM", 0) == 0
pump(P.get('DI0', 0) or DI)
e("v_lshrrev_b32 v64, 3, v1\nv_lshrrev_b32 v65, 1, v64\nv_and_b32 v65, 3, v65\nv_lshlrev_b32 v65, 1, v65")
e("v_and_b32 v66, 7, v1\nv_xor_b32 v66, v66, v65\nv_lshlrev_b32 v66, 4, v66\nv_lshl_add_u32 v66, v64, 9, v66")
e("s_lshl_b32 s15, s3, 7\nv_add_u32 v%d, s15, v66" % vVoff[0])
for jj in range(1, 4):
    e("v_add_u32 v%d, %d, v%d" % (vVoff[jj], jj * 3072, vVoff[0]))
e("v_and_b32 v64, 15, v1             ; n\nv_lshrrev_b32 v65, 4, v1          ; g")
e("v_xor_b32 v66, v64, v65\nv_lshlrev_b32 v66, 4, v66\nv_lshl_add_u32 v66, v64, 9, v66\nv_add_u32 v%d, s10, v66" % vKrd[0])
for i in range(1, 8):
    e("v_xor_b32 v%d, %d, v%d" % (vKrd[i], i << 6, vKrd[0]))
e("v_and_b32 v66, 1, v65\nv_lshrrev_b32 v67, 3, v64\nv_lshl_or_b32 v67, v66, 1, v67")
e("v_lshrrev_b32 v68, 2, v64\nv_lshl_add_u32 v68, v66, 2, v68\nv_lshlrev_b32 v68, 7, v68")
e("v_lshrrev_b32 v69, 1, v65\nv_lshl_add_u32 v68, v69, 11, v68\nv_and_b32 v70, 3, v64\nv_lshl_add_u32 v68, v70, 3, v68\nv_add_u32 v68, s10, v68")
for t in range(4):
    e("v_xor_b32 v71, %d, v67\nv_lshl_add_u32 v%d, v71, 5, v68" % (t, vVrd[t]))
e("v_and_b32 v66, 1, v64             ; head\nv_mul_u32_u24 v72, %d, v66" % HS)
e("v_lshl_add_u32 v%d, v65, 4, v72\nv_add_u32 v%d, %d, v%d" % (vPrd, vPrd, PB, vPrd))
e("s_lshr_b32 s15, s3, 1\ns_lshl_b32 s15, s15, 5\ns_and_b32 s40, s3, 1\ns_lshl_b32 s40, s40, 3\ns_add_u32 s15, s15, s40\ns_add_u32 s15, s15, %d" % PB)
e("v_lshl_add_u32 v%d, v69, 6, v72\nv_and_b32 v73, 1, v65\nv_lshl_add_u32 v%d, v73, 4, v%d\nv_add_u32 v%d, s15, v%d" % (vPwr, vPwr, vPwr, vPwr, vPwr))
e("v_lshlrev_b32 v%d, 9, v66\nv_lshl_add_u32 v%d, v65, 4, v%d\nv_add_u32 v%d, %d, v%d" % (vQrd, vQrd, vQrd, vQrd, QB, vQrd))
e("v_lshlrev_b32 v%d, 6, v66\nv_add_u32 v%d, %d, v%d" % (vMrd, vMrd, MAXX, vMrd))
e("s_lshl_b32 s15, s3, 4\nv_lshl_add_u32 v%d, v65, 2, v%d\nv_add_u32 v%d, s15, v%d" % (vMwr, vMrd, vMwr, vMwr))

HOLDN = P["HOLD"]; B0AT = P["B0AT"]
pump_until(8)
if B0AT == 0:
    e("s_barrier")
for T in range(HOLDN):
    need(2 * T + 2)
    for i in range(8):
        r = HOLDR + 32 * T + 4 * i
        e("ds_read_b128 v[%d:%d], v%d offset:%d" % (r, r + 3, vKrd[i], (T % 4) * 8192))
    e("s_waitcnt lgkmcnt(0)")
    st.freed = 2 * T + 2
    pump_until(st.freed + 8)
    if B0AT == T + 1:
        e("s_barrier")
stamp(1)
st.di0 = P.get("DI1", 0)
if P.get("SLOWB", 0):
    st.use_level = True
e("s_barrier")
stamp(2)
for i in range(8):
    e("ds_read_b128 v[%d:%d], v%d offset:%d" % (qB + 4 * i, qB + 4 * i + 3, vQrd, i * 64))
e("v_mov_b32 v%d, %d\nds_read_b32 v%d, v%d\ns_waitcnt lgkmcnt(0)\nv_readfirstlane_b32 s9, v%d" % (vT3, TAGL, vT3, vT3, vT3))

def mfma16(d, a, b, c):
    e("v_mfma_f32_16x16x32_bf16 v[%d:%d], v[%d:%d], v[%d:%d], %s" % (d, d + 3, a, a + 3, b, b + 3, "0" if c is None else "v[%d:%d]" % (c, c + 3)))
def ktile(T, from_regs):
    e("; K tile %d" % T)
    S = Sreg + 4 * T
    if from_regs:
        for i in range(8):
            mfma16(S, HOLDR + 32 * T + 4 * i, qB + 4 * i, None if i == 0 else S)
        return
    nd = 2 * T + 2
    pump_until(nd + LAK)
    need(nd)
    for i in range(8):
        e("ds_read_b128 v[%d:%d], v%d offset:%d" % (AregK + 4 * i, AregK + 4 * i + 3, vKrd[i], (T % 4) * 8192))
    for i in range(8):
        e("s_waitcnt lgkmcnt(%d)" % (7 - i))
        mfma16(S, AregK + 4 * i, qB + 4 * i, None if i == 0 else S)
    st.freed = nd
    if T == HOLDN:
        pump(DI)
if HOLDN == 4:
    order = [(0, True)] + [(T, False) for T in range(4, 8)] + [(1, True), (2, True), (3, True)] + [(T, False) for T in range(8, 16)]
    AregK = HOLDR
else:
    order = [(T, False) for T in range(HOLDN, HOLDN + 4)] + [(T, True) for T in range(HOLDN)] + [(T, False) for T in range(HOLDN + 4, 16)]
    AregK = HOLDR + 32 * HOLDN
def read_level(k):
    e("v_mov_b32 v%d, %d\nds_read_b32 v%d, v%d\ns_waitcnt lgkmcnt(0)\nv_readfirstlane_b32 s55, v%d" % (vT3, LVL + 4 * k, vT3, vT3, vT3))
    st.use_level = True
def round_scores(T):
    S = Sreg + 4 * T
    for h in (0, 2):
        e("v_cvt_pk_bf16_f32 v%d, v%d, v%d" % (vT3, S + h, S + h + 1))
        e("v_lshlrev_b32 v%d, 16, v%d\nv_and_b32 v%d, 0xffff0000, v%d" % (S + h, vT3, S + h + 1, vT3))
prevT = None
for idx, (T, fr) in enumerate(order):
    if HOLDN and 2 <= idx < HOLDN + 4:
        pump(P["PBL"])
    if P["RANK"] and idx == P["RK1"]:
        read_level(0)
    if idx == P.get("B1B", -1):
        e("s_barrier")
    ktile(T, fr)
    if P.get("SROUND", 1):
        if prevT is not None:
            round_scores(prevT)
        prevT = T
stamp(3)
st.di0 = 0
e("; softmax")
pump(1, DT)
e("s_nop 7")
if P.get("SROUND", 1):
    round_scores(prevT)
e("v_max3_f32 v%d, v%d, v%d, v%d" % (vM, Sreg, Sreg + 1, Sreg + 2))
i = 3; cnt = 0
while i < 64:
    if i + 1 < 64:
        e("v_max3_f32 v%d, v%d, v%d, v%d" % (vM, vM, Sreg + i, Sreg + i + 1)); i += 2
    else:
        e("v_max_f32 v%d, v%d, v%d" % (vM, vM, Sreg + i)); i += 1
    cnt += 1
    if P["PMAX"] and cnt % P["PMAX"] == 0:
        pump(1, DT)
e("s_mov_b32 exec_lo, 0x00030003\ns_mov_b32 exec_hi, 0x00030003")
e("ds_write_b32 v%d, v%d" % (vMwr, vM))
e("s_mov_b64 exec, -1")
pump(P["PB2"], DT)
e("s_waitcnt lgkmcnt(0)")
e("s_barrier")
for i in range(4):
    e("ds_read_b128 v[%d:%d], v%d offset:%d" % (vU + 4 * i, vU + 4 * i + 3, vMrd, 16 * i))
e("s_waitcnt lgkmcnt(0)")
e("v_max3_f32 v%d, v%d, v%d, v%d" % (vM, vU, vU + 1, vU + 2))
for i in range(3, 15, 2):
    e("v_max3_f32 v%d, v%d, v%d, v%d" % (vM, vM, vU + i, vU + i + 1))
e("v_max_f32 v%d, v%d, v%d" % (vM, vM, vU + 15))
e("s_mov_b32 s15, 0x%08x" % CEXP)
e("v_mul_f32 v%d, s15, v%d" % (vMc, vM))
e("v_mov_b32 v%d, 0\nv_mov_b32 v%d, 0" % (vL, vL + 1))
def fold(p0):
    e("v_add_f32 v%d, v%d, v%d\nv_add_f32 v%d, v%d, v%d" % (vL, vL, p0, vL + 1, vL + 1, p0 + 1))
    e("v_add_f32 v%d, v%d, v%d\nv_add_f32 v%d, v%d, v%d" % (vL, vL, p0 + 2, vL + 1, vL + 1, p0 + 3))
    e("v_cvt_pk_bf16_f32 v%d, v%d, v%d\nv_cvt_pk_bf16_f32 v%d, v%d, v%d" % (p0, p0, p0 + 1, p0 + 1, p0 + 2, p0 + 3))
for T in range(16):
    s0 = Sreg + 4 * T
    for r in range(4):
        e("v_fma_f32 v%d, v%d, s15, -v%d" % (s0 + r, s0 + r, vMc))
    for r in range(4):
        e("v_exp_f32 v%d, v%d" % (s0 + r, s0 + r))
    if T % P["PEVERY"] == P["PEVERY"] - 1:
        pump(1, DT)
    if T > 0:
        fold(Sreg + 4 * (T - 1))
e("s_nop 0")
fold(Sreg + 60)
e("v_add_f32 v%d, v%d, v%d" % (vL, vL, vL + 1))
e("s_mov_b32 exec_lo, 0x00030003\ns_mov_b32 exec_hi, 0x00030003")
for T in range(16):
    e("ds_write_b64 v%d, v[%d:%d] offset:%d" % (vPwr, Sreg + 4 * T, Sreg + 4 * T + 1, T * 128))
e("ds_write_b32 v%d, v%d offset:%d" % (vMwr, vL, LSUM - MAXX))
e("s_mov_b64 exec, -1")
for t in range(16):
    e("v_mov_b32 v%d, 0" % (acc + t))
if POOL:
    e("s_lshl_b32 s12, s8, 7\ns_add_u32 s12, s12, %d\nv_mov_b32 v%d, s12\nv_mov_b32 v%d, 1\nv_mov_b32 v%d, %d" % (WS_CNT, vCnt, vOne, vTk, TKB))
    e("v_add_u32 v%d, %d, v%d" % (vPP, PPB - PB, vPrd))
pump(P["PB2"], DT)
e("s_waitcnt lgkmcnt(0)")
e("s_barrier")
stamp(4)
if P.get("SLOWB", 0) and not P.get("SLOWV", 0):
    st.use_level = False

def vunit_compute(paddr, poff, vaddrs, slot):
    e("ds_read_b128 v[%d:%d], v%d offset:%d" % (Pa, Pa + 3, paddr, poff))
    for t in range(4):
        e("ds_read_b64_tr_b16 v[%d:%d], v%d offset:%d" % (Vb + 4 * t, Vb + 4 * t + 1, vaddrs[t], slot))
        e("ds_read_b64_tr_b16 v[%d:%d], v%d offset:%d" % (Vb + 4 * t + 2, Vb + 4 * t + 3, vaddrs[t], slot + 1024))
    for t in range(4):
        e("s_waitcnt lgkmcnt(%d)" % (6 - 2 * t))
        mfma16(acc + 4 * t, Pa, Vb + 4 * t, acc + 4 * t)
def vunit(u):
    n = 32 + u
    e("; V unit %d" % u)
    if P["RANK"] and u == P["RK2"]:
        read_level(1)
    if P.get("LOCAL", 0) and u == NS - 3:
        e("v_mov_b32 v%d, %d\nds_read_b32 v%d, v%d\ns_waitcnt lgkmcnt(0)\nv_readfirstlane_b32 s57, v%d" % (vT3, LOC, vT3, vT3, vT3))
    pump_until(n + 1 + LAV)
    need(n + 1)
    vunit_compute(vPrd, u * 64, vVrd, (n % 8) * 4096)
    st.freed = n + 1
    if u in (7, 15) or (u == 23 and not POOL):
        stamp(7 + (u - 7) // 8)

sI, sSo, sPo0, sPo1, sPo2, sV0, sV1, sTk = 60, 61, 62, 63, 88, 89, 90, 91
def decode(tk, po, valid):
    e("s_and_b32 s12, %s, 3\ns_lshr_b32 s13, %s, 2" % (tk, tk))
    e("s_lshl_b32 s%d, s12, 3\ns_add_u32 s%d, s%d, s13\ns_lshl_b32 s%d, s%d, 6" % (po, po, po, po, po))
    e("s_lshl_b32 s12, s12, 19\ns_lshl_b32 s13, s13, 14\ns_add_u32 s12, s12, s13\ns_add_u32 s12, s12, %d" % (NS * 16384))
    e("s_cmp_lt_u32 %s, %d\ns_cselect_b32 s%d, s12, 0x7fff0000" % (tk, 4 * NP, sSo))
    if valid is not None:
        e("s_cselect_b32 s%d, 1, 0" % valid)
def get_ticket_lds(dyn):
    lbl[0] += 1
    k = lbl[0]
    e("s_mov_b32 s15, 0\nL_tk%d:" % k)
    e("ds_read_b32 v%d, v%d%s\ns_waitcnt lgkmcnt(0)\nv_readfirstlane_b32 s%d, v%d" % (vAd + 5 - 5 + 0, vTk, "" if dyn is None else " offset:%d" % (4 * dyn), sTk, vAd))
    spin_guard("s15", "L_tkd%d" % k)
    e("s_cmp_eq_u32 s%d, -1\ns_cbranch_scc1 L_tk%d\nL_tkd%d:" % (sTk, k, k))
def dyn_compute(po):
    e("s_and_b32 s12, s%d, 7\ns_lshl_b32 s12, s12, 12" % sI)
    for t in range(4):
        e("v_add_u32 v%d, s12, v%d" % (vAd + t, vVrd[t]))
    e("v_add_u32 v%d, s%d, v%d" % (vAd + 4, po, vPP))
    vunit_compute(vAd + 4, 0, [vAd + t for t in range(4)], 0)
def dyn_loads():
    e("s_add_u32 s12, s%d, 2\ns_and_b32 s12, s12, 7\ns_lshl_b32 s12, s12, 12\ns_add_u32 m0, s10, s12\ns_mov_b32 s14, s%d" % (sI, sSo))
    for jj in range(4):
        if P.get("DPACE", 0):
            e("s_waitcnt vmcnt(%d)" % (P["DPACE"] - 1))
        e("buffer_load_dwordx4 v%d, s[36:39], s14 offen offset:%d %s lds" % (vVoff[jj], jj * 1024, vflags))
def rescale_acc():
    e("; switch from own scale to the pair's scale")
    e("v_mov_b32 v%d, %d\nds_read_b64 v[%d:%d], v%d\ns_waitcnt lgkmcnt(0)\ns_nop 4" % (vAd, FME, vU, vU + 1, vAd))
    for t in range(4):
        e("v_mul_f32 v%d, v%d, v%d\nv_mul_f32 v%d, v%d, v%d" % (acc + 4 * t, acc + 4 * t, vU, acc + 4 * t + 1, acc + 4 * t + 1, vU + 1))
    e("s_nop 1")

if not POOL:
    for u in range(32):
        if u == P["B3A"]:
            e("s_barrier")
        if u == P.get("B3C", -1):
            e("s_barrier")
        vunit(u)
else:
    UA = NS - 6
    assert P["B3B"] < UA or P["B3B"] >= NS
    for u in range(UA):
        if u == P["B3B"]:
            e("s_barrier")
        if u == P["B3A"]:
            e("s_barrier")
        if u == P.get("B3C", -1):
            e("s_barrier")
        vunit(u)
    e("s_cmp_lg_u32 s3, 0\ns_cbranch_scc1 L_vfollow")
    snap = copy.deepcopy(st)
    for lead in (True, False):
        if not lead:
            st = snap
            e("L_vfollow:")
        tag = "a" if lead else "b"
        aop = {}
        for u in range(UA, NS):
            n = 32 + u
            e("; V unit %d (%s)" % (u, "leader" if lead else "follower"))
            k = u - UA
            if lead and k < 4:
                e("s_mov_b64 exec, 1\nglobal_atomic_add v%d, v%d, v%d, s[%d:%d] sc0 sc1\ns_mov_b64 exec, -1" % (vA[k], vCnt, vOne, sWS, sWS + 1))
                aop[k] = st.ops; st.ops += 1
            pump_until(n + 1 + LAV)
            kk = u - (NS - 2)
            if kk >= 0:
                if lead:
                    wait_op(aop[kk])
                    e("v_readfirstlane_b32 s%d, v%d\ns_mov_b64 exec, 1\nds_write_b32 v%d, v%d offset:%d\ns_mov_b64 exec, -1" % (sTk, vA[kk], vTk, vA[kk], 4 * kk))
                else:
                    get_ticket_lds(kk)
                decode("s%d" % sTk, sPo0 if kk == 0 else sPo1, sV0 if kk == 0 else sV1)
                for jj in range(4):
                    issue_load(None, "s%d" % sSo)
            need(n + 1)
            vunit_compute(vPrd, u * 64, vVrd, (n % 8) * 4096)
            st.freed = n + 1
        stamp(9)
        if P["B3B"] >= NS:
            e("s_barrier")
        rescale_acc()
        e("s_mov_b32 s%d, 0\nv_add_u32 v%d, 8, v%d" % (sI, vTk, vTk))
        e("s_waitcnt vmcnt(4)")
        e("L_pool_%s:" % tag)
        for par in range(2 if lead else 1):
            if lead:
                e("s_waitcnt vmcnt(5)")
                va = vA[2 + par]
                e("v_readfirstlane_b32 s%d, v%d\ns_mov_b64 exec, 1\nds_write_b32 v%d, v%d\ns_mov_b64 exec, -1" % (sTk, va, vTk, va))
            else:
                e("s_waitcnt vmcnt(4)")
                get_ticket_lds(None)
            e("s_cmp_ge_u32 s%d, %d\ns_cbranch_scc1 L_drain_%s" % (sTk, 4 * NP, tag))
            if lead:
                e("s_mov_b64 exec, 1\nglobal_atomic_add v%d, v%d, v%d, s[%d:%d] sc0 sc1\ns_mov_b64 exec, -1" % (va, vCnt, vOne, sWS, sWS + 1))
            decode("s%d" % sTk, sPo2, None)
            dyn_loads()
            dyn_compute(sPo0)
            e("s_mov_b32 s%d, s%d\ns_mov_b32 s%d, s%d\ns_add_u32 s%d, s%d, 1\nv_add_u32 v%d, 4, v%d" % (sPo0, sPo1, sPo1, sPo2, sI, sI, vTk, vTk))
            e("s_mov_b32 s%d, 1\ns_mov_b32 s%d, 1" % (sV0, sV1))
        e("s_branch L_pool_%s" % tag)
        e("L_drain_%s:" % tag)
        e("s_cmp_eq_u32 s%d, 0\ns_cbranch_scc1 L_dr1_%s" % (sV0, tag))
        dyn_compute(sPo0)
        e("L_dr1_%s:" % tag)
        e("s_waitcnt vmcnt(0)")
        e("s_cmp_eq_u32 s%d, 0\ns_cbranch_scc1 L_dr2_%s" % (sV1, tag))
        e("s_add_u32 s%d, s%d, 1" % (sI, sI))
        dyn_compute(sPo1)
        e("L_dr2_%s:" % tag)
        if lead:
            e("s_branch L_vdone")
    e("L_vdone:")
stamp(5)
e("s_lshl_b32 s12, s8, 2\ns_add_u32 s12, s12, s3\ns_lshl_b32 s12, s12, 2\ns_add_u32 s12, s12, s7\ns_lshl_b32 s12, s12, 10\ns_add_u32 s12, s12, %d" % WS_OP)
e("v_lshlrev_b32 v%d, 4, v1\nv_add_u32 v%d, s12, v%d" % (vQrd, vQrd, vQrd))
e("s_mov_b32 s40, 0xffff0000\ns_mov_b32 s41, 0\ns_mov_b32 s42, 0\ns_mov_b32 s43, 0x0000ffff\ns_mov_b32 s44, 0\ns_mov_b32 s45, 0xffff0000")
e("v_mov_b32 v%d, s9\nv_mov_b32 v%d, s9" % (vU + 1, vU + 3))
e("s_nop 3")
for (m, a0) in (("s[40:41]", 4), ("s[42:43]", 8), ("s[44:45]", 12)):
    src0 = (acc + 0, acc + 1) if a0 == 4 else (vU, vU + 2)
    e("v_cndmask_b32 v%d, v%d, v%d, %s" % (vU, src0[0], acc + a0, m))
    e("v_cndmask_b32 v%d, v%d, v%d, %s" % (vU + 2, src0[1], acc + a0 + 1, m))
if P.get("LOCAL", 0):
    e("s_cmp_eq_u32 s57, 1\ns_cbranch_scc1 L_pub_local")
    e("global_store_dwordx4 v%d, v[%d:%d], s[%d:%d] sc1" % (vQrd, vU, vU + 3, sWS, sWS + 1))
    e("s_branch L_pub_done\nL_pub_local:")
    e("global_store_dwordx4 v%d, v[%d:%d], s[%d:%d]" % (vQrd, vU, vU + 3, sWS, sWS + 1))
    e("L_pub_done:")
else:
    e("global_store_dwordx4 v%d, v[%d:%d], s[%d:%d] %s" % (vQrd, vU, vU + 3, sWS, sWS + 1, fl("tstA")))
e("s_barrier")
if P.get("trace", 0):
    e("s_lshl_b32 s85, s2, 2\ns_add_u32 s85, s85, s3\ns_lshl_b32 s85, s85, 8\ns_add_u32 s85, s85, %d" % (WS_STAMP + 0x100000))
    e("v_lshlrev_b32 v2, 2, v1\nv_add_u32 v2, s85, v2\nglobal_store_dword v2, v0, s[%d:%d]\ns_waitcnt vmcnt(0)" % (sWS, sWS + 1))
stamp(6)
stamp_flush(10)
e("s_endpgm")


def poll2(name, addr, stride, sleep, finish, lf):
    A, B = 96, 112
    def issue(base):
        for i in range(4):
            e("global_load_dwordx4 v[%d:%d], v%d, s[%d:%d] offset:%d %s" % (base + 4 * i, base + 4 * i + 3, addr, sWS, sWS + 1, stride * i, lf))
    e("s_mov_b32 s13, 0")
    issue(A)
    if P.get("PSTAG", 0):
        e("s_sleep %d          ; offset the second polling round by half a round trip" % P["PSTAG"])
    e("L_%s:" % name)
    issue(B)
    e("s_waitcnt vmcnt(4)")
    tags_ok([A + 4 * k + o for k in range(4) for o in (1, 3)], "L_%s_a" % name, 0, 0)
    issue(A)
    e("s_waitcnt vmcnt(4)")
    tags_ok([B + 4 * k + o for k in range(4) for o in (1, 3)], "L_%s_b" % name, 0, 0)
    spin_guard("s13", "L_%s_b" % name)
    if sleep:
        e("s_sleep %d" % sleep)
    e("s_branch L_%s" % name)
    e("L_%s_a:" % name)
    finish(A)
    e("s_branch L_%s_done" % name)
    e("L_%s_b:" % name)
    finish(B)
    e("L_%s_done:" % name)
e("L_helper:")
e("s_sub_u32 s3, s3, 4              ; hw")
e("v_and_b32 v2, 15, v1             ; n\nv_lshrrev_b32 v3, 4, v1          ; g")
e("s_waitcnt lgkmcnt(0)")
e("s_cmp_lg_u32 s3, 0")
e("s_cbranch_scc0 L_w4")
if B0AT >= 0:
    e("s_barrier            ; B0")
e("s_branch L_h_b1")
e("L_w4:")
if P["prio"]:
    e("s_setprio 3")
e("s_load_dword s9, s[%d:%d], %d     ; epoch word" % (sWS, sWS + 1, WS_E))
if P.get("noq", 0):
    e("s_waitcnt lgkmcnt(0)\ns_add_u32 s9, s9, 0x%08x" % TAGC)
    if B0AT >= 0:
        e("s_barrier            ; B0")
    e("s_branch L_noq")
e("s_mov_b32 s32, s%d\ns_mov_b32 s33, s%d\ns_mov_b32 s34, %d\ns_mov_b32 s35, 0x20000" % (sWQ, sWQ + 1, 448 * 8192))
e("s_mov_b32 s36, s%d\ns_mov_b32 s37, s%d\ns_mov_b32 s38, %d\ns_mov_b32 s39, 0x20000" % (sX, sX + 1, 8 * 896))
QMODE = P['QMODE']
if QMODE == 2:
    e("s_and_b32 s57, s4, 7              ; cl\ns_lshr_b32 s58, s4, 3             ; kq")
    e("s_lshl_b32 s10, s58, 7\ns_mul_i32 s11, s58, 96\ns_add_u32 s11, s11, 64\ns_cmp_lt_u32 s58, 2\ns_cselect_b32 s10, s10, s11")
    e("s_lshl_b32 s11, s10, 13\ns_lshl_b32 s12, s56, 10\ns_add_u32 s11, s11, s12\ns_lshl_b32 s12, s57, 7\ns_add_u32 s11, s11, s12")
    e("v_lshrrev_b32 v4, 3, v1\nv_lshlrev_b32 v4, 13, v4\nv_and_b32 v5, 7, v1\nv_lshl_add_u32 v4, v5, 4, v4")
    XB = 8
    e("v_and_b32 v5, 7, v2\nv_mul_u32_u24 v5, 896, v5\nv_lshl_add_u32 v5, v3, 4, v5")
    e("s_lshl_b32 s10, s10, 1")
    def wq_loads(a, b):
        for m in range(a, b):
            e("s_mov_b32 m0, %d\ns_add_u32 s12, s11, %d" % (WQS + m * 1024, m * 8 * 8192))
            e("buffer_load_dwordx4 v4, s[32:35], s12 offen %s lds" % wqflags)
    def x_load(ks):
        e("buffer_load_dwordx4 v[%d:%d], v5, s[36:39], s10 offen offset:%d %s" % (XB + 4 * ks, XB + 4 * ks + 3, ks * 64, xflags))
    wq_loads(0, 12)
    for ks in range(3):
        x_load(ks)
    e("s_cmp_lt_u32 s58, 2\ns_cbranch_scc0 L_q3")
    wq_loads(12, 16); x_load(3)
    e("L_q3:")
    if POOL:
        e("s_cmp_ge_u32 s4, 8\ns_cbranch_scc1 L_nocnt")
        e("s_lshl_b32 s12, s4, 3\ns_add_u32 s12, s12, s56\ns_lshl_b32 s12, s12, 7\ns_add_u32 s12, s12, %d\nv_mov_b32 v6, s12\nv_mov_b32 v7, 0" % WS_CNT)
        e("s_mov_b64 exec, 1\nglobal_store_dword v6, v7, s[%d:%d] sc1\ns_mov_b64 exec, -1" % (sWS, sWS + 1))
        e("L_nocnt:")
    e("v_lshlrev_b32 v6, 10, v3\nv_lshrrev_b32 v7, 2, v2\nv_lshl_add_u32 v6, v7, 7, v6\nv_and_b32 v7, 3, v2\nv_lshl_add_u32 v6, v7, 3, v6\nv_add_u32 v6, %d, v6" % WQS)
    e("v_and_b32 v7, 7, v2\nv_lshlrev_b32 v7, 17, v7\nv_lshl_add_u32 v7, v3, 5, v7\nv_lshrrev_b32 v24, 3, v2\nv_lshl_add_u32 v7, v24, 4, v7")
    e("s_lshl_b32 s11, s56, 2\ns_add_u32 s11, s11, s58\ns_lshl_b32 s11, s11, 12\ns_lshl_b32 s12, s57, 9\ns_add_u32 s11, s11, s12\ns_add_u32 s11, s11, %d\nv_add_u32 v7, s11, v7" % WS_Q)
    e("s_waitcnt vmcnt(0) lgkmcnt(0)")
    e("s_add_u32 s9, s9, 0x%08x        ; tag of this launch" % TAGC)
    WA = 32; QA = 64
    def q_reads(ks):
        b0 = WA + 16 * (ks & 1)
        for ct in range(4):
            e("ds_read_b64_tr_b16 v[%d:%d], v6 offset:%d" % (b0 + 4 * ct, b0 + 4 * ct + 1, ks * 4096 + ct * 32))
            e("ds_read_b64_tr_b16 v[%d:%d], v6 offset:%d" % (b0 + 4 * ct + 2, b0 + 4 * ct + 3, ks * 4096 + 512 + ct * 32))
    def q_mfma(ks):
        b0 = WA + 16 * (ks & 1)
        for ct in range(4):
            mfma16(QA + 4 * ct, b0 + 4 * ct, XB + 4 * ks, None if ks == 0 else QA + 4 * ct)
    q_reads(0); q_reads(1)
    e("s_waitcnt lgkmcnt(8)"); q_mfma(0)
    q_reads(2)
    e("s_waitcnt lgkmcnt(8)"); q_mfma(1)
    e("s_cmp_lt_u32 s58, 2\ns_cbranch_scc0 L_q3b")
    q_reads(3)
    e("s_waitcnt lgkmcnt(8)"); q_mfma(2)
    e("s_waitcnt lgkmcnt(0)"); q_mfma(3)
    e("s_branch L_q3c\nL_q3b:")
    e("s_waitcnt lgkmcnt(0)"); q_mfma(2)
    e("L_q3c:")
    QT = 96
    e("s_mov_b32 s40, 0xff00ff00\ns_mov_b32 s41, 0xff00ff00")
    for ct in range(4):
        e("v_mov_b32 v%d, s9\nv_mov_b32 v%d, s9" % (QT + 4 * ct + 1, QT + 4 * ct + 3))
    e("s_nop 1")
    for ct in range(4):
        e("v_cndmask_b32 v%d, v%d, v%d, s[40:41]" % (QT + 4 * ct, QA + 4 * ct, QA + 4 * ct + 2))
        e("v_cndmask_b32 v%d, v%d, v%d, s[40:41]" % (QT + 4 * ct + 2, QA + 4 * ct + 1, QA + 4 * ct + 3))
    for ct in range(4):
        e("global_store_dwordx4 v7, v[%d:%d], s[%d:%d] offset:%d sc1" % (QT + 4 * ct, QT + 4 * ct + 3, sWS, sWS + 1, ct * 128))
    stamp(1)
    if POOL:
        e("v_lshlrev_b32 v12, 2, v1\nv_add_u32 v12, %d, v12\nv_mov_b32 v13, -1\ns_mov_b32 exec_lo, -1\ns_mov_b32 exec_hi, 0x0000ffff" % TKB)
        e("ds_write_b32 v12, v13\ns_mov_b64 exec, -1")
    e("s_lshl_b32 s11, s8, 14\ns_add_u32 s11, s11, %d" % WS_Q)
    e("v_lshlrev_b32 v8, 4, v1\nv_add_u32 v8, s11, v8")
    for kq in range(1, 4):
        e("v_add_u32 v%d, %d, v8" % (8 + kq, kq * 4096))
    e("s_mov_b32 s13, 0")
    GQ = 128
    if B0AT >= 0:
        e("s_barrier            ; B0")
    e("L_pollq:")
    for kq in range(4):
        for i in range(4):
            r = GQ + 16 * kq + 4 * i
            e("global_load_dwordx4 v[%d:%d], v%d, s[%d:%d] offset:%d %s" % (r, r + 3, 8 + kq, sWS, sWS + 1, i * 1024, fl("gflags")))
    e("s_waitcnt vmcnt(0)")
    tags_ok([GQ + 4 * k + o for k in range(16) for o in (1, 3)], "L_pollq_done", 12, 13)
    spin_guard("s13", "L_pollq_done")
    e("s_branch L_pollq")
    e("L_pollq_done:")
    e("v_lshlrev_b32 v7, 2, v1\nv_add_u32 v7, %d, v7" % QB)
    for i in range(4):
        r = GQ + 4 * i
        e("v_add_f32 v%d, v%d, v%d\nv_add_f32 v%d, v%d, v%d" % (r, r, r + 16, r + 2, r + 2, r + 18))
        e("v_add_f32 v%d, v%d, v%d\nv_add_f32 v%d, v%d, v%d" % (r + 32, r + 32, r + 48, r + 34, r + 34, r + 50))
        e("v_add_f32 v%d, v%d, v%d\nv_add_f32 v%d, v%d, v%d" % (r, r, r + 32, r + 2, r + 2, r + 34))
        e("v_cvt_pk_bf16_f32 v%d, v%d, v%d" % (r, r, r + 2))
        e("ds_write_b32 v7, v%d offset:%d" % (r, i * 256))
else:
    assert not POOL
    e("s_lshl_b32 s10, s56, 5\ns_add_u32 s10, s10, s4           ; c")
    e("v_lshrrev_b32 v4, 1, v1\nv_lshlrev_b32 v4, 13, v4\nv_and_b32 v5, 1, v1\nv_lshl_add_u32 v4, v5, 4, v4")
    e("s_lshl_b32 s11, s10, 5\nv_add_u32 v4, s11, v4")
    for ks in range(14):
        e("s_mov_b32 m0, %d\ns_mov_b32 s12, %d" % (WQS + ks * 1024, ks * 262144))
        if P.get("WQB", 0) and ks >= P["WQB"]:
            e("s_waitcnt vmcnt(%d)" % (P["WQB"] - 1))
        e("buffer_load_dwordx4 v4, s[32:35], s12 offen %s lds" % wqflags)
    XB = 8
    e("v_and_b32 v5, 7, v2\nv_mul_u32_u24 v5, 896, v5\nv_lshl_add_u32 v5, v3, 4, v5\nv_lshrrev_b32 v6, 3, v2\nv_lshl_add_u32 v5, v6, 6, v5")
    for k2 in range(7):
        e("buffer_load_dwordx4 v[%d:%d], v5, s[36:39], 0 offen offset:%d %s" % (XB + 4 * k2, XB + 4 * k2 + 3, k2 * 128, xflags))
    e("v_lshlrev_b32 v6, 8, v3\nv_lshl_add_u32 v6, v2, 3, v6\nv_add_u32 v6, %d, v6" % WQS)
    e("v_lshlrev_b32 v7, 14, v2\nv_lshl_add_u32 v7, v3, 4, v7")
    e("s_lshl_b32 s11, s10, 6\ns_add_u32 s11, s11, %d\nv_add_u32 v7, s11, v7" % WS_Q)
    e("s_waitcnt vmcnt(0) lgkmcnt(0)")
    e("s_add_u32 s9, s9, 0x%08x        ; tag of this launch" % TAGC)
    WA = 40
    for ks in range(14):
        r = WA + 4 * (ks & 3)
        e("ds_read_b64_tr_b16 v[%d:%d], v6 offset:%d" % (r, r + 1, ks * 1024))
        e("ds_read_b64_tr_b16 v[%d:%d], v6 offset:%d" % (r + 2, r + 3, ks * 1024 + 128))
        if ks >= 2:
            pk = ks - 2
            e("s_waitcnt lgkmcnt(4)")
            mfma16(72 + 4 * (pk & 1), WA + 4 * (pk & 3), XB + 4 * (pk >> 1), None if pk < 2 else 72 + 4 * (pk & 1))
    for pk in (12, 13):
        e("s_waitcnt lgkmcnt(%d)" % (2 if pk == 12 else 0))
        mfma16(72 + 4 * (pk & 1), WA + 4 * (pk & 3), XB + 4 * (pk >> 1), 72 + 4 * (pk & 1))
    e("v_mov_b32 v81, s9\nv_mov_b32 v83, s9\ns_nop 7")
    for r in range(4):
        e("v_add_f32_dpp v%d, v%d, v%d row_ror:8 row_mask:0xf bank_mask:0xf" % (72 + r, 76 + r, 72 + r))
    e("v_cvt_pk_bf16_f32 v80, v72, v73\nv_cvt_pk_bf16_f32 v82, v74, v75")
    e("s_mov_b32 exec_lo, 0x00ff00ff\ns_mov_b32 exec_hi, 0x00ff00ff")
    e("global_store_dwordx4 v7, v[80:83], s[%d:%d] sc1" % (sWS, sWS + 1))
    e("s_mov_b64 exec, -1")
    stamp(1)
    e("s_lshl_b32 s11, s6, 14\ns_lshl_b32 s12, s5, 11\ns_add_u32 s11, s11, s12\ns_add_u32 s11, s11, %d" % WS_Q)
    e("v_lshlrev_b32 v7, 4, v1\nv_add_u32 v7, s11, v7")
    e("s_mov_b32 s13, 0")
    if B0AT >= 0:
        e("s_barrier            ; B0")
    e("L_pollq:")
    e("global_load_dwordx4 v[84:87], v7, s[%d:%d] %s" % (sWS, sWS + 1, fl("gflags")))
    e("global_load_dwordx4 v[88:91], v7, s[%d:%d] offset:1024 %s" % (sWS, sWS + 1, fl("gflags")))
    e("s_waitcnt vmcnt(0)")
    tags_ok([85, 87, 89, 91], "L_pollq_done", 0, 0)
    spin_guard("s13", "L_pollq_done")
    e("s_branch L_pollq")
    e("L_pollq_done:")
    e("v_mov_b32 v85, v86\nv_mov_b32 v89, v90")
    e("v_lshlrev_b32 v7, 3, v1\nv_add_u32 v7, %d, v7" % QB)
    e("ds_write_b64 v7, v[84:85]\nds_write_b64 v7, v[88:89] offset:512")
e("L_noq:")
e("v_mov_b32 v8, %d\nv_mov_b32 v9, s9\nds_write_b32 v8, v9" % TAGL)
if P["RANK"]:
    e("v_mov_b32 v8, %d\nv_mov_b32 v10, 1\nv_mov_b32 v11, 1\nds_write_b64 v8, v[10:11]" % LVL)
if P.get("LOCAL", 0):
    e("v_mov_b32 v8, %d\nv_mov_b32 v10, 0\nds_write_b32 v8, v10" % LOC)
e("s_waitcnt lgkmcnt(0)")
if P["prio"]:
    e("s_setprio 0")
e("L_h_b1:")
if DSP == 8:
    e("s_memrealtime s[94:95]\ns_waitcnt lgkmcnt(0)")
stamp(2)
e("s_barrier            ; B1")
if DSP == 2:
    e("s_memrealtime s[94:95]\ns_waitcnt lgkmcnt(0)")

e("v_mov_b32 v8, %d\nds_read_b32 v8, v8\ns_waitcnt lgkmcnt(0)\nv_readfirstlane_b32 s9, v8" % TAGL)
def rank_checkpoint(k):
    lbl[0] += 1
    lab = "L_rk%d" % lbl[0]
    e("s_cmp_lg_u32 s3, 1\ns_cbranch_scc1 %s" % lab)
    e("s_mov_b64 exec, 1\nv_mov_b32 v10, %d\nv_mov_b32 v11, 1\nglobal_atomic_add v12, v10, v11, s[%d:%d] sc0 sc1\ns_waitcnt vmcnt(0)" % (4 * k, sDBG, sDBG + 1))
    e("v_readfirstlane_b32 s12, v12\ns_nop 3\ns_cmp_ge_u32 s12, %d\ns_cselect_b32 s13, 1, 0\ns_cmp_ge_u32 s12, %d\ns_cselect_b32 s13, 2, s13" % (P["TLO"], P["THI"]))
    e("v_mov_b32 v10, %d\nv_mov_b32 v11, s13\nds_write_b32 v10, v11\ns_waitcnt lgkmcnt(0)\ns_mov_b64 exec, -1" % (LVL + 4 * k))
    e("%s:" % lab)
if P["RANK"]:
    rank_checkpoint(0)
e("s_mov_b32 s32, s%d\ns_mov_b32 s33, s%d\ns_mov_b32 s34, %d\ns_mov_b32 s35, 0x20000" % (sWO, sWO + 1, 4096 * 896))
e("v_mul_u32_u24 v47, %d, v3\nv_lshl_add_u32 v47, v2, 4, v47\ns_lshl_b32 s10, s3, 8\nv_add_u32 v47, s10, v47" % (8 * 896))
e("s_cmp_eq_u32 s3, 3\ns_cselect_b32 s12, 0x7fffffff, 0")
e("v_mov_b32 v9, s12\nv_cmp_lt_u32 vcc, 7, v2\ns_nop 1\nv_cndmask_b32 v9, 0, v9, vcc\nv_or_b32 v47, v47, v9")
e("s_lshl_b32 s54, s5, 9\ns_lshl_b32 s11, s7, 6\ns_add_u32 s54, s54, s11\ns_mul_i32 s54, s54, 896")
e("s_mov_b32 s46, 0x05040100\ns_mov_b32 s47, 0x07060302")
RAW = 96; WOH = [128 + 32 * ks for ks in range(4)]
def wo_load(ks):
    rowoff = ((ks >> 1) * 256 + (ks & 1) * 32) * 896
    R = P["worr"]
    for j0 in range(0, 8, R):
        if P["woprio"]:
            e("s_setprio 3")
        for j in range(j0, j0 + R):
            e("s_add_u32 s12, s54, %d" % (rowoff + j * 896))
            e("buffer_load_dwordx4 v[%d:%d], v47, s[32:35], s12 offen %s" % (RAW + 4 * j, RAW + 4 * j + 3, woflags))
        if P["woprio"]:
            e("s_setprio 0")
        e("s_waitcnt vmcnt(0)")
    for t in range(8):
        for p in range(4):
            e("v_perm_b32 v%d, v%d, v%d, %s" % (WOH[ks] + t * 4 + p, RAW + 4 * (2 * p + 1) + (t >> 1), RAW + 4 * (2 * p) + (t >> 1), "s47" if (t & 1) else "s46"))
NPRE = P["wopre"]
if P.get("B1B", -1) >= 0:
    e("s_barrier            ; B1b")
for ks in range(NPRE):
    wo_load(ks)
stamp(3)
e("s_barrier            ; B2")
e("s_barrier            ; B3")
if DSP == 3:
    e("s_memrealtime s[94:95]\ns_waitcnt lgkmcnt(0)")

if P["RANK"]:
    rank_checkpoint(1)
e("s_cmp_lg_u32 s3, 0\ns_cbranch_scc1 L_h_wo2")
e("v_and_b32 v4, 1, v2\nv_lshlrev_b32 v4, 6, v4\nv_add_u32 v4, %d, v4" % MAXX)
for i in range(4):
    e("ds_read_b128 v[%d:%d], v4 offset:%d" % (8 + 4 * i, 8 + 4 * i + 3, 16 * i))
for i in range(4):
    e("ds_read_b128 v[%d:%d], v4 offset:%d" % (24 + 4 * i, 24 + 4 * i + 3, LSUM - MAXX + 16 * i))
if POOL:
    e("v_lshrrev_b32 v5, 5, v1\nv_mul_u32_u24 v5, %d, v5\nv_and_b32 v6, 31, v1\nv_lshl_add_u32 v5, v6, 4, v5\nv_add_u32 v5, %d, v5" % (HS, PB + NS * 64))
    e("ds_read_b128 v[56:59], v5")
e("s_waitcnt lgkmcnt(0)")
e("v_max3_f32 v40, v8, v9, v10")
for i in range(3, 15, 2):
    e("v_max3_f32 v40, v40, v%d, v%d" % (8 + i, 8 + i + 1))
e("v_max_f32 v40, v40, v23")
e("v_add_f32 v42, v24, v25")
for i in range(2, 16):
    e("v_add_f32 v42, v42, v%d" % (24 + i))
e("v_mov_b32 v41, s9\nv_mov_b32 v43, s9")
e("s_getreg_b32 s60, hwreg(HW_REG_XCC_ID)\ns_and_b32 s60, s60, 15\nv_mov_b32 v44, s60\ns_mov_b64 s[40:41], 4")
e("v_cndmask_b32 v40, v40, v44, s[40:41]\nv_cndmask_b32 v42, v42, v44, s[40:41]")
e("s_lshl_b32 s10, s8, 2\ns_add_u32 s10, s10, s7\ns_lshl_b32 s12, s10, 6\ns_add_u32 s12, s12, %d" % WS_ST)
e("v_lshlrev_b32 v5, 4, v1\nv_add_u32 v6, s12, v5")
e("s_mov_b64 exec, 7\nglobal_store_dwordx4 v6, v[40:43], s[%d:%d] sc1\ns_mov_b64 exec, -1" % (sWS, sWS + 1))
if POOL:
    e("v_mov_b32 v60, v56\nv_mov_b32 v61, s9\nv_mov_b32 v62, v57\nv_mov_b32 v63, s9")
    e("v_mov_b32 v64, v58\nv_mov_b32 v65, s9\nv_mov_b32 v66, v59\nv_mov_b32 v67, s9")
    e("s_lshl_b32 s12, s10, 11\ns_add_u32 s12, s12, %d\nv_add_u32 v6, s12, v5" % WS_PP)
    e("global_store_dwordx4 v6, v[60:63], s[%d:%d] sc1\nglobal_store_dwordx4 v6, v[64:67], s[%d:%d] offset:1024 sc1" % (sWS, sWS + 1, sWS, sWS + 1))
N4A = NPRE
if P["B3A"] >= 0:
    for ks in range(NPRE, min(4, NPRE + P["wo4a"])):
        wo_load(ks)
        N4A = ks + 1
    e("s_barrier            ; B3a")
e("s_lshl_b32 s10, s8, 8\ns_add_u32 s10, s10, %d" % WS_ST)
e("v_and_b32 v5, 3, v1\nv_cmp_eq_u32 vcc, 3, v5\ns_nop 1\nv_cndmask_b32 v5, v5, 1, vcc\nv_lshlrev_b32 v5, 4, v5\nv_add_u32 v5, s10, v5")
e("s_mov_b32 s13, 0")
e("L_polls:")
for s_ in range(4):
    e("global_load_dwordx4 v[%d:%d], v5, s[%d:%d] offset:%d sc1" % (8 + 4 * s_, 8 + 4 * s_ + 3, sWS, sWS + 1, 64 * s_))
e("s_waitcnt vmcnt(0)")
tags_ok([8 + 4 * k + o for k in range(4) for o in (1, 3)], "L_polls_done", 0, 0)
spin_guard("s13", "L_polls_done")
e("s_sleep %d\ns_branch L_polls" % P["ssleep"])
e("L_polls_done:")
if P.get("LOCAL", 0):
    e("v_cmp_ne_u32 s[40:41], s60, v8\nv_cmp_ne_u32 s[42:43], s60, v12\ns_or_b64 s[40:41], s[40:41], s[42:43]")
    e("v_cmp_ne_u32 s[42:43], s60, v16\ns_or_b64 s[40:41], s[40:41], s[42:43]\nv_cmp_ne_u32 s[42:43], s60, v20\ns_or_b64 s[40:41], s[40:41], s[42:43]")
    e("s_and_b32 s40, s40, 4\ns_cmp_eq_u32 s40, 0\ns_cselect_b32 s40, 1, 0")
    e("s_cmp_gt_u32 s13, %d\ns_cselect_b32 s40, 0, s40" % P["spinmax"])
    e("v_mov_b32 v33, %d\nv_mov_b32 v34, s40\nds_write_b32 v33, v34" % LOC)
e("v_max3_f32 v24, v8, v12, v16\nv_max_f32 v24, v24, v20")
e("s_mov_b32 s15, 0x%08x" % CEXP)
for s_ in range(4):
    e("v_sub_f32 v%d, v%d, v24\nv_mul_f32 v%d, s15, v%d" % (26 + s_, 8 + 4 * s_, 26 + s_, 26 + s_))
for s_ in range(4):
    e("v_exp_f32 v%d, v%d" % (26 + s_, 26 + s_))
e("s_nop 0")
e("v_mul_f32 v30, v26, v10\nv_fmac_f32 v30, v27, v14\nv_fmac_f32 v30, v28, v18\nv_fmac_f32 v30, v29, v22")
e("v_rcp_f32 v31, v30\ns_nop 0\nv_fma_f32 v32, -v30, v31, 2.0\nv_mul_f32 v31, v31, v32")
if not POOL:
    for s_ in range(4):
        e("v_mul_f32 v%d, v%d, v31" % (26 + s_, 26 + s_))
    e("s_nop 1")
    for s_ in range(4):
        e("v_mov_b32_dpp v%d, v%d quad_perm:[0,0,0,0] row_mask:0xf bank_mask:0xf" % (48 + s_, 26 + s_))
        e("v_mov_b32_dpp v%d, v%d quad_perm:[1,1,1,1] row_mask:0xf bank_mask:0xf" % (52 + s_, 26 + s_))
else:
    e("s_nop 1")
    e("v_mov_b32_dpp v48, v31 quad_perm:[0,0,0,0] row_mask:0xf bank_mask:0xf\nv_mov_b32_dpp v52, v31 quad_perm:[1,1,1,1] row_mask:0xf bank_mask:0xf")
    e("v_mov_b32 v33, v26")
    for k in range(1, 4):
        e("s_cmp_eq_u32 s7, %d\ns_cselect_b64 s[40:41], -1, 0\nv_cndmask_b32 v33, v33, v%d, s[40:41]" % (k, 26 + k))
    e("v_lshlrev_b32 v34, 2, v1\nv_add_u32 v34, %d, v34\ns_mov_b64 exec, 3\nds_write_b32 v34, v33\ns_mov_b64 exec, -1" % FME)
    for o in range(4):
        e("v_mov_b32_dpp v%d, v%d quad_perm:[0,0,0,0] row_mask:0xf bank_mask:0xf" % (36 + o, 26 + o))
        e("v_mov_b32_dpp v%d, v%d quad_perm:[1,1,1,1] row_mask:0xf bank_mask:0xf" % (40 + o, 26 + o))
    e("s_mov_b32 s40, 0\ns_mov_b32 s41, -1")
    for o in range(4):
        e("v_cndmask_b32 v%d, v%d, v%d, s[40:41]" % (36 + o, 36 + o, 40 + o))
    e("s_lshl_b32 s10, s8, 13\ns_add_u32 s10, s10, %d\nv_lshlrev_b32 v5, 4, v1\nv_add_u32 v5, s10, v5\nv_add_u32 v6, 4096, v5" % WS_PP)
    e("s_mov_b32 s13, 0")
    GP = 56
    e("L_pollp:")
    for o in range(4):
        for i in range(2):
            r = GP + 8 * o + 4 * i
            e("global_load_dwordx4 v[%d:%d], v%d, s[%d:%d] offset:%d sc1" % (r, r + 3, 5 if o < 2 else 6, sWS, sWS + 1, (o & 1) * 2048 + i * 1024))
    e("s_waitcnt vmcnt(0)")
    tags_ok([GP + 4 * k + o for k in range(8) for o in (1, 3)], "L_pollp_done", 12, 13)
    spin_guard("s13", "L_pollp_done")
    e("s_sleep %d\ns_branch L_pollp" % P["ssleep"])
    e("L_pollp_done:")
    e("v_lshrrev_b32 v7, 5, v1\nv_mul_u32_u24 v7, %d, v7\nv_and_b32 v8, 31, v1\nv_lshl_add_u32 v7, v8, 4, v7\nv_add_u32 v7, %d, v7" % (HS, PPB))
    for o in range(4):
        for i in range(2):
            r = GP + 8 * o + 4 * i
            for d in (0, 2):
                e("v_lshlrev_b32 v8, 16, v%d\nv_and_b32 v9, 0xffff0000, v%d" % (r + d, r + d))
                e("v_mul_f32 v8, v8, v%d\nv_mul_f32 v9, v9, v%d" % (36 + o, 36 + o))
                e("v_cvt_pk_bf16_f32 v%d, v8, v9" % (r + d // 2))
            e("ds_write_b64 v7, v[%d:%d] offset:%d" % (r, r + 1, o * 512 + i * 8))
    e("s_waitcnt lgkmcnt(0)")
    e("s_barrier            ; B3b")
if P.get("B3C", -1) >= 0:
    e("s_barrier            ; B3c")
for ks in range(N4A, 4):
    wo_load(ks)
e("s_branch L_h_b4")
e("L_h_wo2:")
WL = P.get("WOLATE", 0)
for ks in range(NPRE, 4 - WL):
    wo_load(ks)
if P["B3A"] >= 0:
    e("s_barrier            ; B3a")
assert not (POOL and WL)
if P.get("B3C", -1) >= 0:
    e("s_barrier            ; B3c")
for ks in range(max(NPRE, 4 - WL), 4):
    wo_load(ks)
if POOL:
    e("s_barrier            ; B3b")
e("L_h_b4:")
stamp(4)
e("s_lshl_b32 s10, s8, 2\ns_add_u32 s10, s10, s7\ns_lshl_b32 s10, s10, 12\ns_add_u32 s10, s10, %d" % WS_OP)
e("v_lshlrev_b32 v5, 4, v1\nv_add_u32 v5, s10, v5")
e("v_lshlrev_b32 v6, 1, v1\nv_add_u32 v6, %d, v6" % OST)
e("v_lshlrev_b32 v7, 4, v3\nv_add_u32 v7, %d, v7" % OST)
e("s_lshl_b32 s11, s5, 2\ns_add_u32 s11, s11, s7          ; p")
e("s_mul_i32 s12, s6, 28\ns_lshl_b32 s13, s3, 3\ns_add_u32 s12, s12, s13\ns_lshl_b32 s12, s12, 5\ns_add_u32 s12, s12, s11\ns_lshl_b32 s12, s12, 7\ns_add_u32 s12, s12, %d" % WS_OUT)
e("v_lshrrev_b32 v44, 1, v2\nv_lshlrev_b32 v44, 12, v44")
e("v_and_b32 v45, 1, v2\nv_lshl_add_u32 v45, v45, 2, v3\nv_lshl_add_u32 v44, v45, 4, v44\nv_add_u32 v44, s12, v44")
e("s_mul_i32 s12, s6, 28\ns_add_u32 s12, s12, s11\ns_lshl_b32 s12, s12, 12\ns_add_u32 s12, s12, %d" % WS_OUT)
e("v_lshlrev_b32 v46, 4, v1\nv_add_u32 v46, s12, v46")
e("s_mov_b32 s48, 0xffff0000\ns_mov_b32 s49, 0\ns_mov_b32 s50, 0\ns_mov_b32 s51, 0x0000ffff\ns_mov_b32 s52, 0\ns_mov_b32 s53, 0xffff0000")
e("s_barrier            ; B4")
if DSP == 4:
    e("s_memrealtime s[94:95]\ns_waitcnt lgkmcnt(0)")
stamp(5)
e("s_cmp_lg_u32 s3, 0\ns_cbranch_scc1 L_h_b5")
def fin_a(r):
    if POOL:
        e("v_add_f32 v24, v%d, v%d\nv_add_f32 v25, v%d, v%d\nv_add_f32 v26, v%d, v%d\nv_add_f32 v27, v%d, v%d" % (r, r + 4, r + 2, r + 6, r + 8, r + 12, r + 10, r + 14))
        e("v_add_f32 v24, v24, v26\nv_add_f32 v25, v25, v27\nv_mul_f32 v24, v24, v48\nv_mul_f32 v25, v25, v52")
    else:
        e("v_mul_f32 v24, v48, v%d\nv_mul_f32 v25, v52, v%d" % (r, r + 2))
        for s_ in range(1, 4):
            e("v_fmac_f32 v24, v%d, v%d\nv_fmac_f32 v25, v%d, v%d" % (48 + s_, r + 4 * s_, 52 + s_, r + 2 + 4 * s_))
if P.get("PP2", 0):
    poll2("polla", 5, 1024, P["asleep"], fin_a, fl("tldA"))
else:
    e("s_mov_b32 s13, 0")
    e("L_polla:")
    for s_ in range(4):
        e("global_load_dwordx4 v[%d:%d], v5, s[%d:%d] offset:%d sc1" % (8 + 4 * s_, 8 + 4 * s_ + 3, sWS, sWS + 1, 1024 * s_))
    e("s_waitcnt vmcnt(0)")
    tags_ok([8 + 4 * k + o for k in range(4) for o in (1, 3)], "L_polla_done", 0, 0)
    spin_guard("s13", "L_polla_done")
    if P["asleep"]:
        e("s_sleep %d" % P["asleep"])
    e("s_branch L_polla")
    e("L_polla_done:")
    fin_a(8)
e("v_cvt_pk_bf16_f32 v24, v24, v25")
e("ds_write_b16 v6, v24\nds_write_b16_d16_hi v6, v24 offset:128")
e("s_waitcnt lgkmcnt(0)")
e("L_h_b5:")
if DSP == 5:
    e("s_memrealtime s[94:95]\ns_waitcnt lgkmcnt(0)")
stamp(6)
e("s_barrier")
for ks in range(4):
    e("ds_read_b128 v[%d:%d], v7 offset:%d" % (8 + 4 * ks, 8 + 4 * ks + 3, ks * 64))
OA = 56
for ks in range(4):
    e("s_waitcnt lgkmcnt(%d)" % (3 - ks))
    for t in range(8):
        mfma16(OA + 4 * t, 8 + 4 * ks, WOH[ks] + t * 4, None if ks == 0 else OA + 4 * t)
e("v_mov_b32 v25, s9\nv_mov_b32 v27, s9")
e("s_nop 7")
e("v_cndmask_b32 v24, v%d, v%d, s[48:49]\nv_cndmask_b32 v26, v%d, v%d, s[48:49]" % (OA, OA + 8, OA + 4, OA + 12))
e("v_cndmask_b32 v24, v24, v%d, s[50:51]\nv_cndmask_b32 v26, v26, v%d, s[50:51]" % (OA + 16, OA + 20))
e("v_cndmask_b32 v24, v24, v%d, s[52:53]\nv_cndmask_b32 v26, v26, v%d, s[52:53]" % (OA + 24, OA + 28))
e("s_cmp_eq_u32 s3, 3\ns_cselect_b32 s12, 0x00ff00ff, -1\ns_mov_b32 exec_lo, s12\ns_mov_b32 exec_hi, s12")
e("global_store_dwordx4 v44, v[24:27], s[%d:%d] %s" % (sWS, sWS + 1, fl("tst")))
e("s_mov_b64 exec, -1")
stamp(7)
e("s_cmp_lg_u32 s3, 0\ns_cbranch_scc1 L_h_done")
e("s_cmp_ge_u32 s11, 28\ns_cbranch_scc1 L_h_done")
def fin_o(r):
    e("v_add_f32 v24, v%d, v%d\nv_add_f32 v25, v%d, v%d\nv_add_f32 v26, v%d, v%d\nv_add_f32 v27, v%d, v%d" % (r, r + 4, r + 2, r + 6, r + 8, r + 12, r + 10, r + 14))
    e("v_add_f32 v24, v24, v26\nv_add_f32 v25, v25, v27")
if P.get("PP2", 0):
    poll2("pollo", 46, 1024, P["osleep"], fin_o, fl("tld"))
else:
    e("s_mov_b32 s13, 0")
    e("L_pollo:")
    for i in range(4):
        e("global_load_dwordx4 v[%d:%d], v46, s[%d:%d] offset:%d sc1" % (8 + 4 * i, 8 + 4 * i + 3, sWS, sWS + 1, 1024 * i))
    e("s_waitcnt vmcnt(0)")
    tags_ok([8 + 4 * k + o for k in range(4) for o in (1, 3)], "L_pollo_done", 0, 0)
    spin_guard("s13", "L_pollo_done")
    if P["osleep"]:
        e("s_sleep %d" % P["osleep"])
    e("s_branch L_pollo")
    e("L_pollo_done:")
    fin_o(8)
e("s_nop 1")
e("v_add_f32_dpp v24, v24, v24 row_ror:8 row_mask:0xf bank_mask:0xf\nv_add_f32_dpp v25, v25, v25 row_ror:8 row_mask:0xf bank_mask:0xf")
e("v_mov_b32 v26, v24\nv_mov_b32 v27, v25\ns_nop 1")
e("v_permlane16_swap_b32 v24, v26\nv_permlane16_swap_b32 v25, v27")
e("v_add_f32 v24, v24, v26\nv_add_f32 v25, v25, v27")
e("v_mov_b32 v26, v24\nv_mov_b32 v27, v25\ns_nop 1")
e("v_permlane32_swap_b32 v24, v26\nv_permlane32_swap_b32 v25, v27")
e("v_add_f32 v24, v24, v26\nv_add_f32 v25, v25, v27")
e("v_cvt_pk_bf16_f32 v24, v24, v25")
e("s_mul_i32 s12, s6, 896\ns_lshl_b32 s13, s11, 5\ns_add_u32 s12, s12, s13")
e("v_lshlrev_b32 v26, 2, v1\nv_add_u32 v26, s12, v26")
e("s_mov_b64 exec, 0xff")
e("global_store_dword v26, v24, s[%d:%d]" % (sOUT, sOUT + 1))
e("s_cmp_lg_u32 s2, 0\ns_cbranch_scc1 L_h_done")
e("s_mov_b64 exec, 1")
e("v_mov_b32 v26, %d\nv_mov_b32 v27, s9" % WS_E)
e("global_store_dword v26, v27, s[%d:%d] sc1      ; next launch's epoch" % (sWS, sWS + 1))
if DSP and not P.get("diagall", 0):
    e("s_cmp_lg_u32 s2, 0\ns_cbranch_scc1 L_h_done")
    if DSP == 1:
        e("s_memrealtime s[94:95]\ns_waitcnt lgkmcnt(0)")
    e("s_sub_u32 s12, s94, s92")
    e("s_min_u32 s12, s12, 20000")
    e("s_memrealtime s[94:95]\ns_waitcnt lgkmcnt(0)\ns_add_u32 s13, s94, s12")
    e("L_dspin:\ns_memrealtime s[94:95]\ns_waitcnt lgkmcnt(0)\ns_sub_u32 s14, s13, s94\ns_cmp_gt_i32 s14, 0\ns_cbranch_scc1 L_dspin")
e("L_h_done:")
if DSP and P.get("diagall", 0):
    e("s_cmp_lg_u32 s3, 0\ns_cbranch_scc1 L_dsp_done")
    e("s_sub_u32 s12, s94, s92\ns_min_u32 s12, s12, 20000\ns_add_u32 s13, s92, s12\ns_add_u32 s13, s13, s12\ns_add_u32 s13, s13, 6000")
    e("L_dspin:\ns_memrealtime s[94:95]\ns_waitcnt lgkmcnt(0)\ns_sub_u32 s14, s13, s94\ns_cmp_gt_i32 s14, 0\ns_cbranch_scc1 L_dspin")
    e("L_dsp_done:")
stamp(8)
if STAMPS:
    e("s_add_u32 s3, s3, 4")
stamp_flush(9)
e("L_end:")
e("s_endpgm")

e('.section .rodata,"a"\n.p2align 6\n.amdhsa_kernel %s' % KN)
e("  .amdhsa_next_free_vgpr 256\n  .amdhsa_next_free_sgpr 96\n  .amdhsa_accum_offset 256")
e("  .amdhsa_group_segment_fixed_size 0\n  .amdhsa_kernarg_size 64\n  .amdhsa_user_sgpr_count 2\n  .amdhsa_user_sgpr_kernarg_segment_ptr 1\n  .amdhsa_system_sgpr_workgroup_id_x 1")
e("  .amdhsa_float_denorm_mode_32 3")
e(".end_amdhsa_kernel")
open(out, "w").write("\n".join(L) + "\n")
```

```python
import sys, struct, copy

out = sys.argv[1]
P = dict(stamps=0, DI=6, DT=9, LAK=2, LAV=3, HOLD=4, B0AT=2, PBL=2, PEVERY=2, PMAX=0, PB2=2,
         NS=32, B3B=99, B3A=13, wo4a=1, wopre=2, worr=4, woprio=1, prio=1, spinmax=200000,
         INIT=10, WQB=7, NE=8, DIE=9, PP2=1, PSTAG=0, SLOWB=1, SLOWFROM=1, LOCAL=1,
         kflags="nt", vflags="nt", wqflags="none", woflags="none", xflags="none", asleep=0, osleep=0, ssleep=8, MAP=0, RANK=0, QMODE=1, gflags="sc1", oflags="none", lflags="none", eflags="none", tst="sc1", tstA="sc1", tldA="sc1", tld="sc1", XLO=1, XHI=1, TLO=85, THI=170, RK1=9, RK2=3)
for a in sys.argv[2:]:
    k, v = a.split("=")
    P[k] = int(v) if v.lstrip("-").isdigit() else v
def fl(name):
    return P[name].replace("+", " ").replace("none", "")
kflags, vflags, wqflags, woflags, xflags = fl("kflags"), fl("vflags"), fl("wqflags"), fl("woflags"), fl("xflags")
STAMPS = P["stamps"]
NS = P["NS"]
NP = 32 - NS
POOL = NP > 0
assert NP in (0, 8)

L = []
def e(s=""):
    L.extend(s.split("\n"))

KN = "standalone__gqa_block_cached__decode_kernel"

WQS = 131072
PB = 131072
HS = 2112
PPB = PB + 4352
TKB = PPB + 4352
FME = TKB + 192
QB = 147456
MAXX = QB + 1024
LSUM = MAXX + 128
TAGL = LSUM + 128
OST = TAGL + 64
DBGL = OST + 256
LVL = DBGL + 64
LOC = LVL + 16
LDS_TOTAL = LVL + 64
assert FME + 8 <= QB

WS_E = 0x0
WS_CNT = 0x10000
WS_ST = 0x30000
WS_XQ = 0x38000
WS_OP = 0x40000
WS_OUT = 0x140000
WS_Q = 0x300000
WS_PP = 0x400000
WS_STAMP = 400 * 1024 * 1024
TAGC = 0x9E3779B9
CEXP = struct.unpack("<I", struct.pack("<f", 1.4426950408889634 / 16.0))[0]

HEADER = """; standalone__gqa_block_cached__decode: out = softmax((x wq) K^T / 16) V wo   (B=8, Hq=16, Hkv=8, Sk=4096, Dh=256, D=448)
;
; Hand-offs between workgroups go through d_ws as 8-byte granules {value, tag}; tag = epoch word found in d_ws + constant,
; Stores are device-scope (sc1) unless all four workgroups of a pair were seen to run on the same XCD."""
for l in HEADER.split("\n"):
    e(l)
e("; @launch grid=(256,1,1) block=(512,1,1) lds=%d" % LDS_TOTAL)
e('.amdgcn_target "amdgcn-amd-amdhsa--gfx950"')
e(".text")
e(".globl %s\n.p2align 8\n.type %s,@function\n%s:" % (KN, KN, KN))

sX, sK, sV, sWQ, sWO, sOUT, sDBG, sWS = 16, 18, 20, 22, 24, 26, 28, 30
stampregs = list(range(64, 84, 2))
def stamp(i):
    if STAMPS:
        e("s_memrealtime s[%d:%d]\ns_waitcnt lgkmcnt(0)" % (stampregs[i], stampregs[i] + 1))
def stamp_flush(n):
    if STAMPS != 1:
        return
    e("s_getreg_b32 s84, hwreg(HW_REG_XCC_ID)")
    e("s_lshl_b32 s85, s2, 3\ns_add_u32 s85, s85, s3\ns_lshl_b32 s85, s85, 7\ns_add_u32 s85, s85, %d" % WS_STAMP)
    e("s_add_u32 s86, s%d, s85\ns_addc_u32 s87, s%d, 0" % (sWS, sWS + 1))
    e("s_mov_b64 exec, 1\nv_mov_b32 v1, 0")
    for i in range(10):
        k = min(i, n - 1)
        e("v_mov_b32 v2, s%d\nv_mov_b32 v3, s%d" % (stampregs[k], stampregs[k] + 1))
        e("global_store_dwordx2 v1, v[2:3], s[86:87] offset:%d\ns_nop 1" % (i * 8))
    e("v_mov_b32 v2, s84\nv_mov_b32 v3, 0\nglobal_store_dwordx2 v1, v[2:3], s[86:87] offset:80\ns_waitcnt vmcnt(0)")

def spin_guard(cnt, label):
    e("s_add_u32 %s, %s, 1\ns_cmp_gt_u32 %s, %d\ns_cbranch_scc1 %s" % (cnt, cnt, cnt, P["spinmax"], label))

def tags_ok(regs, okl, tmp0, tmp1):
    if len(regs) <= (4 if (tmp0 or tmp1) else 8):
        e("s_mov_b64 s[40:41], 0")
        for r in regs:
            e("v_cmp_ne_u32 vcc, s9, v%d\ns_or_b64 s[40:41], s[40:41], vcc" % r)
    else:
        e("v_min3_u32 v%d, v%d, v%d, v%d\nv_max3_u32 v%d, v%d, v%d, v%d" % (tmp0, regs[0], regs[1], regs[2], tmp1, regs[0], regs[1], regs[2]))
        k = 3
        while k < len(regs):
            if k + 1 < len(regs):
                e("v_min3_u32 v%d, v%d, v%d, v%d\nv_max3_u32 v%d, v%d, v%d, v%d" % (tmp0, tmp0, regs[k], regs[k + 1], tmp1, tmp1, regs[k], regs[k + 1])); k += 2
            else:
                e("v_min_u32 v%d, v%d, v%d\nv_max_u32 v%d, v%d, v%d" % (tmp0, tmp0, regs[k], tmp1, tmp1, regs[k])); k += 1
        e("v_cmp_ne_u32 s[40:41], s9, v%d\nv_cmp_ne_u32 vcc, s9, v%d\ns_or_b64 s[40:41], s[40:41], vcc" % (tmp0, tmp1))
    e("s_cmp_eq_u64 s[40:41], 0\ns_cbranch_scc1 %s" % okl)

e("s_cmp_ge_u32 s2, 256")
e("s_cbranch_scc1 L_end")
if STAMPS:
    e("s_memrealtime s[64:65]")
DSP = P.get("diagspin", 0)
if DSP:
    e("s_memrealtime s[92:93]")
if DSP == 9:
    e("s_waitcnt lgkmcnt(0)\ns_mov_b32 s94, s92")
e("s_load_dwordx16 s[16:31], s[0:1], 0")
e("v_lshrrev_b32 v1, 6, v0")
e("s_and_b32 s56, s2, 7             ; x")
e("v_readfirstlane_b32 s3, v1       ; wave")
e("s_lshr_b32 s4, s2, 3             ; y")
if P["MAP"] == 1:
    e("s_lshr_b32 s7, s56, 1            ; sp")
    e("s_xor_b32 s8, s56, s7\ns_and_b32 s8, s8, 1")
    e("s_lshl_b32 s5, s4, 1\ns_or_b32 s8, s8, s5              ; pair")
    e("s_and_b32 s5, s8, 7              ; hkv\ns_lshr_b32 s6, s8, 3             ; b")
else:
    e("s_mov_b32 s5, s56\ns_and_b32 s6, s4, 7\ns_lshr_b32 s7, s4, 3\ns_lshl_b32 s8, s6, 3\ns_add_u32 s8, s8, s5")
e("v_and_b32 v1, 63, v0             ; lane")
e("s_cmp_ge_u32 s3, 4")
e("s_cbranch_scc1 L_helper")

vKoff = list(range(2, 10)); vKrd = list(range(10, 18)); vVoff = list(range(18, 22)); vVrd = list(range(22, 26))
vPrd, vPwr, vQrd, vMrd, vMwr, vT3 = 26, 27, 28, 29, 30, 31
qB = 32; Sreg = 64; HOLDR = 128
Pa = 128; Vb = 132; acc = 148
vM, vMc, vL, vU = 164, 165, 166, 168
vA = [200, 201, 202, 203]
vOne, vCnt, vTk, vAd = 204, 205, 206, 208
vPP = 213

e("s_lshl_b32 s10, s3, 15")
e("s_lshl_b32 s11, s3, 12")
e("v_lshrrev_b32 v64, 5, v1\nv_and_b32 v65, 31, v1\nv_xor_b32 v65, v65, v64\nv_lshlrev_b32 v65, 4, v65")
e("v_lshl_add_u32 v%d, v64, 9, v65" % vKoff[0])
for n in range(1, 8):
    e("v_xor_b32 v%d, %d, v%d" % (vKoff[n], n << 5, vKoff[0]))
e("s_waitcnt lgkmcnt(0)")
e("s_lshl_b32 s12, s8, 21\ns_lshl_b32 s59, s7, 19\ns_add_u32 s13, s12, s59")
e("s_add_u32 s32, s%d, s13\ns_addc_u32 s33, s%d, 0\ns_mov_b32 s34, 0x80000\ns_mov_b32 s35, 0x20000" % (sK, sK + 1))
e("s_add_u32 s36, s%d, s12\ns_addc_u32 s37, s%d, 0\ns_mov_b32 s38, 0x200000\ns_mov_b32 s39, 0x20000" % (sV, sV + 1))

DI, LAK, LAV, DT = P["DI"], P["LAK"], P["LAV"], P["DT"]
class St:
    def __init__(self):
        self.ops = 0
        self.done = 0
        self.loads = 0
        self.opof = {}
        self.freed = 0
        self.use_level = False
        self.di0 = P.get('DI0', 0)
lbl = [0]
st = St()
NUNITS = 32 + NS + (2 if POOL else 0)
def wait_ops(x):
    if st.ops - st.done > x:
        e("s_waitcnt vmcnt(%d)" % x)
        st.done = st.ops - x
def wait_op(idx):
    if st.done <= idx:
        wait_ops(st.ops - 1 - idx)
def issue_load(di=None, dynsoff=None):
    n, jj = st.loads // 4, st.loads % 4
    if di is None:
        di = st.di0 if st.di0 else DI
        if n >= 32 + NS - P.get('NE', 0):
            di = P.get('DIE', di)
    assert n < st.freed + 8 and n < NUNITS
    if P.get("SLOWB", 0) and st.use_level and st.ops - st.done > di - 1:
        lbl[0] += 1
        k = lbl[0]
        e("s_cmp_eq_u32 s55, 2\ns_cbranch_scc1 L_lv%db\ns_waitcnt vmcnt(%d)\nL_lv%db:" % (k, di - 1, k))
        wait_ops(di - 1 + P["SLOWB"])
    elif P["RANK"] and st.use_level and st.ops - st.done > di - 1 - P["XLO"]:
        lbl[0] += 1
        k = lbl[0]
        e("s_cmp_lg_u32 s55, 0\ns_cbranch_scc1 L_lv%da\ns_waitcnt vmcnt(%d)\nL_lv%da:" % (k, di - 1 - P["XLO"], k))
        e("s_cmp_eq_u32 s55, 2\ns_cbranch_scc1 L_lv%db\ns_waitcnt vmcnt(%d)\nL_lv%db:" % (k, di - 1, k))
        wait_ops(di - 1 + P["XHI"])
    else:
        wait_ops(di - 1)
    if jj == 0:
        e("s_add_u32 m0, s10, %d" % ((n % 8) * 4096))
        if n < 32:
            e("s_add_u32 s14, s11, %d" % (n * 16384))
        elif n < 32 + NS:
            e("s_add_u32 s14, s59, %d" % ((n - 32) * 16384))
        else:
            assert dynsoff is not None
            e("s_mov_b32 s14, %s" % dynsoff)
    if n < 32:
        e("buffer_load_dwordx4 v%d, s[32:35], s14 offen offset:%d %s lds" % (vKoff[(n & 1) * 4 + jj], jj * 1024, kflags))
    else:
        e("buffer_load_dwordx4 v%d, s[36:39], s14 offen offset:%d %s lds" % (vVoff[jj], jj * 1024, vflags))
    st.opof[st.loads] = st.ops
    st.ops += 1; st.loads += 1
    if P.get("trace", 0) and jj == 3 and n < 64:
        e("s_memrealtime s[84:85]\ns_waitcnt lgkmcnt(0)\nv_writelane_b32 v0, s84, %d" % n)
def pump_until(nunits, di=None):
    nunits = min(nunits, 32 + NS, st.freed + 8)
    while st.loads < 4 * nunits:
        issue_load(di)
def pump(k, di=None):
    for _ in range(k):
        if st.loads // 4 < min(32 + NS, st.freed + 8):
            issue_load(di)
def need(nunits):
    wait_op(st.opof[4 * nunits - 1])

if P.get("SLOWB", 0):
    e("s_lshr_b32 s55, s4, 2\ns_cmp_eq_u32 s55, 3\ns_cselect_b32 s55, 2, 1")
    st.use_level = P.get("SLOWFROM", 0) == 0
pump(P.get('INIT', 0) or P.get('DI0', 0) or DI, P.get('INIT', 0) or None)
e("v_lshrrev_b32 v64, 3, v1\nv_lshrrev_b32 v65, 1, v64\nv_and_b32 v65, 3, v65\nv_lshlrev_b32 v65, 1, v65")
e("v_and_b32 v66, 7, v1\nv_xor_b32 v66, v66, v65\nv_lshlrev_b32 v66, 4, v66\nv_lshl_add_u32 v66, v64, 9, v66")
e("s_lshl_b32 s15, s3, 7\nv_add_u32 v%d, s15, v66" % vVoff[0])
for jj in range(1, 4):
    e("v_add_u32 v%d, %d, v%d" % (vVoff[jj], jj * 3072, vVoff[0]))
e("v_and_b32 v64, 15, v1             ; n\nv_lshrrev_b32 v65, 4, v1          ; g")
e("v_xor_b32 v66, v64, v65\nv_lshlrev_b32 v66, 4, v66\nv_lshl_add_u32 v66, v64, 9, v66\nv_add_u32 v%d, s10, v66" % vKrd[0])
for i in range(1, 8):
    e("v_xor_b32 v%d, %d, v%d" % (vKrd[i], i << 6, vKrd[0]))
e("v_and_b32 v66, 1, v65\nv_lshrrev_b32 v67, 3, v64\nv_lshl_or_b32 v67, v66, 1, v67")
e("v_lshrrev_b32 v68, 2, v64\nv_lshl_add_u32 v68, v66, 2, v68\nv_lshlrev_b32 v68, 7, v68")
e("v_lshrrev_b32 v69, 1, v65\nv_lshl_add_u32 v68, v69, 11, v68\nv_and_b32 v70, 3, v64\nv_lshl_add_u32 v68, v70, 3, v68\nv_add_u32 v68, s10, v68")
for t in range(4):
    e("v_xor_b32 v71, %d, v67\nv_lshl_add_u32 v%d, v71, 5, v68" % (t, vVrd[t]))
e("v_and_b32 v66, 1, v64             ; head\nv_mul_u32_u24 v72, %d, v66" % HS)
e("v_lshl_add_u32 v%d, v65, 4, v72\nv_add_u32 v%d, %d, v%d" % (vPrd, vPrd, PB, vPrd))
e("s_lshr_b32 s15, s3, 1\ns_lshl_b32 s15, s15, 5\ns_and_b32 s40, s3, 1\ns_lshl_b32 s40, s40, 3\ns_add_u32 s15, s15, s40\ns_add_u32 s15, s15, %d" % PB)
e("v_lshl_add_u32 v%d, v69, 6, v72\nv_and_b32 v73, 1, v65\nv_lshl_add_u32 v%d, v73, 4, v%d\nv_add_u32 v%d, s15, v%d" % (vPwr, vPwr, vPwr, vPwr, vPwr))
e("v_lshlrev_b32 v%d, 9, v66\nv_lshl_add_u32 v%d, v65, 4, v%d\nv_add_u32 v%d, %d, v%d" % (vQrd, vQrd, vQrd, vQrd, QB, vQrd))
e("v_lshlrev_b32 v%d, 6, v66\nv_add_u32 v%d, %d, v%d" % (vMrd, vMrd, MAXX, vMrd))
e("s_lshl_b32 s15, s3, 4\nv_lshl_add_u32 v%d, v65, 2, v%d\nv_add_u32 v%d, s15, v%d" % (vMwr, vMrd, vMwr, vMwr))

HOLDN = P["HOLD"]; B0AT = P["B0AT"]
pump_until(8)
if B0AT == 0:
    e("s_barrier")
for T in range(HOLDN):
    need(2 * T + 2)
    for i in range(8):
        r = HOLDR + 32 * T + 4 * i
        e("ds_read_b128 v[%d:%d], v%d offset:%d" % (r, r + 3, vKrd[i], (T % 4) * 8192))
    e("s_waitcnt lgkmcnt(0)")
    st.freed = 2 * T + 2
    pump_until(st.freed + 8)
    if B0AT == T + 1:
        e("s_barrier")
stamp(1)
st.di0 = P.get("DI1", 0)
if P.get("SLOWB", 0):
    st.use_level = True
e("s_barrier")
stamp(2)
for i in range(8):
    e("ds_read_b128 v[%d:%d], v%d offset:%d" % (qB + 4 * i, qB + 4 * i + 3, vQrd, i * 64))
e("v_mov_b32 v%d, %d\nds_read_b32 v%d, v%d\ns_waitcnt lgkmcnt(0)\nv_readfirstlane_b32 s9, v%d" % (vT3, TAGL, vT3, vT3, vT3))

def mfma16(d, a, b, c):
    e("v_mfma_f32_16x16x32_bf16 v[%d:%d], v[%d:%d], v[%d:%d], %s" % (d, d + 3, a, a + 3, b, b + 3, "0" if c is None else "v[%d:%d]" % (c, c + 3)))
def ktile(T, from_regs):
    e("; K tile %d" % T)
    S = Sreg + 4 * T
    if from_regs:
        for i in range(8):
            mfma16(S, HOLDR + 32 * T + 4 * i, qB + 4 * i, None if i == 0 else S)
        return
    nd = 2 * T + 2
    pump_until(nd + LAK)
    need(nd)
    for i in range(8):
        e("ds_read_b128 v[%d:%d], v%d offset:%d" % (AregK + 4 * i, AregK + 4 * i + 3, vKrd[i], (T % 4) * 8192))
    for i in range(8):
        e("s_waitcnt lgkmcnt(%d)" % (7 - i))
        mfma16(S, AregK + 4 * i, qB + 4 * i, None if i == 0 else S)
    st.freed = nd
    if T == HOLDN:
        pump(DI)
if HOLDN == 4:
    order = [(0, True)] + [(T, False) for T in range(4, 8)] + [(1, True), (2, True), (3, True)] + [(T, False) for T in range(8, 16)]
    AregK = HOLDR
else:
    order = [(T, False) for T in range(HOLDN, HOLDN + 4)] + [(T, True) for T in range(HOLDN)] + [(T, False) for T in range(HOLDN + 4, 16)]
    AregK = HOLDR + 32 * HOLDN
def read_level(k):
    e("v_mov_b32 v%d, %d\nds_read_b32 v%d, v%d\ns_waitcnt lgkmcnt(0)\nv_readfirstlane_b32 s55, v%d" % (vT3, LVL + 4 * k, vT3, vT3, vT3))
    st.use_level = True
def round_scores(T):
    S = Sreg + 4 * T
    for h in (0, 2):
        e("v_cvt_pk_bf16_f32 v%d, v%d, v%d" % (vT3, S + h, S + h + 1))
        e("v_lshlrev_b32 v%d, 16, v%d\nv_and_b32 v%d, 0xffff0000, v%d" % (S + h, vT3, S + h + 1, vT3))
prevT = None
for idx, (T, fr) in enumerate(order):
    if HOLDN and 2 <= idx < HOLDN + 4:
        pump(P["PBL"])
    if P["RANK"] and idx == P["RK1"]:
        read_level(0)
    if idx == P.get("B1B", -1):
        e("s_barrier")
    ktile(T, fr)
    if P.get("SROUND", 1):
        if prevT is not None:
            round_scores(prevT)
        prevT = T
stamp(3)
st.di0 = 0
e("; softmax")
pump(1, DT)
e("s_nop 7")
if P.get("SROUND", 1):
    round_scores(prevT)
e("v_max3_f32 v%d, v%d, v%d, v%d" % (vM, Sreg, Sreg + 1, Sreg + 2))
i = 3; cnt = 0
while i < 64:
    if i + 1 < 64:
        e("v_max3_f32 v%d, v%d, v%d, v%d" % (vM, vM, Sreg + i, Sreg + i + 1)); i += 2
    else:
        e("v_max_f32 v%d, v%d, v%d" % (vM, vM, Sreg + i)); i += 1
    cnt += 1
    if P["PMAX"] and cnt % P["PMAX"] == 0:
        pump(1, DT)
e("s_mov_b32 exec_lo, 0x00030003\ns_mov_b32 exec_hi, 0x00030003")
e("ds_write_b32 v%d, v%d" % (vMwr, vM))
e("s_mov_b64 exec, -1")
pump(P["PB2"], DT)
e("s_waitcnt lgkmcnt(0)")
e("s_barrier")
for i in range(4):
    e("ds_read_b128 v[%d:%d], v%d offset:%d" % (vU + 4 * i, vU + 4 * i + 3, vMrd, 16 * i))
e("s_waitcnt lgkmcnt(0)")
e("v_max3_f32 v%d, v%d, v%d, v%d" % (vM, vU, vU + 1, vU + 2))
for i in range(3, 15, 2):
    e("v_max3_f32 v%d, v%d, v%d, v%d" % (vM, vM, vU + i, vU + i + 1))
e("v_max_f32 v%d, v%d, v%d" % (vM, vM, vU + 15))
e("s_mov_b32 s15, 0x%08x" % CEXP)
e("v_mul_f32 v%d, s15, v%d" % (vMc, vM))
e("v_mov_b32 v%d, 0\nv_mov_b32 v%d, 0" % (vL, vL + 1))
def fold(p0):
    e("v_add_f32 v%d, v%d, v%d\nv_add_f32 v%d, v%d, v%d" % (vL, vL, p0, vL + 1, vL + 1, p0 + 1))
    e("v_add_f32 v%d, v%d, v%d\nv_add_f32 v%d, v%d, v%d" % (vL, vL, p0 + 2, vL + 1, vL + 1, p0 + 3))
    e("v_cvt_pk_bf16_f32 v%d, v%d, v%d\nv_cvt_pk_bf16_f32 v%d, v%d, v%d" % (p0, p0, p0 + 1, p0 + 1, p0 + 2, p0 + 3))
for T in range(16):
    s0 = Sreg + 4 * T
    for r in range(4):
        e("v_fma_f32 v%d, v%d, s15, -v%d" % (s0 + r, s0 + r, vMc))
    for r in range(4):
        e("v_exp_f32 v%d, v%d" % (s0 + r, s0 + r))
    if T % P["PEVERY"] == P["PEVERY"] - 1:
        pump(1, DT)
    if T > 0:
        fold(Sreg + 4 * (T - 1))
e("s_nop 0")
fold(Sreg + 60)
e("v_add_f32 v%d, v%d, v%d" % (vL, vL, vL + 1))
e("s_mov_b32 exec_lo, 0x00030003\ns_mov_b32 exec_hi, 0x00030003")
for T in range(16):
    e("ds_write_b64 v%d, v[%d:%d] offset:%d" % (vPwr, Sreg + 4 * T, Sreg + 4 * T + 1, T * 128))
e("ds_write_b32 v%d, v%d offset:%d" % (vMwr, vL, LSUM - MAXX))
e("s_mov_b64 exec, -1")
for t in range(16):
    e("v_mov_b32 v%d, 0" % (acc + t))
if POOL:
    e("s_lshl_b32 s12, s8, 7\ns_add_u32 s12, s12, %d\nv_mov_b32 v%d, s12\nv_mov_b32 v%d, 1\nv_mov_b32 v%d, %d" % (WS_CNT, vCnt, vOne, vTk, TKB))
    e("v_add_u32 v%d, %d, v%d" % (vPP, PPB - PB, vPrd))
pump(P["PB2"], DT)
e("s_waitcnt lgkmcnt(0)")
e("s_barrier")
stamp(4)
if P.get("SLOWB", 0) and not P.get("SLOWV", 0):
    st.use_level = False

def vunit_compute(paddr, poff, vaddrs, slot):
    e("ds_read_b128 v[%d:%d], v%d offset:%d" % (Pa, Pa + 3, paddr, poff))
    for t in range(4):
        e("ds_read_b64_tr_b16 v[%d:%d], v%d offset:%d" % (Vb + 4 * t, Vb + 4 * t + 1, vaddrs[t], slot))
        e("ds_read_b64_tr_b16 v[%d:%d], v%d offset:%d" % (Vb + 4 * t + 2, Vb + 4 * t + 3, vaddrs[t], slot + 1024))
    for t in range(4):
        e("s_waitcnt lgkmcnt(%d)" % (6 - 2 * t))
        mfma16(acc + 4 * t, Pa, Vb + 4 * t, acc + 4 * t)
def pub_setup():
    e("s_lshl_b32 s12, s8, 2\ns_add_u32 s12, s12, s3\ns_lshl_b32 s12, s12, 2\ns_add_u32 s12, s12, s7\ns_lshl_b32 s12, s12, 10\ns_add_u32 s12, s12, %d" % WS_OP)
    e("v_lshlrev_b32 v%d, 4, v1\nv_add_u32 v%d, s12, v%d" % (vQrd, vQrd, vQrd))
    e("s_mov_b32 s40, 0xffff0000\ns_mov_b32 s41, 0\ns_mov_b32 s42, 0\ns_mov_b32 s43, 0x0000ffff\ns_mov_b32 s44, 0\ns_mov_b32 s45, 0xffff0000")
    e("v_mov_b32 v%d, s9\nv_mov_b32 v%d, s9" % (vU + 1, vU + 3))
def vunit(u):
    n = 32 + u
    if P.get("HOIST", 1) and not POOL and u == NS - 2:
        pub_setup()
    e("; V unit %d" % u)
    if P["RANK"] and u == P["RK2"]:
        read_level(1)
    if P.get("LOCAL", 0) and u == NS - 3:
        e("v_mov_b32 v%d, %d\nds_read_b32 v%d, v%d\ns_waitcnt lgkmcnt(0)\nv_readfirstlane_b32 s57, v%d" % (vT3, LOC, vT3, vT3, vT3))
    pump_until(n + 1 + LAV)
    need(n + 1)
    vunit_compute(vPrd, u * 64, vVrd, (n % 8) * 4096)
    st.freed = n + 1
    if u in (7, 15) or (u == 23 and not POOL):
        stamp(7 + (u - 7) // 8)

sI, sSo, sPo0, sPo1, sPo2, sV0, sV1, sTk = 60, 61, 62, 63, 88, 89, 90, 91
def decode(tk, po, valid):
    e("s_and_b32 s12, %s, 3\ns_lshr_b32 s13, %s, 2" % (tk, tk))
    e("s_lshl_b32 s%d, s12, 3\ns_add_u32 s%d, s%d, s13\ns_lshl_b32 s%d, s%d, 6" % (po, po, po, po, po))
    e("s_lshl_b32 s12, s12, 19\ns_lshl_b32 s13, s13, 14\ns_add_u32 s12, s12, s13\ns_add_u32 s12, s12, %d" % (NS * 16384))
    e("s_cmp_lt_u32 %s, %d\ns_cselect_b32 s%d, s12, 0x7fff0000" % (tk, 4 * NP, sSo))
    if valid is not None:
        e("s_cselect_b32 s%d, 1, 0" % valid)
def get_ticket_lds(dyn):
    lbl[0] += 1
    k = lbl[0]
    e("s_mov_b32 s15, 0\nL_tk%d:" % k)
    e("ds_read_b32 v%d, v%d%s\ns_waitcnt lgkmcnt(0)\nv_readfirstlane_b32 s%d, v%d" % (vAd + 5 - 5 + 0, vTk, "" if dyn is None else " offset:%d" % (4 * dyn), sTk, vAd))
    spin_guard("s15", "L_tkd%d" % k)
    e("s_cmp_eq_u32 s%d, -1\ns_cbranch_scc1 L_tk%d\nL_tkd%d:" % (sTk, k, k))
def dyn_compute(po):
    e("s_and_b32 s12, s%d, 7\ns_lshl_b32 s12, s12, 12" % sI)
    for t in range(4):
        e("v_add_u32 v%d, s12, v%d" % (vAd + t, vVrd[t]))
    e("v_add_u32 v%d, s%d, v%d" % (vAd + 4, po, vPP))
    vunit_compute(vAd + 4, 0, [vAd + t for t in range(4)], 0)
def dyn_loads():
    e("s_add_u32 s12, s%d, 2\ns_and_b32 s12, s12, 7\ns_lshl_b32 s12, s12, 12\ns_add_u32 m0, s10, s12\ns_mov_b32 s14, s%d" % (sI, sSo))
    for jj in range(4):
        if P.get("DPACE", 0):
            e("s_waitcnt vmcnt(%d)" % (P["DPACE"] - 1))
        e("buffer_load_dwordx4 v%d, s[36:39], s14 offen offset:%d %s lds" % (vVoff[jj], jj * 1024, vflags))
def rescale_acc():
    e("; switch from own scale to the pair's scale")
    e("v_mov_b32 v%d, %d\nds_read_b64 v[%d:%d], v%d\ns_waitcnt lgkmcnt(0)\ns_nop 4" % (vAd, FME, vU, vU + 1, vAd))
    for t in range(4):
        e("v_mul_f32 v%d, v%d, v%d\nv_mul_f32 v%d, v%d, v%d" % (acc + 4 * t, acc + 4 * t, vU, acc + 4 * t + 1, acc + 4 * t + 1, vU + 1))
    e("s_nop 1")

if not POOL:
    for u in range(32):
        if u == P["B3A"]:
            e("s_barrier")
        if u == P.get("B3C", -1):
            e("s_barrier")
        vunit(u)
else:
    UA = NS - 6
    assert P["B3B"] < UA or P["B3B"] >= NS
    for u in range(UA):
        if u == P["B3B"]:
            e("s_barrier")
        if u == P["B3A"]:
            e("s_barrier")
        if u == P.get("B3C", -1):
            e("s_barrier")
        vunit(u)
    e("s_cmp_lg_u32 s3, 0\ns_cbranch_scc1 L_vfollow")
    snap = copy.deepcopy(st)
    for lead in (True, False):
        if not lead:
            st = snap
            e("L_vfollow:")
        tag = "a" if lead else "b"
        aop = {}
        for u in range(UA, NS):
            n = 32 + u
            e("; V unit %d (%s)" % (u, "leader" if lead else "follower"))
            k = u - UA
            if lead and k < 4:
                e("s_mov_b64 exec, 1\nglobal_atomic_add v%d, v%d, v%d, s[%d:%d] sc0 sc1\ns_mov_b64 exec, -1" % (vA[k], vCnt, vOne, sWS, sWS + 1))
                aop[k] = st.ops; st.ops += 1
            pump_until(n + 1 + LAV)
            kk = u - (NS - 2)
            if kk >= 0:
                if lead:
                    wait_op(aop[kk])
                    e("v_readfirstlane_b32 s%d, v%d\ns_mov_b64 exec, 1\nds_write_b32 v%d, v%d offset:%d\ns_mov_b64 exec, -1" % (sTk, vA[kk], vTk, vA[kk], 4 * kk))
                else:
                    get_ticket_lds(kk)
                decode("s%d" % sTk, sPo0 if kk == 0 else sPo1, sV0 if kk == 0 else sV1)
                for jj in range(4):
                    issue_load(None, "s%d" % sSo)
            need(n + 1)
            vunit_compute(vPrd, u * 64, vVrd, (n % 8) * 4096)
            st.freed = n + 1
        stamp(9)
        if P["B3B"] >= NS:
            e("s_barrier")
        rescale_acc()
        e("s_mov_b32 s%d, 0\nv_add_u32 v%d, 8, v%d" % (sI, vTk, vTk))
        e("s_waitcnt vmcnt(4)")
        e("L_pool_%s:" % tag)
        for par in range(2 if lead else 1):
            if lead:
                e("s_waitcnt vmcnt(5)")
                va = vA[2 + par]
                e("v_readfirstlane_b32 s%d, v%d\ns_mov_b64 exec, 1\nds_write_b32 v%d, v%d\ns_mov_b64 exec, -1" % (sTk, va, vTk, va))
            else:
                e("s_waitcnt vmcnt(4)")
                get_ticket_lds(None)
            e("s_cmp_ge_u32 s%d, %d\ns_cbranch_scc1 L_drain_%s" % (sTk, 4 * NP, tag))
            if lead:
                e("s_mov_b64 exec, 1\nglobal_atomic_add v%d, v%d, v%d, s[%d:%d] sc0 sc1\ns_mov_b64 exec, -1" % (va, vCnt, vOne, sWS, sWS + 1))
            decode("s%d" % sTk, sPo2, None)
            dyn_loads()
            dyn_compute(sPo0)
            e("s_mov_b32 s%d, s%d\ns_mov_b32 s%d, s%d\ns_add_u32 s%d, s%d, 1\nv_add_u32 v%d, 4, v%d" % (sPo0, sPo1, sPo1, sPo2, sI, sI, vTk, vTk))
            e("s_mov_b32 s%d, 1\ns_mov_b32 s%d, 1" % (sV0, sV1))
        e("s_branch L_pool_%s" % tag)
        e("L_drain_%s:" % tag)
        e("s_cmp_eq_u32 s%d, 0\ns_cbranch_scc1 L_dr1_%s" % (sV0, tag))
        dyn_compute(sPo0)
        e("L_dr1_%s:" % tag)
        e("s_waitcnt vmcnt(0)")
        e("s_cmp_eq_u32 s%d, 0\ns_cbranch_scc1 L_dr2_%s" % (sV1, tag))
        e("s_add_u32 s%d, s%d, 1" % (sI, sI))
        dyn_compute(sPo1)
        e("L_dr2_%s:" % tag)
        if lead:
            e("s_branch L_vdone")
    e("L_vdone:")
stamp(5)
if not P.get("HOIST", 1) or POOL:
    pub_setup()
e("s_nop 7")
for (m, a0) in (("s[40:41]", 4), ("s[42:43]", 8), ("s[44:45]", 12)):
    src0 = (acc + 0, acc + 1) if a0 == 4 else (vU, vU + 2)
    e("v_cndmask_b32 v%d, v%d, v%d, %s" % (vU, src0[0], acc + a0, m))
    e("v_cndmask_b32 v%d, v%d, v%d, %s" % (vU + 2, src0[1], acc + a0 + 1, m))
if P.get("LOCAL", 0):
    e("s_cmp_eq_u32 s57, 1\ns_cbranch_scc1 L_pub_local")
    e("global_store_dwordx4 v%d, v[%d:%d], s[%d:%d] sc1" % (vQrd, vU, vU + 3, sWS, sWS + 1))
    e("s_branch L_pub_done\nL_pub_local:")
    e("global_store_dwordx4 v%d, v[%d:%d], s[%d:%d] %s" % (vQrd, vU, vU + 3, sWS, sWS + 1, fl("lflags")))
    e("L_pub_done:")
else:
    e("global_store_dwordx4 v%d, v[%d:%d], s[%d:%d] %s" % (vQrd, vU, vU + 3, sWS, sWS + 1, fl("tstA")))
e("s_barrier")
if P.get("trace", 0):
    e("s_lshl_b32 s85, s2, 2\ns_add_u32 s85, s85, s3\ns_lshl_b32 s85, s85, 8\ns_add_u32 s85, s85, %d" % (WS_STAMP + 0x100000))
    e("v_lshlrev_b32 v2, 2, v1\nv_add_u32 v2, s85, v2\nglobal_store_dword v2, v0, s[%d:%d]\ns_waitcnt vmcnt(0)" % (sWS, sWS + 1))
stamp(6)
stamp_flush(10)
e("s_endpgm")


def poll2(name, addr, stride, sleep, finish, lf):
    A, B = 96, 112
    def issue(base):
        for i in range(4):
            e("global_load_dwordx4 v[%d:%d], v%d, s[%d:%d] offset:%d %s" % (base + 4 * i, base + 4 * i + 3, addr, sWS, sWS + 1, stride * i, lf))
    e("s_mov_b32 s13, 0")
    issue(A)
    if P.get("PSTAG", 0):
        e("s_sleep %d          ; offset the second polling round by half a round trip" % P["PSTAG"])
    e("L_%s:" % name)
    issue(B)
    e("s_waitcnt vmcnt(4)")
    tags_ok([A + 4 * k + o for k in range(4) for o in (1, 3)], "L_%s_a" % name, 28, 29)
    issue(A)
    e("s_waitcnt vmcnt(4)")
    tags_ok([B + 4 * k + o for k in range(4) for o in (1, 3)], "L_%s_b" % name, 28, 29)
    spin_guard("s13", "L_%s_b" % name)
    if sleep:
        e("s_sleep %d" % sleep)
    e("s_branch L_%s" % name)
    e("L_%s_a:" % name)
    finish(A)
    e("s_branch L_%s_done" % name)
    e("L_%s_b:" % name)
    finish(B)
    e("L_%s_done:" % name)
e("L_helper:")
e("s_sub_u32 s3, s3, 4              ; hw")
e("v_and_b32 v2, 15, v1             ; n\nv_lshrrev_b32 v3, 4, v1          ; g")
e("s_waitcnt lgkmcnt(0)")
e("s_cmp_lg_u32 s3, 0")
e("s_cbranch_scc0 L_w4")
if B0AT >= 0:
    e("s_barrier            ; B0")
e("s_branch L_h_b1")
e("L_w4:")
if P["prio"]:
    e("s_setprio 3")
e("s_load_dword s9, s[%d:%d], %d     ; epoch word" % (sWS, sWS + 1, WS_E))
if P.get("noq", 0):
    e("s_waitcnt lgkmcnt(0)\ns_add_u32 s9, s9, 0x%08x" % TAGC)
    if B0AT >= 0:
        e("s_barrier            ; B0")
    e("s_branch L_noq")
e("s_mov_b32 s32, s%d\ns_mov_b32 s33, s%d\ns_mov_b32 s34, %d\ns_mov_b32 s35, 0x20000" % (sWQ, sWQ + 1, 448 * 8192))
e("s_mov_b32 s36, s%d\ns_mov_b32 s37, s%d\ns_mov_b32 s38, %d\ns_mov_b32 s39, 0x20000" % (sX, sX + 1, 8 * 896))
QMODE = P['QMODE']
if QMODE == 2:
    e("s_and_b32 s57, s4, 7              ; cl\ns_lshr_b32 s58, s4, 3             ; kq")
    e("s_lshl_b32 s10, s58, 7\ns_mul_i32 s11, s58, 96\ns_add_u32 s11, s11, 64\ns_cmp_lt_u32 s58, 2\ns_cselect_b32 s10, s10, s11")
    e("s_lshl_b32 s11, s10, 13\ns_lshl_b32 s12, s56, 10\ns_add_u32 s11, s11, s12\ns_lshl_b32 s12, s57, 7\ns_add_u32 s11, s11, s12")
    e("v_lshrrev_b32 v4, 3, v1\nv_lshlrev_b32 v4, 13, v4\nv_and_b32 v5, 7, v1\nv_lshl_add_u32 v4, v5, 4, v4")
    XB = 8
    e("v_and_b32 v5, 7, v2\nv_mul_u32_u24 v5, 896, v5\nv_lshl_add_u32 v5, v3, 4, v5")
    e("s_lshl_b32 s10, s10, 1")
    def wq_loads(a, b):
        for m in range(a, b):
            e("s_mov_b32 m0, %d\ns_add_u32 s12, s11, %d" % (WQS + m * 1024, m * 8 * 8192))
            e("buffer_load_dwordx4 v4, s[32:35], s12 offen %s lds" % wqflags)
    def x_load(ks):
        e("buffer_load_dwordx4 v[%d:%d], v5, s[36:39], s10 offen offset:%d %s" % (XB + 4 * ks, XB + 4 * ks + 3, ks * 64, xflags))
    wq_loads(0, 12)
    for ks in range(3):
        x_load(ks)
    e("s_cmp_lt_u32 s58, 2\ns_cbranch_scc0 L_q3")
    wq_loads(12, 16); x_load(3)
    e("L_q3:")
    if POOL:
        e("s_cmp_ge_u32 s4, 8\ns_cbranch_scc1 L_nocnt")
        e("s_lshl_b32 s12, s4, 3\ns_add_u32 s12, s12, s56\ns_lshl_b32 s12, s12, 7\ns_add_u32 s12, s12, %d\nv_mov_b32 v6, s12\nv_mov_b32 v7, 0" % WS_CNT)
        e("s_mov_b64 exec, 1\nglobal_store_dword v6, v7, s[%d:%d] sc1\ns_mov_b64 exec, -1" % (sWS, sWS + 1))
        e("L_nocnt:")
    e("v_lshlrev_b32 v6, 10, v3\nv_lshrrev_b32 v7, 2, v2\nv_lshl_add_u32 v6, v7, 7, v6\nv_and_b32 v7, 3, v2\nv_lshl_add_u32 v6, v7, 3, v6\nv_add_u32 v6, %d, v6" % WQS)
    e("v_and_b32 v7, 7, v2\nv_lshlrev_b32 v7, 17, v7\nv_lshl_add_u32 v7, v3, 5, v7\nv_lshrrev_b32 v24, 3, v2\nv_lshl_add_u32 v7, v24, 4, v7")
    e("s_lshl_b32 s11, s56, 2\ns_add_u32 s11, s11, s58\ns_lshl_b32 s11, s11, 12\ns_lshl_b32 s12, s57, 9\ns_add_u32 s11, s11, s12\ns_add_u32 s11, s11, %d\nv_add_u32 v7, s11, v7" % WS_Q)
    LOCQ = P.get("LOCQ", 0)
    if LOCQ:
        assert P["MAP"] == 0
        e("s_waitcnt lgkmcnt(0)")
        e("s_add_u32 s9, s9, 0x%08x        ; tag of this launch" % TAGC)
        e("s_getreg_b32 s60, hwreg(HW_REG_XCC_ID)\ns_and_b32 s60, s60, 15")
        e("s_lshl_b32 s12, s56, 9\ns_add_u32 s12, s12, %d" % WS_XQ)
        e("v_and_b32 v89, 31, v1\nv_lshlrev_b32 v89, 4, v89\nv_add_u32 v89, s12, v89")
        e("s_lshl_b32 s13, s4, 4\ns_add_u32 s12, s12, s13\nv_mov_b32 v88, s12")
        e("v_mov_b32 v84, s60\nv_mov_b32 v85, s9\nv_mov_b32 v86, s60\nv_mov_b32 v87, s9")
        e("s_mov_b64 exec, 1\nglobal_store_dwordx4 v88, v[84:87], s[%d:%d] sc1\ns_mov_b64 exec, -1" % (sWS, sWS + 1))
        e("s_waitcnt vmcnt(0)")
        e("global_load_dwordx4 v[84:87], v89, s[%d:%d] sc1" % (sWS, sWS + 1))
    else:
        e("s_waitcnt vmcnt(0) lgkmcnt(0)")
        e("s_add_u32 s9, s9, 0x%08x        ; tag of this launch" % TAGC)
    WA = 32; QA = 64
    def q_reads(ks):
        b0 = WA + 16 * (ks & 1)
        for ct in range(4):
            e("ds_read_b64_tr_b16 v[%d:%d], v6 offset:%d" % (b0 + 4 * ct, b0 + 4 * ct + 1, ks * 4096 + ct * 32))
            e("ds_read_b64_tr_b16 v[%d:%d], v6 offset:%d" % (b0 + 4 * ct + 2, b0 + 4 * ct + 3, ks * 4096 + 512 + ct * 32))
    def q_mfma(ks):
        b0 = WA + 16 * (ks & 1)
        for ct in range(4):
            mfma16(QA + 4 * ct, b0 + 4 * ct, XB + 4 * ks, None if ks == 0 else QA + 4 * ct)
    q_reads(0); q_reads(1)
    e("s_waitcnt lgkmcnt(8)"); q_mfma(0)
    q_reads(2)
    e("s_waitcnt lgkmcnt(8)"); q_mfma(1)
    e("s_cmp_lt_u32 s58, 2\ns_cbranch_scc0 L_q3b")
    q_reads(3)
    e("s_waitcnt lgkmcnt(8)"); q_mfma(2)
    e("s_waitcnt lgkmcnt(0)"); q_mfma(3)
    e("s_branch L_q3c\nL_q3b:")
    e("s_waitcnt lgkmcnt(0)"); q_mfma(2)
    e("L_q3c:")
    QT = 96
    e("s_mov_b32 s40, 0xff00ff00\ns_mov_b32 s41, 0xff00ff00")
    for ct in range(4):
        e("v_mov_b32 v%d, s9\nv_mov_b32 v%d, s9" % (QT + 4 * ct + 1, QT + 4 * ct + 3))
    e("s_nop 1")
    for ct in range(4):
        e("v_cndmask_b32 v%d, v%d, v%d, s[40:41]" % (QT + 4 * ct, QA + 4 * ct, QA + 4 * ct + 2))
        e("v_cndmask_b32 v%d, v%d, v%d, s[40:41]" % (QT + 4 * ct + 2, QA + 4 * ct + 1, QA + 4 * ct + 3))
    if LOCQ:
        e("s_mov_b32 s13, 0\nL_pollx:\ns_waitcnt vmcnt(0)")
        tags_ok([85, 87], "L_pollx_done", 0, 0)
        spin_guard("s13", "L_pollx_done")
        e("global_load_dwordx4 v[84:87], v89, s[%d:%d] sc1\ns_branch L_pollx" % (sWS, sWS + 1))
        e("L_pollx_done:")
        e("v_cmp_ne_u32 s[40:41], s60, v84\ns_cmp_gt_u32 s13, %d\ns_cbranch_scc1 L_qpub_dev\ns_cmp_lg_u64 s[40:41], 0\ns_cbranch_scc1 L_qpub_dev" % P["spinmax"])
        for ct in range(4):
            e("global_store_dwordx4 v7, v[%d:%d], s[%d:%d] offset:%d" % (QT + 4 * ct, QT + 4 * ct + 3, sWS, sWS + 1, ct * 128))
        e("s_branch L_qpub_done\nL_qpub_dev:")
    for ct in range(4):
        e("global_store_dwordx4 v7, v[%d:%d], s[%d:%d] offset:%d sc1" % (QT + 4 * ct, QT + 4 * ct + 3, sWS, sWS + 1, ct * 128))
    if LOCQ:
        e("L_qpub_done:")
    stamp(1)
    if POOL:
        e("v_lshlrev_b32 v12, 2, v1\nv_add_u32 v12, %d, v12\nv_mov_b32 v13, -1\ns_mov_b32 exec_lo, -1\ns_mov_b32 exec_hi, 0x0000ffff" % TKB)
        e("ds_write_b32 v12, v13\ns_mov_b64 exec, -1")
    e("s_lshl_b32 s11, s8, 14\ns_add_u32 s11, s11, %d" % WS_Q)
    e("v_lshlrev_b32 v8, 4, v1\nv_add_u32 v8, s11, v8")
    for kq in range(1, 4):
        e("v_add_u32 v%d, %d, v8" % (8 + kq, kq * 4096))
    e("s_mov_b32 s13, 0")
    GQ = 128
    if B0AT >= 0:
        e("s_barrier            ; B0")
    e("L_pollq:")
    for kq in range(4):
        for i in range(4):
            r = GQ + 16 * kq + 4 * i
            e("global_load_dwordx4 v[%d:%d], v%d, s[%d:%d] offset:%d %s" % (r, r + 3, 8 + kq, sWS, sWS + 1, i * 1024, fl("gflags")))
    e("s_waitcnt vmcnt(0)")
    tags_ok([GQ + 4 * k + o for k in range(16) for o in (1, 3)], "L_pollq_done", 12, 13)
    spin_guard("s13", "L_pollq_done")
    e("s_branch L_pollq")
    e("L_pollq_done:")
    e("v_lshlrev_b32 v7, 2, v1\nv_add_u32 v7, %d, v7" % QB)
    for i in range(4):
        r = GQ + 4 * i
        e("v_add_f32 v%d, v%d, v%d\nv_add_f32 v%d, v%d, v%d" % (r, r, r + 16, r + 2, r + 2, r + 18))
        e("v_add_f32 v%d, v%d, v%d\nv_add_f32 v%d, v%d, v%d" % (r + 32, r + 32, r + 48, r + 34, r + 34, r + 50))
        e("v_add_f32 v%d, v%d, v%d\nv_add_f32 v%d, v%d, v%d" % (r, r, r + 32, r + 2, r + 2, r + 34))
        e("v_cvt_pk_bf16_f32 v%d, v%d, v%d" % (r, r, r + 2))
        e("ds_write_b32 v7, v%d offset:%d" % (r, i * 256))
else:
    assert not POOL
    e("s_lshl_b32 s10, s56, 5\ns_add_u32 s10, s10, s4           ; c")
    e("v_lshrrev_b32 v4, 1, v1\nv_lshlrev_b32 v4, 13, v4\nv_and_b32 v5, 1, v1\nv_lshl_add_u32 v4, v5, 4, v4")
    e("s_lshl_b32 s11, s10, 5\nv_add_u32 v4, s11, v4")
    for ks in range(14):
        e("s_mov_b32 m0, %d\ns_mov_b32 s12, %d" % (WQS + ks * 1024, ks * 262144))
        if P.get("WQB", 0) and ks >= P["WQB"]:
            e("s_waitcnt vmcnt(%d)" % (P["WQB"] - 1))
        e("buffer_load_dwordx4 v4, s[32:35], s12 offen %s lds" % wqflags)
    XB = 8
    e("v_and_b32 v5, 7, v2\nv_mul_u32_u24 v5, 896, v5\nv_lshl_add_u32 v5, v3, 4, v5\nv_lshrrev_b32 v6, 3, v2\nv_lshl_add_u32 v5, v6, 6, v5")
    for k2 in range(7):
        e("buffer_load_dwordx4 v[%d:%d], v5, s[36:39], 0 offen offset:%d %s" % (XB + 4 * k2, XB + 4 * k2 + 3, k2 * 128, xflags))
    e("v_lshlrev_b32 v6, 8, v3\nv_lshl_add_u32 v6, v2, 3, v6\nv_add_u32 v6, %d, v6" % WQS)
    e("v_lshlrev_b32 v7, 14, v2\nv_lshl_add_u32 v7, v3, 4, v7")
    e("s_lshl_b32 s11, s10, 6\ns_add_u32 s11, s11, %d\nv_add_u32 v7, s11, v7" % WS_Q)
    e("s_waitcnt vmcnt(0) lgkmcnt(0)")
    e("s_add_u32 s9, s9, 0x%08x        ; tag of this launch" % TAGC)
    WA = 40
    for ks in range(14):
        r = WA + 4 * (ks & 3)
        e("ds_read_b64_tr_b16 v[%d:%d], v6 offset:%d" % (r, r + 1, ks * 1024))
        e("ds_read_b64_tr_b16 v[%d:%d], v6 offset:%d" % (r + 2, r + 3, ks * 1024 + 128))
        if ks >= 2:
            pk = ks - 2
            e("s_waitcnt lgkmcnt(4)")
            mfma16(72 + 4 * (pk & 1), WA + 4 * (pk & 3), XB + 4 * (pk >> 1), None if pk < 2 else 72 + 4 * (pk & 1))
    for pk in (12, 13):
        e("s_waitcnt lgkmcnt(%d)" % (2 if pk == 12 else 0))
        mfma16(72 + 4 * (pk & 1), WA + 4 * (pk & 3), XB + 4 * (pk >> 1), 72 + 4 * (pk & 1))
    e("v_mov_b32 v81, s9\nv_mov_b32 v83, s9\ns_nop 7")
    for r in range(4):
        e("v_add_f32_dpp v%d, v%d, v%d row_ror:8 row_mask:0xf bank_mask:0xf" % (72 + r, 76 + r, 72 + r))
    e("v_cvt_pk_bf16_f32 v80, v72, v73\nv_cvt_pk_bf16_f32 v82, v74, v75")
    e("s_mov_b32 exec_lo, 0x00ff00ff\ns_mov_b32 exec_hi, 0x00ff00ff")
    e("global_store_dwordx4 v7, v[80:83], s[%d:%d] sc1" % (sWS, sWS + 1))
    e("s_mov_b64 exec, -1")
    stamp(1)
    e("s_lshl_b32 s11, s6, 14\ns_lshl_b32 s12, s5, 11\ns_add_u32 s11, s11, s12\ns_add_u32 s11, s11, %d" % WS_Q)
    e("v_lshlrev_b32 v7, 4, v1\nv_add_u32 v7, s11, v7")
    e("s_mov_b32 s13, 0")
    if B0AT >= 0:
        e("s_barrier            ; B0")
    e("L_pollq:")
    e("global_load_dwordx4 v[84:87], v7, s[%d:%d] %s" % (sWS, sWS + 1, fl("gflags")))
    e("global_load_dwordx4 v[88:91], v7, s[%d:%d] offset:1024 %s" % (sWS, sWS + 1, fl("gflags")))
    e("s_waitcnt vmcnt(0)")
    tags_ok([85, 87, 89, 91], "L_pollq_done", 0, 0)
    spin_guard("s13", "L_pollq_done")
    e("s_branch L_pollq")
    e("L_pollq_done:")
    e("v_mov_b32 v85, v86\nv_mov_b32 v89, v90")
    e("v_lshlrev_b32 v7, 3, v1\nv_add_u32 v7, %d, v7" % QB)
    e("ds_write_b64 v7, v[84:85]\nds_write_b64 v7, v[88:89] offset:512")
e("L_noq:")
e("v_mov_b32 v8, %d\nv_mov_b32 v9, s9\nds_write_b32 v8, v9" % TAGL)
if P["RANK"]:
    e("v_mov_b32 v8, %d\nv_mov_b32 v10, 1\nv_mov_b32 v11, 1\nds_write_b64 v8, v[10:11]" % LVL)
if P.get("LOCAL", 0):
    e("v_mov_b32 v8, %d\nv_mov_b32 v10, 0\nds_write_b32 v8, v10" % LOC)
e("s_waitcnt lgkmcnt(0)")
if P["prio"]:
    e("s_setprio 0")
e("L_h_b1:")
if DSP == 8:
    e("s_memrealtime s[94:95]\ns_waitcnt lgkmcnt(0)")
stamp(2)
e("s_barrier            ; B1")
if DSP == 2:
    e("s_memrealtime s[94:95]\ns_waitcnt lgkmcnt(0)")

e("v_mov_b32 v8, %d\nds_read_b32 v8, v8\ns_waitcnt lgkmcnt(0)\nv_readfirstlane_b32 s9, v8" % TAGL)
def rank_checkpoint(k):
    lbl[0] += 1
    lab = "L_rk%d" % lbl[0]
    e("s_cmp_lg_u32 s3, 1\ns_cbranch_scc1 %s" % lab)
    e("s_mov_b64 exec, 1\nv_mov_b32 v10, %d\nv_mov_b32 v11, 1\nglobal_atomic_add v12, v10, v11, s[%d:%d] sc0 sc1\ns_waitcnt vmcnt(0)" % (4 * k, sDBG, sDBG + 1))
    e("v_readfirstlane_b32 s12, v12\ns_nop 3\ns_cmp_ge_u32 s12, %d\ns_cselect_b32 s13, 1, 0\ns_cmp_ge_u32 s12, %d\ns_cselect_b32 s13, 2, s13" % (P["TLO"], P["THI"]))
    e("v_mov_b32 v10, %d\nv_mov_b32 v11, s13\nds_write_b32 v10, v11\ns_waitcnt lgkmcnt(0)\ns_mov_b64 exec, -1" % (LVL + 4 * k))
    e("%s:" % lab)
if P["RANK"]:
    rank_checkpoint(0)
e("s_mov_b32 s32, s%d\ns_mov_b32 s33, s%d\ns_mov_b32 s34, %d\ns_mov_b32 s35, 0x20000" % (sWO, sWO + 1, 4096 * 896))
e("v_mul_u32_u24 v47, %d, v3\nv_lshl_add_u32 v47, v2, 4, v47\ns_lshl_b32 s10, s3, 8\nv_add_u32 v47, s10, v47" % (8 * 896))
e("s_cmp_eq_u32 s3, 3\ns_cselect_b32 s12, 0x7fffffff, 0")
e("v_mov_b32 v9, s12\nv_cmp_lt_u32 vcc, 7, v2\ns_nop 1\nv_cndmask_b32 v9, 0, v9, vcc\nv_or_b32 v47, v47, v9")
e("s_lshl_b32 s54, s5, 9\ns_lshl_b32 s11, s7, 6\ns_add_u32 s54, s54, s11\ns_mul_i32 s54, s54, 896")
e("s_mov_b32 s46, 0x05040100\ns_mov_b32 s47, 0x07060302")
RAW = 96; WOH = [128 + 32 * ks for ks in range(4)]
def wo_load(ks):
    rowoff = ((ks >> 1) * 256 + (ks & 1) * 32) * 896
    R = P["worr"]
    for j0 in range(0, 8, R):
        if P["woprio"]:
            e("s_setprio 3")
        for j in range(j0, j0 + R):
            e("s_add_u32 s12, s54, %d" % (rowoff + j * 896))
            e("buffer_load_dwordx4 v[%d:%d], v47, s[32:35], s12 offen %s" % (RAW + 4 * j, RAW + 4 * j + 3, woflags))
        if P["woprio"]:
            e("s_setprio 0")
        e("s_waitcnt vmcnt(0)")
    for t in range(8):
        for p in range(4):
            e("v_perm_b32 v%d, v%d, v%d, %s" % (WOH[ks] + t * 4 + p, RAW + 4 * (2 * p + 1) + (t >> 1), RAW + 4 * (2 * p) + (t >> 1), "s47" if (t & 1) else "s46"))
NPRE = P["wopre"]
if P.get("B1B", -1) >= 0:
    e("s_barrier            ; B1b")
for ks in range(NPRE):
    wo_load(ks)
stamp(3)
e("s_barrier            ; B2")
e("s_barrier            ; B3")
if DSP == 3:
    e("s_memrealtime s[94:95]\ns_waitcnt lgkmcnt(0)")

if P["RANK"]:
    rank_checkpoint(1)
e("s_cmp_lg_u32 s3, 0\ns_cbranch_scc1 L_h_wo2")
e("v_and_b32 v4, 1, v2\nv_lshlrev_b32 v4, 6, v4\nv_add_u32 v4, %d, v4" % MAXX)
for i in range(4):
    e("ds_read_b128 v[%d:%d], v4 offset:%d" % (8 + 4 * i, 8 + 4 * i + 3, 16 * i))
for i in range(4):
    e("ds_read_b128 v[%d:%d], v4 offset:%d" % (24 + 4 * i, 24 + 4 * i + 3, LSUM - MAXX + 16 * i))
if POOL:
    e("v_lshrrev_b32 v5, 5, v1\nv_mul_u32_u24 v5, %d, v5\nv_and_b32 v6, 31, v1\nv_lshl_add_u32 v5, v6, 4, v5\nv_add_u32 v5, %d, v5" % (HS, PB + NS * 64))
    e("ds_read_b128 v[56:59], v5")
e("s_waitcnt lgkmcnt(0)")
e("v_max3_f32 v40, v8, v9, v10")
for i in range(3, 15, 2):
    e("v_max3_f32 v40, v40, v%d, v%d" % (8 + i, 8 + i + 1))
e("v_max_f32 v40, v40, v23")
e("v_add_f32 v42, v24, v25")
for i in range(2, 16):
    e("v_add_f32 v42, v42, v%d" % (24 + i))
e("v_mov_b32 v41, s9\nv_mov_b32 v43, s9")
e("s_getreg_b32 s60, hwreg(HW_REG_XCC_ID)\ns_and_b32 s60, s60, 15\nv_mov_b32 v44, s60\ns_mov_b64 s[40:41], 4")
e("v_cndmask_b32 v40, v40, v44, s[40:41]\nv_cndmask_b32 v42, v42, v44, s[40:41]")
e("s_lshl_b32 s10, s8, 2\ns_add_u32 s10, s10, s7\ns_lshl_b32 s12, s10, 6\ns_add_u32 s12, s12, %d" % WS_ST)
e("v_lshlrev_b32 v5, 4, v1\nv_add_u32 v6, s12, v5")
e("s_mov_b64 exec, 7\nglobal_store_dwordx4 v6, v[40:43], s[%d:%d] sc1\ns_mov_b64 exec, -1" % (sWS, sWS + 1))
if POOL:
    e("v_mov_b32 v60, v56\nv_mov_b32 v61, s9\nv_mov_b32 v62, v57\nv_mov_b32 v63, s9")
    e("v_mov_b32 v64, v58\nv_mov_b32 v65, s9\nv_mov_b32 v66, v59\nv_mov_b32 v67, s9")
    e("s_lshl_b32 s12, s10, 11\ns_add_u32 s12, s12, %d\nv_add_u32 v6, s12, v5" % WS_PP)
    e("global_store_dwordx4 v6, v[60:63], s[%d:%d] sc1\nglobal_store_dwordx4 v6, v[64:67], s[%d:%d] offset:1024 sc1" % (sWS, sWS + 1, sWS, sWS + 1))
N4A = NPRE
if P["B3A"] >= 0:
    for ks in range(NPRE, min(4, NPRE + P["wo4a"])):
        wo_load(ks)
        N4A = ks + 1
    e("s_barrier            ; B3a")
e("s_lshl_b32 s10, s8, 8\ns_add_u32 s10, s10, %d" % WS_ST)
e("v_and_b32 v5, 3, v1\nv_cmp_eq_u32 vcc, 3, v5\ns_nop 1\nv_cndmask_b32 v5, v5, 1, vcc\nv_lshlrev_b32 v5, 4, v5\nv_add_u32 v5, s10, v5")
e("s_mov_b32 s13, 0")
e("L_polls:")
for s_ in range(4):
    e("global_load_dwordx4 v[%d:%d], v5, s[%d:%d] offset:%d sc1" % (8 + 4 * s_, 8 + 4 * s_ + 3, sWS, sWS + 1, 64 * s_))
e("s_waitcnt vmcnt(0)")
tags_ok([8 + 4 * k + o for k in range(4) for o in (1, 3)], "L_polls_done", 0, 0)
spin_guard("s13", "L_polls_done")
e("s_sleep %d\ns_branch L_polls" % P["ssleep"])
e("L_polls_done:")
if P.get("LOCAL", 0):
    e("v_cmp_ne_u32 s[40:41], s60, v8\nv_cmp_ne_u32 s[42:43], s60, v12\ns_or_b64 s[40:41], s[40:41], s[42:43]")
    e("v_cmp_ne_u32 s[42:43], s60, v16\ns_or_b64 s[40:41], s[40:41], s[42:43]\nv_cmp_ne_u32 s[42:43], s60, v20\ns_or_b64 s[40:41], s[40:41], s[42:43]")
    e("s_and_b32 s40, s40, 4\ns_cmp_eq_u32 s40, 0\ns_cselect_b32 s40, 1, 0")
    e("s_cmp_gt_u32 s13, %d\ns_cselect_b32 s40, 0, s40" % P["spinmax"])
    e("v_mov_b32 v33, %d\nv_mov_b32 v34, s40\nds_write_b32 v33, v34" % LOC)
e("v_max3_f32 v24, v8, v12, v16\nv_max_f32 v24, v24, v20")
e("s_mov_b32 s15, 0x%08x" % CEXP)
for s_ in range(4):
    e("v_sub_f32 v%d, v%d, v24\nv_mul_f32 v%d, s15, v%d" % (26 + s_, 8 + 4 * s_, 26 + s_, 26 + s_))
for s_ in range(4):
    e("v_exp_f32 v%d, v%d" % (26 + s_, 26 + s_))
e("s_nop 0")
e("v_mul_f32 v30, v26, v10\nv_fmac_f32 v30, v27, v14\nv_fmac_f32 v30, v28, v18\nv_fmac_f32 v30, v29, v22")
e("v_rcp_f32 v31, v30\ns_nop 0\nv_fma_f32 v32, -v30, v31, 2.0\nv_mul_f32 v31, v31, v32")
if not POOL:
    for s_ in range(4):
        e("v_mul_f32 v%d, v%d, v31" % (26 + s_, 26 + s_))
    e("s_nop 1")
    for s_ in range(4):
        e("v_mov_b32_dpp v%d, v%d quad_perm:[0,0,0,0] row_mask:0xf bank_mask:0xf" % (48 + s_, 26 + s_))
        e("v_mov_b32_dpp v%d, v%d quad_perm:[1,1,1,1] row_mask:0xf bank_mask:0xf" % (52 + s_, 26 + s_))
else:
    e("s_nop 1")
    e("v_mov_b32_dpp v48, v31 quad_perm:[0,0,0,0] row_mask:0xf bank_mask:0xf\nv_mov_b32_dpp v52, v31 quad_perm:[1,1,1,1] row_mask:0xf bank_mask:0xf")
    e("v_mov_b32 v33, v26")
    for k in range(1, 4):
        e("s_cmp_eq_u32 s7, %d\ns_cselect_b64 s[40:41], -1, 0\nv_cndmask_b32 v33, v33, v%d, s[40:41]" % (k, 26 + k))
    e("v_lshlrev_b32 v34, 2, v1\nv_add_u32 v34, %d, v34\ns_mov_b64 exec, 3\nds_write_b32 v34, v33\ns_mov_b64 exec, -1" % FME)
    for o in range(4):
        e("v_mov_b32_dpp v%d, v%d quad_perm:[0,0,0,0] row_mask:0xf bank_mask:0xf" % (36 + o, 26 + o))
        e("v_mov_b32_dpp v%d, v%d quad_perm:[1,1,1,1] row_mask:0xf bank_mask:0xf" % (40 + o, 26 + o))
    e("s_mov_b32 s40, 0\ns_mov_b32 s41, -1")
    for o in range(4):
        e("v_cndmask_b32 v%d, v%d, v%d, s[40:41]" % (36 + o, 36 + o, 40 + o))
    e("s_lshl_b32 s10, s8, 13\ns_add_u32 s10, s10, %d\nv_lshlrev_b32 v5, 4, v1\nv_add_u32 v5, s10, v5\nv_add_u32 v6, 4096, v5" % WS_PP)
    e("s_mov_b32 s13, 0")
    GP = 56
    e("L_pollp:")
    for o in range(4):
        for i in range(2):
            r = GP + 8 * o + 4 * i
            e("global_load_dwordx4 v[%d:%d], v%d, s[%d:%d] offset:%d sc1" % (r, r + 3, 5 if o < 2 else 6, sWS, sWS + 1, (o & 1) * 2048 + i * 1024))
    e("s_waitcnt vmcnt(0)")
    tags_ok([GP + 4 * k + o for k in range(8) for o in (1, 3)], "L_pollp_done", 12, 13)
    spin_guard("s13", "L_pollp_done")
    e("s_sleep %d\ns_branch L_pollp" % P["ssleep"])
    e("L_pollp_done:")
    e("v_lshrrev_b32 v7, 5, v1\nv_mul_u32_u24 v7, %d, v7\nv_and_b32 v8, 31, v1\nv_lshl_add_u32 v7, v8, 4, v7\nv_add_u32 v7, %d, v7" % (HS, PPB))
    for o in range(4):
        for i in range(2):
            r = GP + 8 * o + 4 * i
            for d in (0, 2):
                e("v_lshlrev_b32 v8, 16, v%d\nv_and_b32 v9, 0xffff0000, v%d" % (r + d, r + d))
                e("v_mul_f32 v8, v8, v%d\nv_mul_f32 v9, v9, v%d" % (36 + o, 36 + o))
                e("v_cvt_pk_bf16_f32 v%d, v8, v9" % (r + d // 2))
            e("ds_write_b64 v7, v[%d:%d] offset:%d" % (r, r + 1, o * 512 + i * 8))
    e("s_waitcnt lgkmcnt(0)")
    e("s_barrier            ; B3b")
if P.get("B3C", -1) >= 0:
    e("s_barrier            ; B3c")
for ks in range(N4A, 4):
    wo_load(ks)
e("s_branch L_h_b4")
e("L_h_wo2:")
WL = P.get("WOLATE", 0)
for ks in range(NPRE, 4 - WL):
    wo_load(ks)
if P["B3A"] >= 0:
    e("s_barrier            ; B3a")
assert not (POOL and WL)
if P.get("B3C", -1) >= 0:
    e("s_barrier            ; B3c")
for ks in range(max(NPRE, 4 - WL), 4):
    wo_load(ks)
if POOL:
    e("s_barrier            ; B3b")
e("L_h_b4:")
stamp(4)
e("s_lshl_b32 s10, s8, 2\ns_add_u32 s10, s10, s7\ns_lshl_b32 s10, s10, 12\ns_add_u32 s10, s10, %d" % WS_OP)
e("v_lshlrev_b32 v5, 4, v1\nv_add_u32 v5, s10, v5")
e("v_lshlrev_b32 v6, 1, v1\nv_add_u32 v6, %d, v6" % OST)
e("v_lshlrev_b32 v7, 4, v3\nv_add_u32 v7, %d, v7" % OST)
e("s_lshl_b32 s11, s5, 2\ns_add_u32 s11, s11, s7          ; p")
e("s_mul_i32 s12, s6, 28\ns_lshl_b32 s13, s3, 3\ns_add_u32 s12, s12, s13\ns_lshl_b32 s12, s12, 5\ns_add_u32 s12, s12, s11\ns_lshl_b32 s12, s12, 7\ns_add_u32 s12, s12, %d" % WS_OUT)
e("v_lshrrev_b32 v44, 1, v2\nv_lshlrev_b32 v44, 12, v44")
e("v_and_b32 v45, 1, v2\nv_lshl_add_u32 v45, v45, 2, v3\nv_lshl_add_u32 v44, v45, 4, v44\nv_add_u32 v44, s12, v44")
e("s_mul_i32 s12, s6, 28\ns_add_u32 s12, s12, s11\ns_lshl_b32 s12, s12, 12\ns_add_u32 s12, s12, %d" % WS_OUT)
e("v_lshlrev_b32 v46, 4, v1\nv_add_u32 v46, s12, v46")
e("s_mov_b32 s48, 0xffff0000\ns_mov_b32 s49, 0\ns_mov_b32 s50, 0\ns_mov_b32 s51, 0x0000ffff\ns_mov_b32 s52, 0\ns_mov_b32 s53, 0xffff0000")
e("s_barrier            ; B4")
if DSP == 4:
    e("s_memrealtime s[94:95]\ns_waitcnt lgkmcnt(0)")
stamp(5)
e("s_cmp_lg_u32 s3, 0\ns_cbranch_scc1 L_h_b5")
def fin_a(r):
    if POOL:
        e("v_add_f32 v24, v%d, v%d\nv_add_f32 v25, v%d, v%d\nv_add_f32 v26, v%d, v%d\nv_add_f32 v27, v%d, v%d" % (r, r + 4, r + 2, r + 6, r + 8, r + 12, r + 10, r + 14))
        e("v_add_f32 v24, v24, v26\nv_add_f32 v25, v25, v27\nv_mul_f32 v24, v24, v48\nv_mul_f32 v25, v25, v52")
    else:
        e("v_mul_f32 v24, v48, v%d\nv_mul_f32 v25, v52, v%d" % (r, r + 2))
        for s_ in range(1, 4):
            e("v_fmac_f32 v24, v%d, v%d\nv_fmac_f32 v25, v%d, v%d" % (48 + s_, r + 4 * s_, 52 + s_, r + 2 + 4 * s_))
if P.get("PP2", 0):
    poll2("polla", 5, 1024, P["asleep"], fin_a, fl("tldA"))
else:
    e("s_mov_b32 s13, 0")
    e("L_polla:")
    for s_ in range(4):
        e("global_load_dwordx4 v[%d:%d], v5, s[%d:%d] offset:%d sc1" % (8 + 4 * s_, 8 + 4 * s_ + 3, sWS, sWS + 1, 1024 * s_))
    e("s_waitcnt vmcnt(0)")
    tags_ok([8 + 4 * k + o for k in range(4) for o in (1, 3)], "L_polla_done", 0, 0)
    spin_guard("s13", "L_polla_done")
    if P["asleep"]:
        e("s_sleep %d" % P["asleep"])
    e("s_branch L_polla")
    e("L_polla_done:")
    fin_a(8)
e("v_cvt_pk_bf16_f32 v24, v24, v25")
e("ds_write_b16 v6, v24\nds_write_b16_d16_hi v6, v24 offset:128")
e("s_waitcnt lgkmcnt(0)")
e("L_h_b5:")
if DSP == 5:
    e("s_memrealtime s[94:95]\ns_waitcnt lgkmcnt(0)")
stamp(6)
e("s_barrier")
for ks in range(4):
    e("ds_read_b128 v[%d:%d], v7 offset:%d" % (8 + 4 * ks, 8 + 4 * ks + 3, ks * 64))
OA = 56
for ks in range(4):
    e("s_waitcnt lgkmcnt(%d)" % (3 - ks))
    for t in range(8):
        mfma16(OA + 4 * t, 8 + 4 * ks, WOH[ks] + t * 4, None if ks == 0 else OA + 4 * t)
e("v_mov_b32 v25, s9\nv_mov_b32 v27, s9")
e("s_nop 7")
e("v_cndmask_b32 v24, v%d, v%d, s[48:49]\nv_cndmask_b32 v26, v%d, v%d, s[48:49]" % (OA, OA + 8, OA + 4, OA + 12))
e("v_cndmask_b32 v24, v24, v%d, s[50:51]\nv_cndmask_b32 v26, v26, v%d, s[50:51]" % (OA + 16, OA + 20))
e("v_cndmask_b32 v24, v24, v%d, s[52:53]\nv_cndmask_b32 v26, v26, v%d, s[52:53]" % (OA + 24, OA + 28))
e("s_cmp_eq_u32 s3, 3\ns_cselect_b32 s12, 0x00ff00ff, -1\ns_mov_b32 exec_lo, s12\ns_mov_b32 exec_hi, s12")
e("global_store_dwordx4 v44, v[24:27], s[%d:%d] %s" % (sWS, sWS + 1, fl("tst")))
e("s_mov_b64 exec, -1")
stamp(7)
e("s_cmp_lg_u32 s3, 0\ns_cbranch_scc1 L_h_done")
e("s_cmp_ge_u32 s11, 28\ns_cbranch_scc1 L_h_done")
def fin_o(r):
    e("v_add_f32 v24, v%d, v%d\nv_add_f32 v25, v%d, v%d\nv_add_f32 v26, v%d, v%d\nv_add_f32 v27, v%d, v%d" % (r, r + 4, r + 2, r + 6, r + 8, r + 12, r + 10, r + 14))
    e("v_add_f32 v24, v24, v26\nv_add_f32 v25, v25, v27")
if P.get("PP2", 0):
    poll2("pollo", 46, 1024, P["osleep"], fin_o, fl("tld"))
else:
    e("s_mov_b32 s13, 0")
    e("L_pollo:")
    for i in range(4):
        e("global_load_dwordx4 v[%d:%d], v46, s[%d:%d] offset:%d sc1" % (8 + 4 * i, 8 + 4 * i + 3, sWS, sWS + 1, 1024 * i))
    e("s_waitcnt vmcnt(0)")
    tags_ok([8 + 4 * k + o for k in range(4) for o in (1, 3)], "L_pollo_done", 0, 0)
    spin_guard("s13", "L_pollo_done")
    if P["osleep"]:
        e("s_sleep %d" % P["osleep"])
    e("s_branch L_pollo")
    e("L_pollo_done:")
    fin_o(8)
e("s_nop 1")
e("v_add_f32_dpp v24, v24, v24 row_ror:8 row_mask:0xf bank_mask:0xf\nv_add_f32_dpp v25, v25, v25 row_ror:8 row_mask:0xf bank_mask:0xf")
e("v_mov_b32 v26, v24\nv_mov_b32 v27, v25\ns_nop 1")
e("v_permlane16_swap_b32 v24, v26\nv_permlane16_swap_b32 v25, v27")
e("v_add_f32 v24, v24, v26\nv_add_f32 v25, v25, v27")
e("v_mov_b32 v26, v24\nv_mov_b32 v27, v25\ns_nop 1")
e("v_permlane32_swap_b32 v24, v26\nv_permlane32_swap_b32 v25, v27")
e("v_add_f32 v24, v24, v26\nv_add_f32 v25, v25, v27")
e("v_cvt_pk_bf16_f32 v24, v24, v25")
e("s_mul_i32 s12, s6, 896\ns_lshl_b32 s13, s11, 5\ns_add_u32 s12, s12, s13")
e("v_lshlrev_b32 v26, 2, v1\nv_add_u32 v26, s12, v26")
e("s_mov_b64 exec, 0xff")
e("global_store_dword v26, v24, s[%d:%d] %s" % (sOUT, sOUT + 1, fl("oflags")))
e("s_cmp_lg_u32 s2, 0\ns_cbranch_scc1 L_h_done")
e("s_mov_b64 exec, 1")
e("v_mov_b32 v26, %d\nv_mov_b32 v27, s9" % WS_E)
e("global_store_dword v26, v27, s[%d:%d] %s     ; next launch's epoch (read only after the kernel boundary)" % (sWS, sWS + 1, fl("eflags")))
if DSP and not P.get("diagall", 0):
    e("s_cmp_lg_u32 s2, 0\ns_cbranch_scc1 L_h_done")
    if DSP == 1:
        e("s_memrealtime s[94:95]\ns_waitcnt lgkmcnt(0)")
    e("s_sub_u32 s12, s94, s92")
    e("s_min_u32 s12, s12, 20000")
    e("s_memrealtime s[94:95]\ns_waitcnt lgkmcnt(0)\ns_add_u32 s13, s94, s12")
    e("L_dspin:\ns_memrealtime s[94:95]\ns_waitcnt lgkmcnt(0)\ns_sub_u32 s14, s13, s94\ns_cmp_gt_i32 s14, 0\ns_cbranch_scc1 L_dspin")
e("L_h_done:")
if DSP and P.get("diagall", 0):
    e("s_cmp_lg_u32 s3, 0\ns_cbranch_scc1 L_dsp_done")
    e("s_sub_u32 s12, s94, s92\ns_min_u32 s12, s12, 20000\ns_add_u32 s13, s92, s12\ns_add_u32 s13, s13, s12\ns_add_u32 s13, s13, 6000")
    e("L_dspin:\ns_memrealtime s[94:95]\ns_waitcnt lgkmcnt(0)\ns_sub_u32 s14, s13, s94\ns_cmp_gt_i32 s14, 0\ns_cbranch_scc1 L_dspin")
    e("L_dsp_done:")
stamp(8)
if STAMPS:
    e("s_add_u32 s3, s3, 4")
stamp_flush(9)
e("L_end:")
e("s_endpgm")

e('.section .rodata,"a"\n.p2align 6\n.amdhsa_kernel %s' % KN)
e("  .amdhsa_next_free_vgpr 256\n  .amdhsa_next_free_sgpr 96\n  .amdhsa_accum_offset 256")
e("  .amdhsa_group_segment_fixed_size 0\n  .amdhsa_kernarg_size 64\n  .amdhsa_user_sgpr_count 2\n  .amdhsa_user_sgpr_kernarg_segment_ptr 1\n  .amdhsa_system_sgpr_workgroup_id_x 1")
e("  .amdhsa_float_denorm_mode_32 3")
e(".end_amdhsa_kernel")
open(out, "w").write("\n".join(L) + "\n")
```
